```python
import torch

def _softmax(x, axis=-1):
    return torch.softmax(x, dim=axis)
def _gelu(x):
    return torch.nn.functional.gelu(x, approximate="tanh")
def _silu(x):
    return torch.nn.functional.silu(x)
def _sigmoid(x):
    return torch.sigmoid(x)
def _layernorm(x, axis=-1, eps=1e-5):
    m = x.mean(dim=axis, keepdim=True)
    v = x.var(dim=axis, keepdim=True, unbiased=False)
    return (x - m) / torch.sqrt(v + eps)
def _scatter_add(tgt, idx, src, axis=0):
    return tgt.clone().index_add_(axis, idx, src)
def _segment_sum(src, seg, n):
    out = torch.zeros((n,) + src.shape[1:], dtype=src.dtype)
    return out.index_add_(0, seg, src)
def _pad(x, pw):
    flat = tuple(v for pair in reversed(pw) for v in pair)
    return torch.nn.functional.pad(x, flat)

kernel_name = 'parallel_sum__mha_block__mixer_s_mlp__prompt'

def setup_inputs():

    _w = (lambda a: (lambda t: t.to(torch.bfloat16) if t.is_floating_point() else t)(torch.as_tensor(a)))
    def _A_setup():
        B, S, D, H = 1, 2048, 640, 32
        return {
            "x": _w((lambda *s: torch.randn(*s, dtype=torch.bfloat16) * 0.05)(B, S, D)),
            "wqkv": _w((lambda *s: torch.randn(*s, dtype=torch.bfloat16) * 0.05)(D, 3 * D)),
            "wo": _w((lambda *s: torch.randn(*s, dtype=torch.bfloat16) * 0.05)(D, D)),
        }
    _A_in = _A_setup()

    def _B_setup():
        B, S, D, F = 1, 2048, 640, 1536
        return {
            "x":  _w((lambda *s: torch.randn(*s, dtype=torch.bfloat16) * 0.05)(B, S, D)),
            "w1": _w((lambda *s: torch.randn(*s, dtype=torch.bfloat16) * 0.8)(D, D) * (D ** -0.5)),
            "w2": _w((lambda *s: torch.randn(*s, dtype=torch.bfloat16) * 0.8)(D, D) * (D ** -0.5)),
            "w3": _w((lambda *s: torch.randn(*s, dtype=torch.bfloat16) * 0.8)(D, F) * (D ** -0.5)),
            "w4": _w((lambda *s: torch.randn(*s, dtype=torch.bfloat16) * 0.8)(F, D) * (F ** -0.5)),
        }
    _B_in = _B_setup()

    return {
        "A_x": _A_in["x"],
        "A_wqkv": _A_in["wqkv"],
        "A_wo": _A_in["wo"],
        "B_x": _B_in["x"],
        "B_w1": _B_in["w1"],
        "B_w2": _B_in["w2"],
        "B_w3": _B_in["w3"],
        "B_w4": _B_in["w4"],
    }

def reference(A_x, A_wqkv, A_wo, B_x, B_w1, B_w2, B_w3, B_w4):
    def _A_ref(x, wqkv, wo):
        B, S, D = x.shape
        H = 32
        Dh = D // H
        qkv = (lambda x, *d: x.permute(*d))((x @ wqkv).reshape(B, S, 3, H, Dh), 2, 0, 3, 1, 4)
        q, k, v = qkv[0], qkv[1], qkv[2]
        scores = torch.einsum("bhqd,bhkd->bhqk", q, k) * (Dh ** -0.5)
        p = _softmax(scores, axis=-1)
        o = torch.einsum("bhqk,bhkd->bhqd", p, v)
        return (lambda x, *d: x.permute(*d))(o, 0, 2, 1, 3).reshape(B, S, D) @ wo

    def _B_ref(x, w1, w2, w3, w4):
        B, S, D = x.shape
        h = _gelu(_layernorm(x, axis=-1) @ w1)
        c = D // 4
        g0 = _pad(h[:, :, 0*c:1*c], ((0, 0), (1, 0), (0, 0)))[:, :S, :]
        g1 = _pad(h[:, :, 1*c:2*c], ((0, 0), (0, 1), (0, 0)))[:, 1:, :]
        g2 = _pad(h[:, :, 2*c:3*c], ((0, 0), (2, 0), (0, 0)))[:, :S, :]
        g3 = _pad(h[:, :, 3*c:   ], ((0, 0), (0, 2), (0, 0)))[:, 2:, :]
        hs = torch.concatenate([g0, g1, g2, g3], axis=-1) @ w2
        x1 = x + hs
        h2 = _gelu(_layernorm(x1, axis=-1) @ w3) @ w4
        return x1 + h2

    x = A_x
    xn = _layernorm(x, axis=-1)
    return x + _A_ref(xn, A_wqkv, A_wo) + _B_ref(xn, B_w1, B_w2, B_w3, B_w4)
```

```python
import re

TRANS = ('v_exp_f32','v_log_f32','v_rcp_f32','v_rsq_f32','v_sqrt_f32','v_sin_f32','v_cos_f32','v_exp_f16','v_rcp_f16')

def parse_regs(tok):
    tok = tok.strip()
    neg = tok.lstrip('-')
    if neg.startswith('abs(') or neg.startswith('|'):
        neg = neg.replace('abs(','').replace(')','').replace('|','')
    m = re.fullmatch(r'([vsa])(\d+)', neg)
    if m: return {(m.group(1), int(m.group(2)))}
    m = re.fullmatch(r'([vsa])\[(\d+):(\d+)\]', neg)
    if m: return {(m.group(1), i) for i in range(int(m.group(2)), int(m.group(3))+1)}
    if neg == 'vcc': return {('vcc',0)}
    if neg in ('vcc_lo','vcc_hi'): return {('vcc',0)}
    if neg in ('exec','exec_lo','exec_hi'): return {('exec',0)}
    if neg == 'm0': return {('m0',0)}
    if neg == 'scc': return {('scc',0)}
    return set()

class Ins:
    __slots__ = ('text','op','ops','cls','dst','src','passes','mods','srcC','srcAB','is_label','target')
    def __init__(self, text):
        self.text = text
        t = text.split(';')[0].strip()
        self.is_label = t.endswith(':')
        self.target = None
        self.dst = set(); self.src = set(); self.srcC = set(); self.srcAB = set()
        self.passes = 0; self.mods = ''
        if self.is_label or not t or t.startswith('.'):
            self.op = ''; self.cls = 'label' if self.is_label else 'dir'; self.ops = []
            return
        parts = t.split(None, 1)
        self.op = parts[0]
        rest = parts[1] if len(parts) > 1 else ''
        ops = []; cur = ''; depth = 0
        for ch in rest:
            if ch in '[(': depth += 1
            if ch in '])': depth -= 1
            if ch == ',' and depth == 0:
                ops.append(cur.strip()); cur = ''
            else: cur += ch
        if cur.strip(): ops.append(cur.strip())
        if ops:
            lp = ops[-1].split()
            if len(lp) > 1:
                ops[-1] = lp[0]; self.mods = ' '.join(lp[1:])
        self.ops = ops
        op = self.op
        R = [parse_regs(o) for o in ops]
        if op.startswith('v_mfma'):
            self.cls = 'mfma'
            self.dst = R[0]; self.srcAB = R[1] | R[2]; self.srcC = R[3]; self.src = self.srcAB | self.srcC
            if '32x32x16' in op: self.passes = 8
            elif '16x16x32' in op: self.passes = 4
            else: raise ValueError('mfma passes unknown ' + op)
        elif op.startswith('v_'):
            self.cls = 'valu'
            if op.startswith('v_cmp'):
                self.dst = R[0]; self.src = set().union(*R[1:])
                if op.startswith('v_cmpx'): self.dst |= {('exec',0)}
            elif op.startswith('v_readfirstlane') or op.startswith('v_readlane'):
                self.dst = R[0]; self.src = set().union(*R[1:])
            elif op.startswith('v_permlane'):
                self.dst = R[0] | R[1]; self.src = R[0] | R[1]
            elif op in ('v_add_co_u32','v_sub_co_u32','v_addc_co_u32','v_subb_co_u32','v_subrev_co_u32'):
                self.dst = R[0] | R[1]; self.src = set().union(*R[2:])
            else:
                self.dst = R[0]; self.src = set().union(*R[1:]) if len(R) > 1 else set()
                if op.startswith('v_fmac') or op.startswith('v_dot2c') or op.startswith('v_pk_fmac') or 'UNUSED_PRESERVE' in self.mods or op.startswith('v_writelane'):
                    self.src |= R[0]
                if op.startswith('v_cndmask') and len(ops) == 3: self.src |= {('vcc',0)}
        elif op.startswith('buffer_') or op.startswith('global_'):
            self.cls = 'vmem'
            if op.startswith('buffer_wbl2') or op.startswith('buffer_inv'):
                pass
            elif 'lds' in self.mods.split() or op.startswith('global_load_lds'):
                self.src = set().union(*R) | {('m0',0)}
            elif '_load' in op:
                self.dst = R[0]; self.src = set().union(*R[1:])
            elif 'atomic' in op:
                self.src = set().union(*R)
                if 'sc0' in self.mods.split():
                    self.dst = R[0] if op.startswith('global') else R[0]
            else:
                self.src = set().union(*R)
        elif op.startswith('ds_'):
            self.cls = 'ds'
            if op.startswith('ds_read') or op.startswith('ds_bpermute') or op.startswith('ds_permute') or op.startswith('ds_swizzle'):
                self.dst = R[0]; self.src = set().union(*R[1:])
            else:
                self.src = set().union(*R)
        elif op.startswith('s_'):
            self.cls = 'salu'
            if op in ('s_waitcnt','s_barrier','s_nop','s_endpgm','s_setprio','s_sleep','s_branch') or op.startswith('s_cbranch'):
                if op == 's_branch' or op.startswith('s_cbranch'): self.target = ops[0]
                if op == 's_cbranch_vccz' or op == 's_cbranch_vccnz': self.src = {('vcc',0)}
            elif op.startswith('s_cmp') or op.startswith('s_bitcmp'):
                self.src = set().union(*R)
            else:
                self.dst = R[0] if R else set()
                self.src = set().union(*R[1:]) if len(R) > 1 else set()
                if 'saveexec' in op: self.dst |= {('exec',0)}
        else:
            raise ValueError('unknown op: ' + text)
    def nstates(self):
        if self.cls in ('label','dir'): return 0
        if self.op == 's_nop': return int(self.ops[0], 0) + 1
        return 1

def vregs(s): return {r for r in s if r[0] in 'va'}
def sregs(s): return {r for r in s if r[0] == 's' or r[0] == 'vcc'}

def need(p, c):
    n = 0
    if p.cls == 'valu':
        pv = vregs(p.dst); ps = sregs(p.dst)
        if pv:
            if c.cls == 'mfma' and (pv & c.src): n = max(n, 2)
            if c.cls == 'valu':
                if c.op.startswith('v_permlane') and (pv & c.src): n = max(n, 2)
                if ('dpp' in c.op or 'row_' in c.mods or 'quad_perm' in c.mods) and (pv & c.src): n = max(n, 2)
                if (c.op.startswith('v_readfirstlane') or c.op.startswith('v_readlane')) and (pv & c.src): n = max(n, 1)
                if p.op in TRANS and c.op not in TRANS and (pv & c.src): n = max(n, 1)
                if p.op in TRANS and c.op in TRANS and (pv & c.src): n = max(n, 1)
                if ('sdwa' in p.op or 'op_sel' in p.mods) and (pv & (c.src | c.dst)): n = max(n, 1)
                if p.op.startswith('v_dot2'):
                    if pv & (c.src | c.dst):
                        same = (c.op == p.op)
                        if same:
                            ab = set()
                            for o in c.ops[1:3]: ab |= parse_regs(o)
                            if pv & ab: n = max(n, 3)
                        else: n = max(n, 3)
            if c.cls in ('vmem','ds','mfma') and p.op.startswith('v_dot2') and (pv & c.src): n = max(n, 3)
        if ps:
            if c.cls == 'vmem' and (ps & c.src): n = max(n, 5)
            if c.cls == 'valu' and (ps & c.src):
                n = max(n, 4 if (c.op.startswith('v_readlane') or c.op.startswith('v_writelane')) else 2)
            if c.cls == 'salu' and (ps & c.src): n = max(n, 1)
        if ('exec',0) in p.dst:
            if c.cls == 'mfma': n = max(n, 4)
            if c.cls == 'valu' and (c.op.startswith('v_readfirstlane') or c.op.startswith('v_readlane') or c.op.startswith('v_permlane')): n = max(n, 4)
            if c.cls == 'valu' and ('row_' in c.mods or 'quad_perm' in c.mods): n = max(n, 5)
    if p.cls == 'mfma':
        D = p.dst
        if c.cls == 'mfma':
            if D & c.srcC:
                if c.srcC == D and c.passes == p.passes: n = max(n, 0)
                else: n = max(n, {4:6, 8:10}[p.passes])
            if D & c.srcAB: n = max(n, {4:8, 8:12}[p.passes])
            if (D & c.dst) and not (D & c.srcC): n = max(n, {4:6, 8:10}[p.passes])
        elif c.cls == 'valu':
            if D & (c.src | c.dst): n = max(n, {4:8, 8:12}[p.passes])
            if p.srcC & c.dst: n = max(n, {4:3, 8:7}[p.passes])
        elif c.cls in ('vmem','ds'):
            if D & (c.src | c.dst): n = max(n, {4:8, 8:12}[p.passes])
    if p.cls == 'vmem' and ('_store' in p.op) and ('x3' in p.op or 'x4' in p.op):
        data = vregs(parse_regs(p.ops[0]) if p.op.startswith('buffer') else parse_regs(p.ops[1]))
        if c.cls == 'valu' and (data & c.dst): n = max(n, 2)
        elif c.cls in ('mfma','vmem','ds') and (data & c.dst): n = max(n, 2)
    if p.cls == 'ds' and p.op in ('ds_write_b128','ds_write_b96'):
        pass
    if p.cls == 'salu':
        if ('m0',0) in p.dst and (('m0',0) in c.src): n = max(n, 1)
        if ('exec',0) in p.dst and c.cls == 'mfma': n = max(n, 1)
    return n

WINDOW = 24
def fix_linear(ins):
    out = []
    for c in ins:
        if c.cls in ('label','dir'):
            out.append(c); continue
        dist = 0; req = 0
        for p in reversed(out):
            if p.cls in ('label','dir'): continue
            r = need(p, c) - dist
            if r > req: req = r
            dist += p.nstates()
            if dist >= WINDOW: break
        while req > 0:
            k = min(req, 16)
            out.append(Ins(f's_nop {k-1}'))
            req -= k
        out.append(c)
    return out

def fix_branches(ins):
    labels = {i.text.split(':')[0].strip(): n for n, i in enumerate(ins) if i.is_label}
    changed = True
    while changed:
        changed = False
        labels = {i.text.split(':')[0].strip(): n for n, i in enumerate(ins) if i.is_label}
        for n, b in enumerate(ins):
            if b.target is None or b.target not in labels: continue
            tail = [i for i in ins[max(0, n-40):n+1] if i.cls not in ('label','dir')]
            head = [i for i in ins[labels[b.target]:labels[b.target]+40] if i.cls not in ('label','dir')]
            req = 0
            d_head = 0
            for c in head:
                if d_head >= WINDOW: break
                d = d_head
                for p in reversed(tail):
                    r = need(p, c) - d
                    if r > req: req = r
                    d += p.nstates()
                    if d >= WINDOW: break
                d_head += c.nstates()
                if c.op in ('s_branch','s_endpgm'): break
            if req > 0:
                ins.insert(n, Ins(f's_nop {min(req,16)-1}'))
                changed = True
                break
    return ins

class K:
    def __init__(self, name):
        self.name = name; self.l = []; self._lab = 0
    def __call__(self, s):
        for line in s.split('\n'):
            line = line.strip()
            if line and not line.startswith(';'): self.l.append(line)
    def label(self, base='L'):
        self._lab += 1
        return f'{self.name}_{base}{self._lab}'
    def finish(self):
        ins = [Ins(x) for x in self.l]
        ins = fix_linear(ins)
        ins = fix_branches(ins)
        ins = fix_linear(ins)
        txt = f'.globl {self.name}\n.p2align 8\n.type {self.name},@function\n{self.name}:\n'
        for i in ins:
            txt += (i.text if i.is_label else '  ' + i.text) + '\n'
        return txt

def kdesc(name, nvgpr, nsgpr=102, accum=None):
    acc = accum if accum is not None else min(256, (nvgpr + 3)//4*4)
    return f'''.section .rodata,"a"
.p2align 6
.amdhsa_kernel {name}
  .amdhsa_next_free_vgpr {nvgpr}
  .amdhsa_next_free_sgpr {nsgpr}
  .amdhsa_accum_offset {acc}
  .amdhsa_group_segment_fixed_size 0
  .amdhsa_kernarg_size 88
  .amdhsa_user_sgpr_count 2
  .amdhsa_user_sgpr_kernarg_segment_ptr 1
  .amdhsa_system_sgpr_workgroup_id_x 1
.end_amdhsa_kernel
.text
'''

class VA:
    def __init__(self, start=1, limit=256):
        self.n = start; self.limit = limit; self.names = {}
    def alloc(self, cnt=1, align=1, name=None):
        if cnt >= 2 and align < 2: align = 2
        self.n = (self.n + align - 1)//align*align
        r = self.n; self.n += cnt
        assert self.n <= self.limit, f'out of vgprs allocating {name} ({self.n})'
        if name: self.names[name] = (r, cnt)
        return r
def vr(base, cnt=1):
    return f'v{base}' if cnt == 1 else f'v[{base}:{base+cnt-1}]'
def sr(base, cnt=1):
    return f's{base}' if cnt == 1 else f's[{base}:{base+cnt-1}]'
```

```python
from common import *

THR = 48.0
def gen_att(name='att_kernel', stamps=False, force_slow=False):
    k = K(name)
    st = Stamps(k, stamps)
    va = VA(1, 256)
    vL = va.alloc(); vT = va.alloc(); vH = va.alloc()
    vK1 = va.alloc(); vK2 = va.alloc(); vV = va.alloc()
    tmp = va.alloc(6, align=2)
    Q1 = va.alloc(32, align=4)
    Q2 = va.alloc(18, align=2)
    O = va.alloc(100, align=4)
    Sb = [va.alloc(16, align=4) for _ in range(2)]
    P = [va.alloc(8, align=4) for _ in range(2)]
    K1 = [va.alloc(4, align=4) for _ in range(2)]
    K2 = [va.alloc(4, align=4) for _ in range(2)]
    V = [va.alloc(8, align=4) for _ in range(2)]
    nv = va.n
    WS = 8
    sWave, sHead, sQc, sKo, sVo, sQo = 20, 21, 22, 23, 24, 25
    sLo, sVm, sHi = 26, 28, 30
    sCnt = 32
    Lend = k.label('end')
    k(f'''
    s_cmp_ge_u32 s2, 256
    s_cbranch_scc1 {Lend}
    ''')
    st()
    k(f'''
    s_load_dwordx2 s[4:5], s[0:1], {KA_WS}
    s_and_b32 s36, s2, 7
    s_lshr_b32 s37, s2, 3
    s_lshl_b32 s{sHead}, s36, 2
    s_lshr_b32 s38, s37, 3
    s_add_u32 s{sHead}, s{sHead}, s38
    s_and_b32 s{sQc}, s37, 7
    v_and_b32 v{vL}, 63, v0
    v_lshrrev_b32 v{tmp}, 6, v0
    v_and_b32 v{vT}, 31, v{vL}
    v_readfirstlane_b32 s{sWave}, v{tmp}
    v_lshrrev_b32 v{vH}, 5, v{vL}
    s_mov_b32 s{sLo}, -1
    s_mov_b32 s{sLo+1}, 0
    s_mov_b32 s{sHi}, 0
    s_mov_b32 s{sHi+1}, -1
    s_mov_b32 s{sVm}, 0xfffff
    s_mov_b32 s{sVm+1}, 0xfffff
    v_lshlrev_b32 v{vK1}, 4, v{vL}
    v_lshlrev_b32 v{vK2}, 4, v{vT}
    v_add_u32 v{vK2}, 1024, v{vK2}
    v_mul_u32_u24 v{vV}, 320, v{vH}
    v_lshl_add_u32 v{vV}, v{vT}, 4, v{vV}
    s_waitcnt lgkmcnt(0)
    ''')
    srd(k, WS, 4, 5, WS_USED)
    k(f'''
    s_mul_i32 s40, s{sHead}, {QK_HEAD}
    s_mul_i32 s41, s{sQc}, {8*1536}
    s_add_u32 s{sQo}, s40, s41
    s_add_u32 s{sQo}, s{sQo}, {QF}
    s_mul_i32 s41, s{sWave}, {16*1536}
    s_add_u32 s{sKo}, s40, s41
    s_add_u32 s{sKo}, s{sKo}, {KF}
    s_mul_i32 s40, s{sHead}, {V_HEAD}
    s_mul_i32 s41, s{sWave}, {16*1280}
    s_add_u32 s{sVo}, s40, s41
    s_add_u32 s{sVo}, s{sVo}, {VF}
    ''')
    def kv_load(b, first=False):
        k(f'buffer_load_dwordx4 v[{K1[b]}:{K1[b]+3}], v{vK1}, s[{WS}:{WS+3}], s{sKo} offen')
        k(f's_mov_b64 exec, s[{sLo}:{sLo+1}]')
        k(f'buffer_load_dwordx2 v[{K2[b]}:{K2[b]+1}], v{vK2}, s[{WS}:{WS+3}], s{sKo} offen')
        k(f's_mov_b64 exec, s[{sVm}:{sVm+1}]')
        k(f'buffer_load_dwordx4 v[{V[b]}:{V[b]+3}], v{vV}, s[{WS}:{WS+3}], s{sVo} offen')
        k(f'buffer_load_dwordx4 v[{V[b]+4}:{V[b]+7}], v{vV}, s[{WS}:{WS+3}], s{sVo} offen offset:640')
        k(f's_mov_b64 exec, -1')
        k(f's_add_u32 s{sKo}, s{sKo}, 1536')
        k(f's_add_u32 s{sVo}, s{sVo}, 1280')
    k(f'''
    v_cmp_eq_u32 vcc, 20, v{vT}
    v_mov_b32 v{tmp}, 0x3f803f80
    ''')
    k(f'v_cndmask_b32 v{tmp+1}, 0, v{tmp}, vcc')
    for b in range(2):
        for i in range(8): k(f'v_mov_b32 v{V[b]+i}, v{tmp+1}')
    k(f'v_cmp_eq_u32 vcc, 1, v{vH}')
    k(f'v_cndmask_b32 v{tmp+1}, 0, v{tmp}, vcc')
    for b in range(2):
        k(f'v_mov_b32 v{K2[b]}, v{tmp+1}')
        for i in range(1, 4): k(f'v_mov_b32 v{K2[b]+i}, 0')
    for i in range(18): k(f'v_mov_b32 v{Q2+i}, 0')
    for j in range(8):
        k(f's_add_u32 s42, s{sQo}, {j*1536}')
        k(f'buffer_load_dwordx4 v[{Q1+4*j}:{Q1+4*j+3}], v{vK1}, s[{WS}:{WS+3}], s42 offen')
        k(f's_mov_b64 exec, s[{sLo}:{sLo+1}]')
        k(f'buffer_load_dwordx2 v[{Q2+2*j}:{Q2+2*j+1}], v{vK2}, s[{WS}:{WS+3}], s42 offen')
        k(f's_mov_b64 exec, -1')
    km = Sb[0]
    k(f'''
    s_lshl_b32 s42, s{sHead}, 8
    s_add_u32 s42, s42, {KMAX}
    v_lshlrev_b32 v{tmp}, 2, v{vL}
    buffer_load_dword v{km}, v{tmp}, s[{WS}:{WS+3}], s42 offen
    ''')
    kv_load(0); kv_load(1)
    st()
    for i in range(100): k(f'v_mov_b32 v{O+i}, 0')
    k('s_waitcnt vmcnt(8)')
    for mod in ('quad_perm:[1,0,3,2]', 'quad_perm:[2,3,0,1]', 'row_half_mirror', 'row_mirror'):
        k(f'v_max_f32_dpp v{km}, v{km}, v{km} {mod} row_mask:0xf bank_mask:0xf')
    k(f'''
    v_mov_b32 v{km+1}, v{km}
    v_permlane16_swap_b32 v{km}, v{km+1}
    v_max_f32 v{km}, v{km}, v{km+1}
    v_mov_b32 v{km+1}, v{km}
    v_permlane32_swap_b32 v{km}, v{km+1}
    v_max_f32 v{km}, v{km}, v{km+1}
    ''')
    U = Sb[1]
    for j in range(8):
        u = U + j
        k(f'v_mov_b32 v{u}, 0')
        for i in range(4): k(f'v_dot2_f32_bf16 v{u}, v{Q1+4*j+i}, v{Q1+4*j+i}, v{u}')
        for i in range(2): k(f'v_dot2_f32_bf16 v{u}, v{Q2+2*j+i}, v{Q2+2*j+i}, v{u}')
    for j in range(8): cross_half_sum(k, U+j, Sb[0]+4+(j&3))
    for j in range(8):
        k(f'v_mul_f32 v{U+j}, v{U+j}, v{km}')
        k(f'v_sqrt_f32 v{U+j}, v{U+j}')
        k(f'v_mul_f32 v{U+j}, {hx(f2u(1.015625))}, v{U+j}')
    mx = Sb[0]+2
    k(f'v_max3_f32 v{mx}, v{U}, v{U+1}, v{U+2}')
    k(f'v_max3_f32 v{mx}, v{mx}, v{U+3}, v{U+4}')
    k(f'v_max3_f32 v{mx}, v{mx}, v{U+5}, v{U+6}')
    k(f'v_max_f32 v{mx}, v{mx}, v{U+7}')
    Lfast = k.label('fast')
    k(f'v_mov_b32 v{Sb[0]+3}, {hx(f2u(THR))}')
    k(f'v_cmp_nle_f32 vcc, v{mx}, v{Sb[0]+3}')
    if force_slow:
        k('s_mov_b64 vcc, -1')
    k(f's_cbranch_vccz {Lfast}')
    M = U
    k('s_waitcnt vmcnt(0)')
    for j in range(8): k(f'v_mov_b32 v{M+j}, {hx(0xff800000)}')
    sK2o = 33
    k(f's_sub_u32 s{sK2o}, s{sKo}, {2*1536}')
    k(f's_mov_b32 s{sCnt}, 16')
    Lsl = k.label('slow')
    T1, T2 = P[0], P[1]
    Sx = Sb[0]
    k(f'''
    v_mov_b32 v{T2}, 0
    v_mov_b32 v{T2+1}, 0
    v_mov_b32 v{T2+2}, 0
    v_mov_b32 v{T2+3}, 0
    {Lsl}:
    buffer_load_dwordx4 v[{T1}:{T1+3}], v{vK1}, s[{WS}:{WS+3}], s{sK2o} offen
    s_mov_b64 exec, s[{sLo}:{sLo+1}]
    buffer_load_dwordx2 v[{T2}:{T2+1}], v{vK2}, s[{WS}:{WS+3}], s{sK2o} offen
    s_mov_b64 exec, -1
    s_add_u32 s{sK2o}, s{sK2o}, 1536
    s_waitcnt vmcnt(0)
    ''')
    for j in range(8):
        k(f'v_mfma_f32_32x32x16_bf16 v[{Sx}:{Sx+15}], v[{T1}:{T1+3}], v[{Q1+4*j}:{Q1+4*j+3}], 0')
        k(f'v_mfma_f32_32x32x16_bf16 v[{Sx}:{Sx+15}], v[{T2}:{T2+3}], v[{Q2+2*j}:{Q2+2*j+3}], v[{Sx}:{Sx+15}]')
        for i in range(8):
            k(f'v_max3_f32 v{M+j}, v{M+j}, v{Sx+2*i}, v{Sx+2*i+1}')
    k(f'''
    s_sub_u32 s{sCnt}, s{sCnt}, 1
    s_cmp_lg_u32 s{sCnt}, 0
    s_cbranch_scc1 {Lsl}
    ''')
    for j in range(8):
        k(f'v_mov_b32 v{Sx+j}, v{M+j}')
        k(f'v_permlane32_swap_b32 v{M+j}, v{Sx+j}')
        k(f'v_max_f32 v{M+j}, v{M+j}, v{Sx+j}')
    k(f'''
    v_lshlrev_b32 v{tmp}, 2, v{vT}
    s_lshl_b32 s40, s{sWave}, 10
    v_add_u32 v{tmp+1}, s40, v{tmp}
    ''')
    for j in range(8): k(f'ds_write_b32 v{tmp+1}, v{M+j} offset:{j*128}')
    k('s_waitcnt lgkmcnt(0)')
    k('s_barrier')
    for w in range(4):
        for j in range(8): k(f'ds_read_b32 v{Sx+j}, v{tmp} offset:{w*1024 + j*128}')
        k('s_waitcnt lgkmcnt(0)')
        for j in range(8): k(f'v_max_f32 v{M+j}, v{M+j}, v{Sx+j}')
    k('s_barrier')
    k(f'{Lfast}:')
    k(f's_mov_b64 exec, s[{sHi}:{sHi+1}]')
    for j in range(8):
        a, b_ = Sb[0], Sb[0]+1
        k(f'v_sub_f32 v{a}, 0, v{U+j}')
        k(f'v_and_b32 v{b_}, 0xffff0000, v{a}')
        k(f'v_sub_f32 v{a}, v{a}, v{b_}')
        k(f'v_cvt_pk_bf16_f32 v{Q2+2*j}, v{b_}, v{a}')
    k('s_mov_b64 exec, -1')
    st()
    def qk(n_j, kb, sb, part):
        if part == 0:
            return f'v_mfma_f32_32x32x16_bf16 v[{Sb[sb]}:{Sb[sb]+15}], v[{K1[kb]}:{K1[kb]+3}], v[{Q1+4*n_j}:{Q1+4*n_j+3}], 0'
        return f'v_mfma_f32_32x32x16_bf16 v[{Sb[sb]}:{Sb[sb]+15}], v[{K2[kb]}:{K2[kb]+3}], v[{Q2+2*n_j}:{Q2+2*n_j+3}], v[{Sb[sb]}:{Sb[sb]+15}]'
    def pv(j, vb, pb, part):
        o = O + 12*j
        return f'v_mfma_f32_32x32x16_bf16 v[{o}:{o+15}], v[{V[vb]+4*part}:{V[vb]+4*part+3}], v[{P[pb]+4*part}:{P[pb]+4*part+3}], v[{o}:{o+15}]'
    def step(j, kb, first=False, lastkt=False, pre=None):
        sb = j & 1
        e = lambda i: k(f'v_exp_f32 v{Sb[sb]+i}, v{Sb[sb]+i}')
        c = lambda i: k(f'v_cvt_pk_bf16_f32 v{P[sb]+i}, v{Sb[sb]+2*i}, v{Sb[sb]+2*i+1}')
        nj = (j + 1) % 8; nkb = kb if j < 7 else kb ^ 1
        do_next = not (lastkt and j == 7)
        e(0); e(1)
        if not first:
            pj = (j - 1) % 8; pkb = kb if j > 0 else kb ^ 1
            k(pv(pj, pkb, sb ^ 1, 1))
        if pre: pre()
        e(2); e(3); e(4); e(5)
        if do_next: k(qk(nj, nkb, sb ^ 1, 0))
        e(6); e(7); c(0); c(1)
        if do_next: k(qk(nj, nkb, sb ^ 1, 1))
        c(2); c(3); e(8); e(9); e(10); e(11)
        k(pv(j, kb, sb, 0))
        e(12); e(13); e(14); e(15)
        c(4); c(5); c(6); c(7)
    k('s_waitcnt vmcnt(4)')
    k(qk(0, 0, 0, 0)); k(qk(0, 0, 0, 1))
    k('s_nop 7'); k('s_nop 3')
    def keytile(kb, first, load_next, last):
        for j in range(8):
            pre = None
            if j == 1 and load_next: pre = lambda: kv_load(kb ^ 1)
            if j == 7 and not last: k('s_waitcnt vmcnt(2)')
            if j == 0 and not first: k('s_waitcnt vmcnt(0)')
            step(j, kb, first=(first and j == 0), lastkt=last, pre=pre)
    keytile(0, True, False, False)
    Lloop = k.label('loop')
    k(f's_mov_b32 s{sCnt}, 7')
    k(f'{Lloop}:')
    keytile(1, False, True, False)
    keytile(0, False, True, False)
    k(f's_sub_u32 s{sCnt}, s{sCnt}, 1')
    k(f's_cmp_lg_u32 s{sCnt}, 0')
    k(f's_cbranch_scc1 {Lloop}')
    keytile(1, False, False, True)
    k(pv(7, 1, 1, 1))
    st()
    k('s_nop 7'); k('s_nop 7')
    wa, ra = tmp, tmp+1
    k(f'''
    v_lshlrev_b32 v{wa}, 4, v{vL}
    s_mul_i32 s40, s{sWave}, {12*1024}
    v_add_u32 v{ra}, 0, v{wa}
    v_add_u32 v{wa}, s40, v{wa}
    s_mul_i32 s41, s{sWave}, 3072
    v_add_u32 v{ra}, s41, v{ra}
    ''')
    def foff(dst, d0):
        k(f'''
        s_mul_i32 s44, s{sHead}, 20
        s_add_u32 s44, s44, {d0}
        s_lshr_b32 s45, s44, 5
        s_lshl_b32 s{dst}, s45, 10
        s_bfe_u32 s45, s44, 0x10004
        s_lshl_b32 s45, s45, 9
        s_add_u32 s{dst}, s{dst}, s45
        s_bfe_u32 s45, s44, 0x10002
        s_lshl_b32 s45, s45, 8
        s_add_u32 s{dst}, s{dst}, s45
        s_bfe_u32 s45, s44, 0x10003
        s_lshl_b32 s45, s45, 3
        s_add_u32 s{dst}, s{dst}, s45
        ''')
    so = [50, 51, 52, 53, 54]
    for i, d0 in enumerate((0, 4, 8, 12, 16)): foff(so[i], d0)
    T = Sb[0]
    Rr = Q1
    vo = [K1[0], K1[0]+1, K1[0]+2]
    for r in range(2):
        for jj in range(4):
            o = O + 12*(4*r + jj)
            for g in range(3):
                k(f'ds_write_b128 v{wa}, v[{o+4*g}:{o+4*g+3}] offset:{jj*3072 + g*1024}')
        k('s_waitcnt lgkmcnt(0)')
        k('s_barrier')
        for w in range(4):
            dstb = T if w == 0 else Rr + 12*(w-1) if w < 3 else Rr + 24
            for g in range(3):
                k(f'ds_read_b128 v[{dstb+4*g}:{dstb+4*g+3}], v{ra} offset:{w*12*1024 + g*1024}')
        k(f'''
        s_lshl_b32 s40, s{sQc}, 8
        s_lshl_b32 s41, s{sWave}, 5
        s_add_u32 s40, s40, s41
        s_add_u32 s40, s40, {128*r}
        v_add_u32 v{vo[0]}, s40, v{vT}
        v_lshrrev_b32 v{vo[1]}, 4, v{vo[0]}
        s_mov_b32 s41, {NK4*1024}
        v_mul_lo_u32 v{vo[1]}, v{vo[1]}, s41
        v_and_b32 v{vo[0]}, 15, v{vo[0]}
        v_lshl_add_u32 v{vo[0]}, v{vo[0]}, 4, v{vo[1]}
        s_waitcnt lgkmcnt(0)
        ''')
        for i in range(12):
            k(f'v_add_f32 v{T+i}, v{T+i}, v{Rr+i}')
            k(f'v_add_f32 v{Rr+12+i}, v{Rr+12+i}, v{Rr+24+i}')
        for i in range(12): k(f'v_add_f32 v{T+i}, v{T+i}, v{Rr+12+i}')
        rl, rl2 = Sb[1], Sb[1]+1
        k(f'''
        v_rcp_f32 v{rl}, v{T+8}
        s_nop 0
        v_mov_b32 v{rl2}, v{rl}
        v_permlane32_swap_b32 v{rl}, v{rl2}
        ''')
        for i in range(12): k(f'v_mul_f32 v{T+i}, v{T+i}, v{rl2}')
        pkd = Sb[1]+4
        for g in range(3):
            k(f'v_cvt_pk_bf16_f32 v{pkd+2*g}, v{T+4*g}, v{T+4*g+1}')
            k(f'v_cvt_pk_bf16_f32 v{pkd+2*g+1}, v{T+4*g+2}, v{T+4*g+3}')
        for g in range(3):
            k(f's_add_u32 s42, s{so[2*g]}, {A4}')
            k(f's_mov_b64 exec, s[{sLo}:{sLo+1}]')
            k(f'buffer_store_dwordx2 v[{pkd+2*g}:{pkd+2*g+1}], v{vo[0]}, s[{WS}:{WS+3}], s42 offen')
            if g < 2:
                k(f's_add_u32 s42, s{so[2*g+1]}, {A4}')
                k(f's_mov_b64 exec, s[{sHi}:{sHi+1}]')
                k(f'buffer_store_dwordx2 v[{pkd+2*g}:{pkd+2*g+1}], v{vo[0]}, s[{WS}:{WS+3}], s42 offen')
        k('s_mov_b64 exec, -1')
        if r == 0: k('s_barrier')
    k(f'{Lend}:')
    if stamps:
        Lx = k.label('x')
        k(f's_cmp_ge_u32 s2, 256')
        k(f's_cbranch_scc1 {Lx}')
        k('s_waitcnt vmcnt(0)')
        st()
        st.dump(WS, sWave, tmp)
        k(f'{Lx}:')
    k('s_endpgm')
    return k.finish(), kdesc(name, nv), nv

if __name__ == '__main__':
    t, d, nv = gen_att()
    print(nv)
```

```python
from asmlib import *
S, D, H, DH, F = 2048, 640, 32, 20, 1536
QF   = 0x000000
KF   = 0x300000
VF   = 0x600000
HS   = 0x880000
X1F  = 0xB00000
A4   = 0xD80000
KMAX = 0x1600000
ST1  = 0x1602000
CS3P = 0x1608000
PS   = 0x1640000
WS_USED = 0x16C0000
QK_HEAD = 64*1536
V_HEAD  = 64*1280
NK4 = 68
KA_X, KA_WQKV, KA_WO, KA_BX, KA_W1, KA_W2, KA_W3, KA_W4, KA_OUT, KA_DBG, KA_WS = [8*i for i in range(11)]
import struct, math
def f2u(x): return struct.unpack('<I', struct.pack('<f', x))[0]
def hx(x): return '0x%08x' % x
LOG2E = 1.4426950408889634
QSCALE = (DH ** -0.5) * LOG2E
GELU_C0 = 2.0 * math.sqrt(2.0/math.pi) * LOG2E
GELU_C1 = GELU_C0 * 0.044715
EPS = 1e-5

def srd(k, s, base_lo, base_hi, size):
    k(f's_mov_b32 s{s}, s{base_lo}')
    k(f's_and_b32 s{s+1}, s{base_hi}, 0xffff')
    k(f's_mov_b32 s{s+2}, {size}')
    k(f's_mov_b32 s{s+3}, 0x20000')

def cross_half_sum(k, a, tmp):
    k(f'v_mov_b32 v{tmp}, v{a}')
    k(f'v_permlane32_swap_b32 v{a}, v{tmp}')
    k(f'v_add_f32 v{a}, v{a}, v{tmp}')

def gelu_pk(k, x, t0, t1, cC0, cC1, cOne):
    k(f'v_pk_mul_f32 v[{t0}:{t0+1}], v[{x}:{x+1}], v[{x}:{x+1}]')
    k(f'v_pk_fma_f32 v[{t0}:{t0+1}], v[{t0}:{t0+1}], v[{cC1}:{cC1+1}], v[{cC0}:{cC0+1}]')
    k(f'v_pk_mul_f32 v[{t0}:{t0+1}], v[{t0}:{t0+1}], v[{x}:{x+1}]')
    k(f'v_exp_f32 v{t1}, v{t0}')
    k(f'v_exp_f32 v{t1+1}, v{t0+1}')
    k(f'v_pk_add_f32 v[{t1}:{t1+1}], v[{t1}:{t1+1}], v[{cOne}:{cOne+1}]')
    k(f'v_rcp_f32 v{t1}, v{t1}')
    k(f'v_rcp_f32 v{t1+1}, v{t1+1}')
    k(f'v_pk_mul_f32 v[{x}:{x+1}], v[{x}:{x+1}], v[{t1}:{t1+1}]')

STAMP = 0x1680000
class Stamps:
    def __init__(self, k, on):
        self.k = k; self.on = on; self.n = 0
    def __call__(self):
        if not self.on: return
        r = 80 + 2*self.n; self.n += 1
        assert self.n <= 8
        self.k(f's_memtime s[{r}:{r+1}]')
        if self.n == 1: self.k('s_memrealtime s[98:99]')
    def dump(self, srd, sWave, vtmp):
        if not self.on: return
        k = self.k
        k('s_memrealtime s[100:101]')
        k('s_waitcnt lgkmcnt(0)')
        k('s_sub_u32 s94, s100, s98')
        k('s_mov_b64 exec, 1')
        k(f's_lshl_b32 s96, s2, 2')
        k(f's_add_u32 s96, s96, s{sWave}')
        k(f's_lshl_b32 s96, s96, 5')
        k(f's_add_u32 s96, s96, {STAMP}')
        k(f'v_mov_b32 v{vtmp}, 0')
        assert self.n <= 7
        k(f'v_mov_b32 v{vtmp+1}, s94')
        k(f'buffer_store_dword v{vtmp+1}, v{vtmp}, s[{srd}:{srd+3}], s96 offen offset:28')
        for i in range(self.n):
            k(f'v_mov_b32 v{vtmp+1}, s{80+2*i}')
            k(f'buffer_store_dword v{vtmp+1}, v{vtmp}, s[{srd}:{srd+3}], s96 offen offset:{4*i}')
```

```python
from common import *

def gen_g1(name='g1_kernel', stamps=False):
    k = K(name)
    st = Stamps(k, stamps)
    va = VA(1, 256)
    vL = va.alloc(); vT = va.alloc(); vH = va.alloc()
    vXoff = va.alloc(4); vWoff = va.alloc(5, align=1)
    vXa = va.alloc(4); vW0 = va.alloc(); vW1 = va.alloc()
    acc = va.alloc(80, align=4)
    Xf = [va.alloc(4, align=4) for _ in range(2)]
    Wf = [va.alloc(20, align=4) for _ in range(2)]
    sS = va.alloc(2); sQ = va.alloc(2); cs = va.alloc(5, align=1)
    tmp = va.alloc(32, align=4)
    cst = va.alloc(12, align=2)
    nv = va.n
    sWave, sMb, sType, sNq, sLdw, sLdw64, sXl, sWl, sOnes, sXo, sWo = 20,21,23,24,25,26,27,28,29,30,31
    XS, WS_, OS = 8, 12, 16
    LW = 65536
    CSB = 147456
    STB = CSB + 1024
    Lend = k.label('end')
    k(f'''
    s_cmp_ge_u32 s2, 256
    s_cbranch_scc1 {Lend}
    ''')
    st()
    k(f'''
    s_load_dwordx2 s[4:5], s[0:1], {KA_X}
    s_load_dwordx2 s[6:7], s[0:1], {KA_WQKV}
    s_load_dwordx2 s[32:33], s[0:1], {KA_W1}
    s_load_dwordx2 s[34:35], s[0:1], {KA_WS}
    s_load_dwordx2 s[52:53], s[0:1], {KA_W3}
    s_and_b32 s36, s2, 7
    s_lshr_b32 s37, s2, 3
    s_and_b32 s38, s36, 1
    s_lshl_b32 s38, s38, 3
    s_and_b32 s39, s37, 7
    s_add_u32 s{sMb}, s38, s39
    s_lshr_b32 s{sType}, s36, 1
    s_lshr_b32 s{sNq}, s37, 3
    v_and_b32 v{vL}, 63, v0
    v_lshrrev_b32 v{tmp}, 6, v0
    v_and_b32 v{vT}, 31, v{vL}
    v_readfirstlane_b32 s{sWave}, v{tmp}
    v_lshrrev_b32 v{vH}, 5, v{vL}
    s_mov_b32 s{sOnes}, 0x3f803f80
    s_waitcnt lgkmcnt(0)
    ''')
    st()
    k(f'''
    s_mul_i32 s40, s{sMb}, 163840
    s_add_u32 s4, s4, s40
    s_addc_u32 s5, s5, 0
    ''')
    srd(k, XS, 4, 5, 163840)
    Lw1 = k.label('w1'); Lwd = k.label('wd')
    k(f'''
    s_mul_i32 s41, s{sNq}, 320
    s_cmp_eq_u32 s{sType}, 3
    s_cbranch_scc1 {Lw1}
    s_mul_i32 s42, s{sType}, 1280
    s_add_u32 s41, s41, s42
    s_add_u32 s44, s6, s41
    s_addc_u32 s45, s7, 0
    s_sub_u32 s46, {640*3840}, s41
    s_mov_b32 s{sLdw}, 3840
    s_branch {Lwd}
    {Lw1}:
    s_add_u32 s44, s32, s41
    s_addc_u32 s45, s33, 0
    s_sub_u32 s46, {640*1280}, s41
    s_mov_b32 s{sLdw}, 1280
    {Lwd}:
    s_mov_b32 s{WS_}, s44
    s_and_b32 s{WS_+1}, s45, 0xffff
    s_mov_b32 s{WS_+2}, s46
    s_mov_b32 s{WS_+3}, 0x20000
    s_lshl_b32 s{sLdw64}, s{sLdw}, 6
    ''')
    srd(k, OS, 34, 35, WS_USED)
    k(f'''
    s_lshl_b32 s{sXl}, s{sWave}, 12
    s_mul_i32 s{sWl}, s{sWave}, 5120
    s_add_u32 s{sWl}, s{sWl}, {LW}
    ''')
    t0, t1, t2, t3 = tmp, tmp+1, tmp+2, tmp+3
    k(f'''
    v_lshlrev_b32 v{t0}, 2, v0
    v_add_u32 v{t0}, {CSB}, v{t0}
    v_mov_b32 v{t1}, 0
    ds_write_b32 v{t0}, v{t1}
    ''')
    srd(k, 48, 52, 53, 640*3072)
    c3 = Wf[0]
    k(f'''
    s_lshl_b32 s54, s{sType}, 2
    s_add_u32 s54, s54, s{sNq}
    s_mul_i32 s55, s{sMb}, 40
    s_mul_i32 s56, s{sWave}, 10
    s_add_u32 s55, s55, s56
    s_mul_i32 s55, s55, 3072
    s_mul_i32 s56, s54, 192
    s_add_u32 s55, s55, s56
    v_lshlrev_b32 v{t2}, 3, v{vL}
    s_mov_b64 exec, 0xffffff
    ''')
    for i in range(10):
        k(f'buffer_load_dwordx2 v[{c3+2*i}:{c3+2*i+1}], v{t2}, s[48:51], s55 offen')
        if i < 9: k(f's_add_u32 s55, s55, 3072')
    k('s_mov_b64 exec, -1')
    k('s_waitcnt lgkmcnt(0)')
    k('s_barrier')
    k(f'''
    v_lshrrev_b32 v{t0}, 3, v{vL}
    s_lshl_b32 s40, s{sWave}, 5
    v_add_u32 v{t0}, s40, v{t0}
    v_lshrrev_b32 v{t1}, 4, v{vL}
    v_and_b32 v{t2}, 7, v{vL}
    ''')
    for i in range(4):
        k(f'''
        v_add_u32 v{t3}, {8*i}, v{t0}
        v_mul_u32_u24 v{t3}, 1280, v{t3}
        v_add_u32 v{vXoff+i}, {4*(i&1)}, v{t1}
        v_xor_b32 v{vXoff+i}, v{vXoff+i}, v{t2}
        v_lshlrev_b32 v{vXoff+i}, 4, v{vXoff+i}
        v_add_u32 v{vXoff+i}, v{vXoff+i}, v{t3}
        ''')
    k(f's_mul_i32 s40, s{sWave}, 320')
    for i in range(5):
        k(f'''
        v_add_u32 v{t0}, s40, v{vL}
        v_add_u32 v{t0}, {64*i}, v{t0}
        v_mul_u32_u24 v{t1}, 3277, v{t0}
        v_lshrrev_b32 v{t1}, 16, v{t1}
        v_mul_u32_u24 v{t2}, 20, v{t1}
        v_sub_u32 v{t2}, v{t0}, v{t2}
        v_lshlrev_b32 v{t2}, 4, v{t2}
        v_mul_lo_u32 v{t1}, v{t1}, s{sLdw}
        v_add_u32 v{vWoff+i}, v{t1}, v{t2}
        ''')
    def dma_stage(s):
        slot = s % 4
        if s == 0:
            k(f's_mov_b32 s{sXo}, 0')
            k(f's_mov_b32 s{sWo}, 0')
        else:
            k(f's_add_u32 s{sXo}, s{sXo}, 128')
            k(f's_add_u32 s{sWo}, s{sWo}, s{sLdw64}')
        for i in range(5):
            k(f's_add_u32 m0, s{sWl}, {slot*20480 + i*1024}')
            k(f'buffer_load_dwordx4 v{vWoff+i}, s[{WS_}:{WS_+3}], s{sWo} offen lds')
        for i in range(4):
            k(f's_add_u32 m0, s{sXl}, {slot*16384 + i*1024}')
            k(f'buffer_load_dwordx4 v{vXoff+i}, s[{XS}:{XS+3}], s{sXo} offen lds')
    st()
    for s in range(4):
        dma_stage(s)
        if s in (0, 3): st()
    k(f'''
    v_lshrrev_b32 v{t0}, 1, v{vT}
    v_and_b32 v{t0}, 7, v{t0}
    v_lshlrev_b32 v{t1}, 7, v{vT}
    v_add_u32 v{t1}, s{sXl}, v{t1}
    ''')
    for ks in range(4):
        k(f'''
        v_add_u32 v{t2}, {2*ks}, v{vH}
        v_xor_b32 v{t2}, v{t2}, v{t0}
        v_lshlrev_b32 v{t2}, 4, v{t2}
        v_add_u32 v{vXa+ks}, v{t1}, v{t2}
        ''')
    k(f'''
    v_lshrrev_b32 v{t0}, 4, v{vL}
    v_and_b32 v{t1}, 15, v{vL}
    v_lshrrev_b32 v{t2}, 2, v{t1}
    v_and_b32 v{t1}, 3, v{t1}
    v_lshrrev_b32 v{t3}, 1, v{t0}
    v_lshlrev_b32 v{t3}, 3, v{t3}
    v_add_u32 v{t2}, v{t2}, v{t3}
    v_mul_u32_u24 v{t2}, 320, v{t2}
    v_and_b32 v{t0}, 1, v{t0}
    v_lshlrev_b32 v{t0}, 5, v{t0}
    v_lshlrev_b32 v{t1}, 3, v{t1}
    v_add3_u32 v{vW0}, v{t2}, v{t0}, v{t1}
    v_add_u32 v{vW0}, {LW}, v{vW0}
    v_add_u32 v{vW1}, 61440, v{vW0}
    ''')
    for i in range(80): k(f'v_mov_b32 v{acc+i}, 0')
    for r in (sS, sS+1, sQ, sQ+1, cs, cs+1, cs+2, cs+3, cs+4): k(f'v_mov_b32 v{r}, 0')
    k('s_waitcnt vmcnt(36)')
    u = Wf[1]
    for i in range(4): k(f'v_mov_b32 v{u+4+i}, 0')
    for i in range(10):
        k(f'v_lshlrev_b32 v{u}, 16, v{c3+2*i}')
        k(f'v_and_b32 v{u+1}, 0xffff0000, v{c3+2*i}')
        k(f'v_lshlrev_b32 v{u+2}, 16, v{c3+2*i+1}')
        k(f'v_and_b32 v{u+3}, 0xffff0000, v{c3+2*i+1}')
        for q in range(4): k(f'v_add_f32 v{u+4+q}, v{u+4+q}, v{u+q}')
    k(f'''
    v_lshlrev_b32 v{t0}, 4, v{vL}
    v_add_u32 v{t0}, {CSB+640}, v{t0}
    s_mov_b64 exec, 0xffffff
    ''')
    for q in range(4): k(f'ds_add_f32 v{t0}, v{u+4+q} offset:{4*q}')
    k('s_mov_b64 exec, -1')
    def reads(s, ks, buf):
        slot = s % 4
        out = [f'ds_read_b128 v[{Xf[buf]}:{Xf[buf]+3}], v{vXa+ks} offset:{slot*16384}']
        for t in range(5):
            for j in range(2):
                base = vW1 if slot == 3 else vW0
                off = (0 if slot == 3 else slot*20480) + (16*ks + 4*j)*320 + t*64
                r = Wf[buf] + 4*t + 2*j
                out.append(f'ds_read_b64_tr_b16 v[{r}:{r+1}], v{base} offset:{off}')
        return out
    def main_loop(orient):
        k('s_waitcnt vmcnt(27) lgkmcnt(0)')
        k('s_barrier')
        if orient == 'T': st()
        else: k(f's_memtime s[{80+2*(st.n-1)}:{81+2*(st.n-1)}]') if stamps else None
        for r in reads(0, 0, 0): k(r)
        step = 0
        for s in range(10):
            for ks in range(4):
                buf = step & 1
                last = (s == 9 and ks == 3)
                if ks == 3 and s < 9:
                    if s == 0: k('s_waitcnt vmcnt(18) lgkmcnt(0)')
                    elif s < 8: k('s_waitcnt vmcnt(9) lgkmcnt(0)')
                    else: k('s_waitcnt vmcnt(0) lgkmcnt(0)')
                    k('s_barrier')
                    if 1 <= s <= 6: dma_stage(s+3)
                    nxt = reads(s+1, 0, buf^1)
                else:
                    k('s_waitcnt lgkmcnt(0)')
                    nxt = [] if last else reads(s, ks+1, buf^1)
                x = Xf[buf]
                dots = [f'v_dot2_f32_bf16 v{sS+(i&1)}, v{x+i}, s{sOnes}, v{sS+(i&1)}' for i in range(4)] + \
                       [f'v_dot2_f32_bf16 v{sQ+(i&1)}, v{x+i}, v{x+i}, v{sQ+(i&1)}' for i in range(4)]
                rd = list(nxt)
                for t in range(5):
                    w = Wf[buf] + 4*t
                    a = acc + 16*t
                    if orient == 'T':
                        k(f'v_mfma_f32_32x32x16_bf16 v[{a}:{a+15}], v[{w}:{w+3}], v[{x}:{x+3}], v[{a}:{a+15}]')
                    else:
                        k(f'v_mfma_f32_32x32x16_bf16 v[{a}:{a+15}], v[{x}:{x+3}], v[{w}:{w+3}], v[{a}:{a+15}]')
                    n = 3 if t == 0 else 2
                    for _ in range(n):
                        if rd: k(rd.pop(0))
                    for _ in range(2):
                        if dots: k(dots.pop(0))
                Ls = k.label('cs')
                k(f's_cmp_lg_u32 s{sWave}, {ks}')
                k(f's_cbranch_scc1 {Ls}')
                for i in range(4):
                    for t in range(5):
                        k(f'v_dot2_f32_bf16 v{cs+t}, v{Wf[buf]+4*t+i}, s{sOnes}, v{cs+t}')
                k(f'{Ls}:')
                step += 1
    LV = k.label('V'); Lep = k.label('ep')
    k(f's_cmp_eq_u32 s{sType}, 2')
    k(f's_cbranch_scc1 {LV}')
    main_loop('T')
    k(f's_branch {Lep}')
    k(f'{LV}:')
    main_loop('N')
    k(f'{Lep}:')
    st()
    mu, rr, var = tmp, tmp+1, tmp+2
    k(f'''
    v_lshlrev_b32 v{tmp+4}, 2, v{vT}
    v_add_u32 v{tmp+4}, {CSB}, v{tmp+4}
    ''')
    for t in range(5): k(f'ds_add_f32 v{tmp+4}, v{cs+t} offset:{t*128}')
    k(f'''
    v_add_f32 v{sS}, v{sS}, v{sS+1}
    v_add_f32 v{sQ}, v{sQ}, v{sQ+1}
    ''')
    cross_half_sum(k, sS, tmp+5)
    cross_half_sum(k, sQ, tmp+6)
    k(f'''
    v_mul_f32 v{mu}, {hx(f2u(1.0/640))}, v{sS}
    v_mul_f32 v{var}, {hx(f2u(1.0/640))}, v{sQ}
    v_fma_f32 v{var}, -v{mu}, v{mu}, v{var}
    v_max_f32 v{var}, 0, v{var}
    v_add_f32 v{rr}, {hx(f2u(EPS))}, v{var}
    v_rsq_f32 v{rr}, v{rr}
    s_waitcnt lgkmcnt(0)
    s_barrier
    ''')
    k(f'''
    v_lshlrev_b32 v{tmp+4}, 2, v0
    v_add_u32 v{tmp+5}, {CSB+640}, v{tmp+4}
    v_cmp_gt_u32 vcc, 96, v0
    s_and_saveexec_b64 s[44:45], vcc
    ds_read_b32 v{tmp+6}, v{tmp+5}
    s_mul_i32 s41, s54, {16*384}
    s_mul_i32 s42, s{sMb}, 384
    s_add_u32 s41, s41, s42
    s_add_u32 s41, s41, {CS3P}
    s_waitcnt lgkmcnt(0)
    buffer_store_dword v{tmp+6}, v{tmp+4}, s[{OS}:{OS+3}], s41 offen
    s_mov_b64 exec, s[44:45]
    ''')
    sBlk = 40
    k(f'''
    s_lshl_b32 s{sBlk}, s{sMb}, 2
    s_add_u32 s{sBlk}, s{sBlk}, s{sWave}
    ''')
    LQ, LK, LVe, LH = k.label('eQ'), k.label('eK'), k.label('eV'), k.label('eH')
    k(f'''
    s_cmp_eq_u32 s{sType}, 1
    s_cbranch_scc1 {LK}
    s_cmp_eq_u32 s{sType}, 2
    s_cbranch_scc1 {LVe}
    s_cmp_eq_u32 s{sType}, 3
    s_cbranch_scc1 {LH}
    ''')
    nmu2 = cst; r2 = cst+2
    csr = tmp+8
    val = tmp+12
    pk = tmp+16
    vCsA = tmp+7
    def ln_group(t, j, buf=0):
        a = acc + 16*t + 4*j
        for p in range(2):
            k(f'v_pk_fma_f32 v[{val+2*p}:{val+2*p+1}], v[{csr+2*p}:{csr+2*p+1}], v[{nmu2}:{nmu2+1}], v[{a+2*p}:{a+2*p+1}]')
        for p in range(2):
            k(f'v_pk_mul_f32 v[{val+2*p}:{val+2*p+1}], v[{val+2*p}:{val+2*p+1}], v[{r2}:{r2+1}]')
    def cs_addr():
        k(f'''
        v_lshlrev_b32 v{vCsA}, 4, v{vH}
        v_add_u32 v{vCsA}, {CSB}, v{vCsA}
        ''')
    def set_mu_r(rscale):
        k(f'''
        v_sub_f32 v{nmu2}, 0, v{mu}
        v_sub_f32 v{nmu2+1}, 0, v{mu}
        v_mul_f32 v{r2}, {hx(f2u(rscale))}, v{rr}
        v_mul_f32 v{r2+1}, {hx(f2u(rscale))}, v{rr}
        ''')
    def qk_epilogue(isK):
        sec = KF if isK else QF
        vA, vB, vC = cst+4, cst+5, cst+6
        cs_addr()
        set_mu_r(1.0 if isK else QSCALE)
        k(f'''
        v_lshlrev_b32 v{vA}, 4, v{vT}
        v_mul_u32_u24 v{vB}, 504, v{vH}
        v_add_u32 v{vB}, v{vB}, v{vA}
        s_mov_b32 s41, 97280
        v_mul_lo_u32 v{vC}, v{vH}, s41
        v_add_u32 v{vC}, v{vC}, v{vA}
        v_lshlrev_b32 v{tmp+3}, 3, v{vH}
        v_add_u32 v{vA}, v{vA}, v{tmp+3}
        s_mul_i32 s41, s{sNq}, {8*QK_HEAD}
        s_mul_i32 s42, s{sBlk}, 1536
        s_add_u32 s41, s41, s42
        s_add_u32 s41, s41, {sec}
        ''')
        ss = tmp+20
        gs = tmp+18
        mH0, mH1 = cst+8, cst+9
        if isK:
            for a in range(8): k(f'v_mov_b32 v{ss+a}, 0')
            k(f'''
            v_cvt_f32_u32 v{mH1}, v{vH}
            v_sub_f32 v{mH0}, 1.0, v{mH1}
            ''')
        else:
            Lns = k.label('ns')
            k(f'''
            s_cmp_lg_u32 s{sNq}, 0
            s_cbranch_scc1 {Lns}
            s_lshl_b32 s42, s{sBlk}, 8
            s_add_u32 s42, s42, {ST1}
            v_lshlrev_b32 v{tmp+3}, 3, v{vT}
            s_mov_b64 s[44:45], exec
            s_mov_b32 exec_hi, 0
            buffer_store_dwordx2 v[{mu}:{mu+1}], v{tmp+3}, s[{OS}:{OS+3}], s42 offen
            s_mov_b64 exec, s[44:45]
            {Lns}:
            ''')
        cdm = {0:0, 4:8, 8:512, 12:520, 16:1024}
        for t in range(5):
            for j in range(4):
                f0 = 32*t + 8*j; f1 = f0 + 4
                h0, d0 = divmod(f0, 20); h1, d1 = divmod(f1, 20)
                C0 = h0*QK_HEAD + cdm[d0]; C1 = h1*QK_HEAD + cdm[d1]
                delta = C1 - C0
                va_ = {8: vA, 504: vB, 97280: vC}[delta]
                k(f'ds_read_b128 v[{csr}:{csr+3}], v{vCsA} offset:{(32*t+8*j)*4}')
                k('s_waitcnt lgkmcnt(0)')
                ln_group(t, j)
                k(f'v_cvt_pk_bf16_f32 v{pk}, v{val}, v{val+1}')
                k(f'v_cvt_pk_bf16_f32 v{pk+1}, v{val+2}, v{val+3}')
                k(f's_add_u32 s42, s41, {C0}')
                k(f'buffer_store_dwordx2 v[{pk}:{pk+1}], v{va_}, s[{OS}:{OS+3}], s42 offen')
                if isK:
                    k(f'v_mul_f32 v{gs}, v{val}, v{val}')
                    for i in range(1,4): k(f'v_fmac_f32 v{gs}, v{val+i}, v{val+i}')
                    if h0 == h1: k(f'v_add_f32 v{ss+h0}, v{ss+h0}, v{gs}')
                    else:
                        k(f'v_fmac_f32 v{ss+h0}, v{gs}, v{mH0}')
                        k(f'v_fmac_f32 v{ss+h1}, v{gs}, v{mH1}')
        if isK:
            for a in range(8): cross_half_sum(k, ss+a, tmp+8+(a&3))
            for mod in ('quad_perm:[1,0,3,2]', 'quad_perm:[2,3,0,1]', 'row_half_mirror', 'row_mirror'):
                for a in range(8):
                    k(f'v_max_f32_dpp v{ss+a}, v{ss+a}, v{ss+a} {mod} row_mask:0xf bank_mask:0xf')
            for a in range(8):
                k(f'v_mov_b32 v{tmp+8+(a&3)}, v{ss+a}')
                k(f'v_permlane16_swap_b32 v{ss+a}, v{tmp+8+(a&3)}')
                k(f'v_max_f32 v{ss+a}, v{ss+a}, v{tmp+8+(a&3)}')
            k(f'''
            s_lshl_b32 s42, s{sNq}, 11
            s_lshl_b32 s43, s{sBlk}, 2
            s_add_u32 s42, s42, s43
            s_add_u32 s42, s42, {KMAX}
            v_mov_b32 v{tmp+3}, 0
            s_mov_b64 exec, 1
            ''')
            for a in range(8):
                k(f'buffer_store_dword v{ss+a}, v{tmp+3}, s[{OS}:{OS+3}], s42 offen offset:{a*256}')
        k(f's_branch {Lend}')
    qk_epilogue(False)
    k(f'{LK}:')
    qk_epilogue(True)
    k(f'{LVe}:')
    rt = tmp+8
    mrt = Wf[0]
    csl = Wf[0]+16
    voff = Wf[1]
    k(f'''
    v_mul_f32 v{tmp+3}, v{mu}, v{rr}
    v_lshlrev_b32 v{tmp+4}, 2, v{vT}
    s_lshl_b32 s41, s{sWave}, 7
    s_add_u32 s41, s41, {STB}
    v_add_u32 v{tmp+4}, s41, v{tmp+4}
    ds_write_b32 v{tmp+4}, v{rr}
    ds_write_b32 v{tmp+4}, v{tmp+3} offset:512
    v_lshlrev_b32 v{tmp+5}, 4, v{vH}
    v_add_u32 v{tmp+5}, s41, v{tmp+5}
    s_waitcnt lgkmcnt(0)
    ''')
    for j in range(4):
        k(f'ds_read_b128 v[{rt+4*j}:{rt+4*j+3}], v{tmp+5} offset:{j*32}')
        k(f'ds_read_b128 v[{mrt+4*j}:{mrt+4*j+3}], v{tmp+5} offset:{512+j*32}')
    k(f'''
    s_mul_i32 s41, s{sNq}, {8*V_HEAD}
    s_mul_i32 s42, s{sBlk}, 1280
    s_add_u32 s41, s41, s42
    s_add_u32 s41, s41, {VF}
    v_lshlrev_b32 v{tmp+4}, 2, v{vT}
    v_add_u32 v{tmp+4}, {CSB}, v{tmp+4}
    s_mov_b32 s43, {V_HEAD}
    ''')
    for t in range(5):
        k(f'''
        ds_read_b32 v{csl}, v{tmp+4} offset:{t*128}
        v_add_u32 v{voff}, {32*t}, v{vT}
        v_mul_u32_u24 v{voff+1}, 205, v{voff}
        v_lshrrev_b32 v{voff+1}, 12, v{voff+1}
        v_mul_u32_u24 v{voff+2}, 20, v{voff+1}
        v_sub_u32 v{voff}, v{voff}, v{voff+2}
        v_lshlrev_b32 v{voff}, 4, v{voff}
        v_mul_lo_u32 v{voff+1}, v{voff+1}, s43
        v_mul_u32_u24 v{voff+2}, 320, v{vH}
        v_add3_u32 v{voff}, v{voff}, v{voff+1}, v{voff+2}
        s_waitcnt lgkmcnt(0)
        ''')
        for m in range(2):
            d = Wf[1] + 4 + 4*m
            for p in range(4):
                r0 = 8*m + 2*p
                a = acc + 16*t + r0
                e0, e1 = tmp+24, tmp+25
                k(f'v_mul_f32 v{e0}, v{a}, v{rt+r0}')
                k(f'v_mul_f32 v{e1}, v{a+1}, v{rt+r0+1}')
                k(f'v_fma_f32 v{e0}, -v{mrt+r0}, v{csl}, v{e0}')
                k(f'v_fma_f32 v{e1}, -v{mrt+r0+1}, v{csl}, v{e1}')
                k(f'v_cvt_pk_bf16_f32 v{d+p}, v{e0}, v{e1}')
            k(f'buffer_store_dwordx4 v[{d}:{d+3}], v{voff}, s[{OS}:{OS+3}], s41 offen offset:{m*640}')
    k(f's_branch {Lend}')
    k(f'{LH}:')
    cs_addr()
    cC0, cC1, cOne = cst+4, cst+6, cst+8
    dst = tmp+3
    k(f'''
    v_mul_f32 v{tmp+4}, v{rr}, v{rr}
    v_mul_f32 v{tmp+4}, v{tmp+4}, v{var}
    v_add_f32 v{tmp+4}, {hx(f2u(EPS))}, v{tmp+4}
    v_rsq_f32 v{tmp+4}, v{tmp+4}
    s_lshl_b32 s41, s{sBlk}, 5
    v_add_u32 v{dst}, s41, v{vT}
    s_and_b32 s42, s{sNq}, 1
    s_lshr_b32 s43, s{sNq}, 1
    s_add_u32 s43, s43, 1
    s_sub_u32 s44, 0, s43
    s_cmp_eq_u32 s42, 0
    s_cselect_b32 s43, s43, s44
    v_add_u32 v{dst}, s43, v{dst}
    v_mul_f32 v{rr}, v{rr}, v{tmp+4}
    v_cmp_gt_u32 vcc, 2048, v{dst}
    v_cndmask_b32 v{rr}, 0, v{rr}, vcc
    v_and_b32 v{dst}, 2047, v{dst}
    v_lshrrev_b32 v{tmp+4}, 4, v{dst}
    v_mul_u32_u24 v{tmp+4}, 20480, v{tmp+4}
    v_and_b32 v{dst}, 15, v{dst}
    v_lshlrev_b32 v{dst}, 4, v{dst}
    v_lshlrev_b32 v{tmp+5}, 8, v{vH}
    v_add3_u32 v{dst}, v{dst}, v{tmp+4}, v{tmp+5}
    s_mul_i32 s41, s{sNq}, 5120
    s_add_u32 s41, s41, {HS}
    s_add_u32 s42, s41, 4096
    v_mov_b32 v{cC0}, {hx(f2u(-GELU_C0))}
    v_mov_b32 v{cC0+1}, {hx(f2u(-GELU_C0))}
    v_mov_b32 v{cC1}, {hx(f2u(-GELU_C1))}
    v_mov_b32 v{cC1+1}, {hx(f2u(-GELU_C1))}
    v_mov_b32 v{cOne}, 1.0
    v_mov_b32 v{cOne+1}, 1.0
    ''')
    set_mu_r(1.0)
    g0, g1 = tmp+18, tmp+20
    for t in range(5):
        for j in range(4):
            k(f'ds_read_b128 v[{csr}:{csr+3}], v{vCsA} offset:{(32*t+8*j)*4}')
            k('s_waitcnt lgkmcnt(0)')
            ln_group(t, j)
            gelu_pk(k, val, g0, g1, cC0, cC1, cOne)
            gelu_pk(k, val+2, g0+4, g1+4, cC0, cC1, cOne)
            k(f'v_cvt_pk_bf16_f32 v{pk}, v{val}, v{val+1}')
            k(f'v_cvt_pk_bf16_f32 v{pk+1}, v{val+2}, v{val+3}')
            off = t*1024 + (j//2)*512 + (j%2)*8
            so = 41
            if off >= 4096: off -= 4096; so = 42
            k(f'buffer_store_dwordx2 v[{pk}:{pk+1}], v{dst}, s[{OS}:{OS+3}], s{so} offen offset:{off}')
    k(f'{Lend}:')
    if stamps:
        Lx = k.label('x')
        k(f's_cmp_ge_u32 s2, 256')
        k(f's_cbranch_scc1 {Lx}')
        k('s_mov_b64 exec, -1')
        k('s_waitcnt vmcnt(0)')
        st()
        st.dump(OS, sWave, tmp)
        k(f'{Lx}:')
    k('s_endpgm')
    return k.finish(), kdesc(name, nv), nv

if __name__ == '__main__':
    t, d, nv = gen_g1()
    print(nv)
```

```python
from common import *

def gen_g3(name='g3_kernel', stamps=False):
    k = K(name)
    st = Stamps(k, stamps)
    va = VA(1, 256)
    vL = va.alloc(); vT = va.alloc(); vH = va.alloc()
    vWoff = va.alloc(3, align=1); vXo = va.alloc(); vWr = va.alloc()
    acc = va.alloc(48, align=4)
    X = [va.alloc(16, align=4) for _ in range(4)]
    Wf = [va.alloc(12, align=4) for _ in range(3)]
    csp = va.alloc(16, align=4)
    ps = va.alloc(8, align=4)
    tmp = va.alloc(28, align=4)
    cst = va.alloc(12, align=2)
    nv = va.n
    WS, W3 = 8, 12
    sWave, sMb, sNb, sWl, sWo, sXo, sRot = 20, 21, 22, 23, 24, 25, 26
    CSB = 49152
    Lend = k.label('end')
    k(f'''
    s_cmp_ge_u32 s2, 256
    s_cbranch_scc1 {Lend}
    ''')
    st()
    k(f'''
    s_load_dwordx2 s[4:5], s[0:1], {KA_WS}
    s_load_dwordx2 s[6:7], s[0:1], {KA_W3}
    s_and_b32 s36, s2, 7
    s_lshr_b32 s37, s2, 3
    s_and_b32 s38, s36, 3
    s_lshl_b32 s38, s38, 2
    s_and_b32 s39, s37, 3
    s_add_u32 s{sMb}, s38, s39
    s_lshr_b32 s38, s36, 2
    s_lshl_b32 s38, s38, 3
    s_lshr_b32 s40, s37, 2
    s_add_u32 s{sNb}, s38, s40
    v_and_b32 v{vL}, 63, v0
    v_lshrrev_b32 v{tmp}, 6, v0
    v_and_b32 v{vT}, 31, v{vL}
    v_readfirstlane_b32 s{sWave}, v{tmp}
    v_lshrrev_b32 v{vH}, 5, v{vL}
    s_mul_i32 s41, s39, 5
    s_lshr_b32 s41, s41, 1
    s_add_u32 s41, s41, s40
    s_cmp_ge_u32 s41, 10
    s_cselect_b32 s42, 10, 0
    s_sub_u32 s{sRot}, s41, s42
    s_waitcnt lgkmcnt(0)
    ''')
    srd(k, WS, 4, 5, WS_USED)
    k(f'''
    s_mul_i32 s41, s{sNb}, 192
    s_add_u32 s6, s6, s41
    s_addc_u32 s7, s7, 0
    s_sub_u32 s42, {640*3072}, s41
    s_mov_b32 s{W3}, s6
    s_and_b32 s{W3+1}, s7, 0xffff
    s_mov_b32 s{W3+2}, s42
    s_mov_b32 s{W3+3}, 0x20000
    s_mul_i32 s{sWl}, s{sWave}, 3072
    s_mul_i32 s40, s{sWave}, 192
    ''')
    t0, t1, t2, t3 = tmp, tmp+1, tmp+2, tmp+3
    for i in range(3):
        k(f'''
        v_add_u32 v{t0}, s40, v{vL}
        v_add_u32 v{t0}, {64*i}, v{t0}
        v_mul_u32_u24 v{t1}, 5462, v{t0}
        v_lshrrev_b32 v{t1}, 16, v{t1}
        v_mul_u32_u24 v{t2}, 12, v{t1}
        v_sub_u32 v{t2}, v{t0}, v{t2}
        v_lshlrev_b32 v{t2}, 4, v{t2}
        v_mul_u32_u24 v{t1}, 3072, v{t1}
        v_add_u32 v{vWoff+i}, v{t1}, v{t2}
        ''')
    k(f'''
    v_lshlrev_b32 v{vXo}, 4, v{vL}
    s_lshl_b32 s43, s{sMb}, 2
    s_add_u32 s43, s43, s{sWave}
    s_mul_i32 s44, s43, {40*1024}
    s_add_u32 s44, s44, {X1F}
    ''')
    def stage_loads(s):
        slot = s % 4
        k(f'''
        s_add_u32 s45, s{sRot}, {s}
        s_cmp_ge_u32 s45, 10
        s_cselect_b32 s46, 10, 0
        s_sub_u32 s45, s45, s46
        s_mul_i32 s{sWo}, s45, {64*3072}
        s_lshl_b32 s45, s45, 12
        s_add_u32 s{sXo}, s44, s45
        ''')
        for i in range(3):
            k(f's_add_u32 m0, s{sWl}, {slot*12288 + i*1024}')
            k(f'buffer_load_dwordx4 v{vWoff+i}, s[{W3}:{W3+3}], s{sWo} offen lds')
        for ks in range(4):
            r = X[slot] + 4*ks
            k(f'buffer_load_dwordx4 v[{r}:{r+3}], v{vXo}, s[{WS}:{WS+3}], s{sXo} offen offset:{ks*1024}')
    for s in range(4): stage_loads(s)
    k(f'''
    s_mul_i32 s45, s{sNb}, {16*384}
    s_mul_i32 s46, s{sWave}, 96
    s_add_u32 s45, s45, s46
    s_add_u32 s45, s45, {CS3P}
    v_lshlrev_b32 v{t0}, 2, v{vL}
    s_mov_b64 exec, 0xffffff
    ''')
    for i in range(16):
        if i*384 < 4096: k(f'buffer_load_dword v{csp+i}, v{t0}, s[{WS}:{WS+3}], s45 offen offset:{i*384}')
        else:
            if i == 11: k(f's_add_u32 s45, s45, 4096')
            k(f'buffer_load_dword v{csp+i}, v{t0}, s[{WS}:{WS+3}], s45 offen offset:{i*384-4096}')
    k(f'''
    s_mov_b64 exec, -1
    s_lshl_b32 s45, s43, 11
    s_add_u32 s45, s45, {PS}
    v_lshlrev_b32 v{t0}, 6, v{vT}
    v_lshl_add_u32 v{t0}, v{vH}, 5, v{t0}
    buffer_load_dwordx4 v[{ps}:{ps+3}], v{t0}, s[{WS}:{WS+3}], s45 offen
    buffer_load_dwordx4 v[{ps+4}:{ps+7}], v{t0}, s[{WS}:{WS+3}], s45 offen offset:16
    ''')
    NEX = 18
    st()
    k(f'''
    v_lshrrev_b32 v{t0}, 4, v{vL}
    v_and_b32 v{t1}, 15, v{vL}
    v_lshrrev_b32 v{t2}, 2, v{t1}
    v_and_b32 v{t1}, 3, v{t1}
    v_lshrrev_b32 v{t3}, 1, v{t0}
    v_lshlrev_b32 v{t3}, 3, v{t3}
    v_add_u32 v{t2}, v{t2}, v{t3}
    v_mul_u32_u24 v{t2}, 192, v{t2}
    v_and_b32 v{t0}, 1, v{t0}
    v_lshlrev_b32 v{t0}, 5, v{t0}
    v_lshlrev_b32 v{t1}, 3, v{t1}
    v_add3_u32 v{vWr}, v{t2}, v{t0}, v{t1}
    ''')
    for i in range(48): k(f'v_mov_b32 v{acc+i}, 0')
    def reads(n):
        s, ks = divmod(n, 4)
        out = []
        for t in range(3):
            for j in range(2):
                r = Wf[n % 3] + 4*t + 2*j
                out.append(f'ds_read_b64_tr_b16 v[{r}:{r+1}], v{vWr} offset:{(s%4)*12288 + (16*ks+4*j)*192 + t*64}')
        return out
    k(f's_waitcnt vmcnt({21+NEX})')
    k('s_barrier')
    st()
    for r in reads(0) + reads(1): k(r)
    for n in range(40):
        s, ks = divmod(n, 4)
        if ks == 2 and s < 9:
            order = ['s0','s1','s2','s3','ex'] + [f's{i}' for i in range(4, min(s+3, 10))]
            issued = [g for g in order if g in ('s0','s1','s2','s3','ex') or int(g[1:]) <= s + 2]
            idx = issued.index(f's{s+1}')
            rem = sum(NEX if g == 'ex' else 7 for g in issued[idx+1:])
            k(f's_waitcnt vmcnt({rem})')
            k('s_barrier')
            if s >= 1 and s + 3 <= 9: stage_loads(s + 3)
        nxt = reads(n+2) if n + 2 < 40 else []
        k(f's_waitcnt lgkmcnt({6 if n + 1 < 40 else 0})')
        x = X[s%4] + 4*ks
        for t in range(3):
            w = Wf[n % 3] + 4*t; a = acc + 16*t
            k(f'v_mfma_f32_32x32x16_bf16 v[{a}:{a+15}], v[{w}:{w+3}], v[{x}:{x+3}], v[{a}:{a+15}]')
            for _ in range(2):
                if nxt: k(nxt.pop(0))
    st()
    k('s_waitcnt vmcnt(0)')
    for step_ in (8, 4, 2, 1):
        for i in range(step_): k(f'v_add_f32 v{csp+i}, v{csp+i}, v{csp+i+step_}')
    k(f'''
    s_mul_i32 s45, s{sWave}, 96
    s_add_u32 s45, s45, {CSB}
    v_lshlrev_b32 v{t0}, 2, v{vL}
    v_add_u32 v{t0}, s45, v{t0}
    s_mov_b64 exec, 0xffffff
    ds_write_b32 v{t0}, v{csp}
    s_mov_b64 exec, -1
    ''')
    sS, sQ = ps, ps+1
    k(f'''
    v_add_f32 v{ps}, v{ps}, v{ps+2}
    v_add_f32 v{ps+1}, v{ps+1}, v{ps+3}
    v_add_f32 v{ps+4}, v{ps+4}, v{ps+6}
    v_add_f32 v{ps+5}, v{ps+5}, v{ps+7}
    v_add_f32 v{ps}, v{ps}, v{ps+4}
    v_add_f32 v{ps+1}, v{ps+1}, v{ps+5}
    ''')
    cross_half_sum(k, sS, tmp+5); cross_half_sum(k, sQ, tmp+6)
    mu, rr, var = tmp, tmp+1, tmp+2
    nmu2, r2, cC0, cC1, cOne = cst, cst+2, cst+4, cst+6, cst+8
    k(f'''
    v_mul_f32 v{mu}, {hx(f2u(1.0/640))}, v{sS}
    v_mul_f32 v{var}, {hx(f2u(1.0/640))}, v{sQ}
    v_fma_f32 v{var}, -v{mu}, v{mu}, v{var}
    v_max_f32 v{var}, 0, v{var}
    v_add_f32 v{rr}, {hx(f2u(EPS))}, v{var}
    v_rsq_f32 v{rr}, v{rr}
    v_sub_f32 v{nmu2}, 0, v{mu}
    v_sub_f32 v{nmu2+1}, 0, v{mu}
    v_mov_b32 v{r2}, v{rr}
    v_mov_b32 v{r2+1}, v{rr}
    v_mov_b32 v{cC0}, {hx(f2u(-GELU_C0))}
    v_mov_b32 v{cC0+1}, {hx(f2u(-GELU_C0))}
    v_mov_b32 v{cC1}, {hx(f2u(-GELU_C1))}
    v_mov_b32 v{cC1+1}, {hx(f2u(-GELU_C1))}
    v_mov_b32 v{cOne}, 1.0
    v_mov_b32 v{cOne+1}, 1.0
    ''')
    dst = tmp+3
    k(f'''
    s_lshl_b32 s45, s43, 5
    v_add_u32 v{dst}, s45, v{vT}
    v_lshrrev_b32 v{tmp+4}, 4, v{dst}
    s_mov_b32 s46, {NK4*1024}
    v_mul_lo_u32 v{tmp+4}, v{tmp+4}, s46
    v_and_b32 v{dst}, 15, v{dst}
    v_lshlrev_b32 v{dst}, 4, v{dst}
    v_lshlrev_b32 v{tmp+5}, 8, v{vH}
    v_add3_u32 v{dst}, v{dst}, v{tmp+4}, v{tmp+5}
    s_mul_i32 s45, s{sNb}, 3072
    s_add_u32 s45, s45, {A4 + 20*1024}
    v_lshlrev_b32 v{tmp+7}, 4, v{vH}
    v_add_u32 v{tmp+7}, {CSB}, v{tmp+7}
    s_waitcnt lgkmcnt(0)
    s_barrier
    ''')
    csr = X[0]
    for t in range(3):
        for j in range(4):
            r = csr + 4*(4*t + j)
            k(f'ds_read_b128 v[{r}:{r+3}], v{tmp+7} offset:{(32*t+8*j)*4}')
    k('s_waitcnt lgkmcnt(0)')
    g0, g1 = tmp+8, tmp+10
    pk = tmp+24
    for t in range(3):
        for j in range(4):
            a = acc + 16*t + 4*j; c = csr + 4*(4*t + j)
            for p in range(2):
                k(f'v_pk_fma_f32 v[{a+2*p}:{a+2*p+1}], v[{c+2*p}:{c+2*p+1}], v[{nmu2}:{nmu2+1}], v[{a+2*p}:{a+2*p+1}]')
            for p in range(2):
                k(f'v_pk_mul_f32 v[{a+2*p}:{a+2*p+1}], v[{a+2*p}:{a+2*p+1}], v[{r2}:{r2+1}]')
            gelu_pk(k, a, g0, g1, cC0, cC1, cOne)
            gelu_pk(k, a+2, g0+4, g1+4, cC0, cC1, cOne)
            p_ = pk + 2*((4*t+j) & 1)
            k(f'v_cvt_pk_bf16_f32 v{p_}, v{a}, v{a+1}')
            k(f'v_cvt_pk_bf16_f32 v{p_+1}, v{a+2}, v{a+3}')
            k(f'buffer_store_dwordx2 v[{p_}:{p_+1}], v{dst}, s[{WS}:{WS+3}], s45 offen offset:{t*1024 + (j//2)*512 + (j%2)*8}')
    k(f'{Lend}:')
    if stamps:
        Lx = k.label('x')
        k(f's_cmp_ge_u32 s2, 256')
        k(f's_cbranch_scc1 {Lx}')
        k('s_waitcnt vmcnt(0)')
        st()
        st.dump(WS, sWave, tmp)
        k(f'{Lx}:')
    k('s_endpgm')
    return k.finish(), kdesc(name, nv), nv

if __name__ == '__main__':
    t, d, nv = gen_g3()
    print(nv)
```

```python
from common import *

def gen_gk(name, mode, stamps=False):
    k = K(name)
    st = Stamps(k, stamps)
    va = VA(1, 256)
    vL = va.alloc(); vT16 = va.alloc(); vG = va.alloc()
    vXo = va.alloc(4); vWo = va.alloc(5, align=1); vWr = va.alloc()
    acc = va.alloc(80, align=4)
    X = [va.alloc(16, align=4) for _ in range(3)]
    Wf = va.alloc(20, align=4)
    ex = va.alloc(10, align=2)
    e1 = va.alloc(10, align=2)
    stt = va.alloc(2, align=2)
    tmp = va.alloc(12, align=4)
    nv = va.n
    WS, WA, WB, XS, OUT = 8, 12, 16, 24, 28
    sWave, sMt, sNt, sAo, sWo, sLw = 20, 21, 22, 23, 32, 33
    sRotA, sRotB = 34, 35
    if mode == 'g2':
        phases = [dict(abase=HS, nk=20, ks0=0, srd=WA, n=5)]
        kaA, kaB = KA_W2, None
    else:
        phases = [dict(abase=A4, nk=NK4, ks0=0, srd=WA, n=5), dict(abase=A4, nk=NK4, ks0=20, srd=WB, n=12)]
        kaA, kaB = KA_WO, KA_W4
    NKA = phases[0]['nk']
    Lend = k.label('end')
    k(f'''
    s_cmp_ge_u32 s2, 256
    s_cbranch_scc1 {Lend}
    ''')
    st()
    k(f'''
    s_load_dwordx2 s[4:5], s[0:1], {KA_WS}
    s_load_dwordx2 s[6:7], s[0:1], {kaA}
    s_load_dwordx2 s[40:41], s[0:1], {KA_X}
    ''')
    if kaB is not None:
        k(f's_load_dwordx2 s[42:43], s[0:1], {kaB}')
        k(f's_load_dwordx2 s[44:45], s[0:1], {KA_OUT}')
    k(f'''
    s_and_b32 s36, s2, 7
    s_lshr_b32 s37, s2, 3
    s_and_b32 s38, s36, 3
    s_lshl_b32 s38, s38, 3
    s_and_b32 s39, s37, 7
    s_add_u32 s{sMt}, s38, s39
    s_lshr_b32 s38, s36, 2
    s_lshl_b32 s38, s38, 2
    s_lshr_b32 s46, s37, 3
    s_add_u32 s{sNt}, s38, s46
    v_and_b32 v{vL}, 63, v0
    v_lshrrev_b32 v{tmp}, 6, v0
    v_and_b32 v{vT16}, 15, v{vL}
    v_readfirstlane_b32 s{sWave}, v{tmp}
    v_lshrrev_b32 v{vG}, 4, v{vL}
    ''')
    k(f'''
    s_add_u32 s47, s39, s46
    s_mul_i32 s48, s47, 52
    s_lshr_b32 s48, s48, 8
    s_mul_i32 s48, s48, 5
    s_sub_u32 s{sRotA}, s47, s48
    s_mul_i32 s47, s46, 3
    s_add_u32 s47, s47, s39
    s_cmp_ge_u32 s47, 12
    s_cselect_b32 s48, 12, 0
    s_sub_u32 s{sRotB}, s47, s48
    s_waitcnt lgkmcnt(0)
    ''')
    srd(k, WS, 4, 5, WS_USED)
    k(f'''
    s_mul_i32 s47, s{sNt}, 160
    s_add_u32 s6, s6, s47
    s_addc_u32 s7, s7, 0
    s_sub_u32 s48, {640*1280}, s47
    s_mov_b32 s{WA}, s6
    s_and_b32 s{WA+1}, s7, 0xffff
    s_mov_b32 s{WA+2}, s48
    s_mov_b32 s{WA+3}, 0x20000
    ''')
    if kaB is not None:
        k(f'''
        s_add_u32 s42, s42, s47
        s_addc_u32 s43, s43, 0
        s_sub_u32 s48, {1536*1280}, s47
        s_mov_b32 s{WB}, s42
        s_and_b32 s{WB+1}, s43, 0xffff
        s_mov_b32 s{WB+2}, s48
        s_mov_b32 s{WB+3}, 0x20000
        ''')
        srd(k, OUT, 44, 45, 2048*1280)
    srd(k, XS, 40, 41, 2048*1280)
    t0, t1, t2 = tmp, tmp+1, tmp+2
    for a in range(4):
        k(f'''
        s_add_u32 s47, s{sWave}, {a}
        s_and_b32 s47, s47, 3
        s_mul_i32 s47, s47, {NKA*1024}
        v_lshlrev_b32 v{vXo+a}, 4, v{vL}
        v_add_u32 v{vXo+a}, s47, v{vXo+a}
        ''')
    for i in range(5):
        k(f'''
        v_add_u32 v{t0}, {64*i}, v{vL}
        v_mul_u32_u24 v{t1}, 6554, v{t0}
        v_lshrrev_b32 v{t1}, 16, v{t1}
        v_mul_u32_u24 v{t2}, 10, v{t1}
        v_sub_u32 v{t2}, v{t0}, v{t2}
        v_lshlrev_b32 v{t2}, 4, v{t2}
        v_mul_u32_u24 v{t1}, 1280, v{t1}
        v_add_u32 v{vWo+i}, v{t1}, v{t2}
        ''')
    k(f's_mul_i32 s{sLw}, s{sWave}, 15360')
    steps = []
    for p, ph in enumerate(phases):
        for i in range(ph['n']): steps.append((p, i))
    NS = len(steps)
    def offsets(s):
        p, i = steps[s]; ph = phases[p]
        rot = sRotA if p == 0 else sRotB
        n = ph['n']
        k(f'''
        s_add_u32 s47, s{rot}, {i}
        s_cmp_ge_u32 s47, {n}
        s_cselect_b32 s48, {n}, 0
        s_sub_u32 s47, s47, s48
        s_lshl_b32 s47, s47, 2
        s_add_u32 s47, s47, s{sWave}
        s_mul_i32 s{sWo}, s47, {32*1280}
        s_mul_i32 s48, s{sMt}, {4*ph['nk']}
        s_add_u32 s47, s47, s48
        s_lshl_b32 s47, s47, 10
        s_add_u32 s{sAo}, s47, {ph['abase'] + ph['ks0']*1024}
        ''')
    def dma(s):
        ph = phases[steps[s][0]]
        for i in range(5):
            k(f's_add_u32 m0, s{sLw}, {(s%3)*5120 + i*1024}')
            k(f'buffer_load_dwordx4 v{vWo+i}, s[{ph["srd"]}:{ph["srd"]+3}], s{sWo} offen lds')
    def xload(s):
        for a in range(4):
            r = X[s%3] + 4*a
            k(f'buffer_load_dwordx4 v[{r}:{r+3}], v{vXo+a}, s[{WS}:{WS+3}], s{sAo} offen')
    for s in range(3):
        offsets(s); dma(s); xload(s)
    st()
    k(f'''
    v_lshrrev_b32 v{t0}, 1, v{vG}
    v_lshlrev_b32 v{t0}, 4, v{t0}
    v_and_b32 v{t1}, 1, v{vG}
    v_lshl_add_u32 v{t0}, v{t1}, 2, v{t0}
    v_lshrrev_b32 v{t1}, 2, v{vT16}
    v_add_u32 v{t0}, v{t0}, v{t1}
    v_mul_u32_u24 v{t0}, 160, v{t0}
    v_and_b32 v{t1}, 3, v{vT16}
    v_lshl_add_u32 v{t0}, v{t1}, 3, v{t0}
    v_add_u32 v{vWr}, s{sLw}, v{t0}
    ''')
    for i in range(80): k(f'v_mov_b32 v{acc+i}, 0')
    vtok = tmp+4
    nextra = 0
    k(f'''
    s_lshl_b32 s47, s{sMt}, 6
    s_lshl_b32 s48, s{sWave}, 4
    s_add_u32 s47, s47, s48
    v_add_u32 v{vtok}, s47, v{vT16}
    v_mul_u32_u24 v{t0}, 1280, v{vtok}
    v_lshl_add_u32 v{t0}, v{vG}, 3, v{t0}
    s_mul_i32 s49, s{sNt}, 160
    ''')
    for ft in range(5):
        k(f'buffer_load_dwordx2 v[{ex+2*ft}:{ex+2*ft+1}], v{t0}, s[{XS}:{XS+3}], s49 offen offset:{ft*32}')
    nextra += 5
    vx1 = tmp+5
    k(f'''
    v_lshrrev_b32 v{t0}, 5, v{vtok}
    v_mul_u32_u24 v{t0}, {40*1024}, v{t0}
    v_and_b32 v{t1}, 31, v{vtok}
    v_lshrrev_b32 v{t2}, 1, v{vG}
    v_lshl_add_u32 v{t1}, v{t2}, 5, v{t1}
    v_lshl_add_u32 v{t0}, v{t1}, 4, v{t0}
    v_and_b32 v{t1}, 1, v{vG}
    v_lshl_add_u32 v{vx1}, v{t1}, 3, v{t0}
    s_mul_i32 s50, s{sNt}, 5120
    s_add_u32 s50, s50, {X1F}
    s_add_u32 s51, s50, 4096
    ''')
    if mode == 'g2':
        k(f'''
        v_lshlrev_b32 v{t0}, 3, v{vtok}
        s_mov_b32 s52, {ST1}
        buffer_load_dwordx2 v[{stt}:{stt+1}], v{t0}, s[{WS}:{WS+3}], s52 offen
        ''')
        nextra += 1
    else:
        for ft in range(5):
            so, off = (50, ft*1024) if ft < 4 else (51, 0)
            k(f'buffer_load_dwordx2 v[{e1+2*ft}:{e1+2*ft+1}], v{vx1}, s[{WS}:{WS+3}], s{so} offen offset:{off}')
        nextra += 5
    for s in range(NS):
        rem = 9 * (min(s + 2, NS - 1) - s)
        if s < 3: rem += nextra
        k(f's_waitcnt vmcnt({min(rem, 63)})')
        for ft in range(5):
            for j in range(2):
                r = Wf + 4*ft + 2*j
                k(f'ds_read_b64_tr_b16 v[{r}:{r+1}], v{vWr} offset:{(s%3)*5120 + j*1280 + ft*32}')
        if s + 3 < NS: offsets(s + 3)
        k('s_waitcnt lgkmcnt(0)')
        if s + 3 < NS: dma(s + 3)
        for a in range(4):
            for ft in range(5):
                d = acc + 4*(5*a + ft); x = X[s%3] + 4*a; w = Wf + 4*ft
                k(f'v_mfma_f32_16x16x32_bf16 v[{d}:{d+3}], v[{w}:{w+3}], v[{x}:{x+3}], v[{d}:{d+3}]')
        if s + 3 < NS: xload(s + 3)
    st()
    k('s_barrier')
    wa = tmp+6
    for a in range(1, 4):
        k(f'''
        s_add_u32 s47, s{sWave}, {a}
        s_and_b32 s47, s47, 3
        s_mul_i32 s47, s47, 15360
        s_add_u32 s47, s47, {(a-1)*5120}
        v_lshlrev_b32 v{wa}, 4, v{vL}
        v_add_u32 v{wa}, s47, v{wa}
        ''')
        for ft in range(5):
            d = acc + 4*(5*a + ft)
            k(f'ds_write_b128 v{wa}, v[{d}:{d+3}] offset:{ft*1024}')
    k(f'''
    v_lshlrev_b32 v{wa}, 4, v{vL}
    v_add_u32 v{wa}, s{sLw}, v{wa}
    s_waitcnt lgkmcnt(0)
    s_barrier
    ''')
    R = acc + 20
    for sl in range(3):
        for ft in range(5):
            d = R + 20*sl + 4*ft
            k(f'ds_read_b128 v[{d}:{d+3}], v{wa} offset:{sl*5120 + ft*1024}')
    k('s_waitcnt vmcnt(0) lgkmcnt(0)')
    for i in range(20):
        k(f'v_add_f32 v{R+i}, v{R+i}, v{R+20+i}')
        k(f'v_add_f32 v{acc+i}, v{acc+i}, v{R+40+i}')
    for i in range(20): k(f'v_add_f32 v{acc+i}, v{acc+i}, v{R+i}')
    u = X[0]
    def unpack(src, dst):
        k(f'v_lshlrev_b32 v{dst}, 16, v{src}')
        k(f'v_and_b32 v{dst+1}, 0xffff0000, v{src}')
        k(f'v_lshlrev_b32 v{dst+2}, 16, v{src+1}')
        k(f'v_and_b32 v{dst+3}, 0xffff0000, v{src+1}')
    if mode == 'g2':
        sS, sQ = X[1], X[1]+1
        nmr = X[1]+2
        k(f'v_mul_f32 v{nmr}, v{stt}, v{stt+1}')
        k(f'v_mov_b32 v{sS}, 0'); k(f'v_mov_b32 v{sQ}, 0')
        for ft in range(5):
            unpack(ex+2*ft, u)
            for i in range(4):
                a_ = acc + 4*ft + i
                k(f'v_fma_f32 v{u+i}, v{u+i}, v{stt+1}, -v{nmr}')
                k(f'v_add_f32 v{a_}, v{a_}, v{u+i}')
            pk = X[2] + 2*ft
            k(f'v_cvt_pk_bf16_f32 v{pk}, v{acc+4*ft}, v{acc+4*ft+1}')
            k(f'v_cvt_pk_bf16_f32 v{pk+1}, v{acc+4*ft+2}, v{acc+4*ft+3}')
            so, off = (50, ft*1024) if ft < 4 else (51, 0)
            k(f'buffer_store_dwordx2 v[{pk}:{pk+1}], v{vx1}, s[{WS}:{WS+3}], s{so} offen offset:{off}')
            unpack(pk, u)
            for i in range(4):
                k(f'v_add_f32 v{sS}, v{sS}, v{u+i}')
                k(f'v_fmac_f32 v{sQ}, v{u+i}, v{u+i}')
        for r in (sS, sQ):
            k(f'v_mov_b32 v{u}, v{r}')
            k(f'v_permlane16_swap_b32 v{r}, v{u}')
            k(f'v_add_f32 v{r}, v{r}, v{u}')
            k(f'v_mov_b32 v{u}, v{r}')
            k(f'v_permlane32_swap_b32 v{r}, v{u}')
            k(f'v_add_f32 v{r}, v{r}, v{u}')
        k(f'''
        v_lshlrev_b32 v{u}, 6, v{vtok}
        s_lshl_b32 s47, s{sNt}, 3
        s_add_u32 s47, s47, {PS}
        s_mov_b64 exec, 0xffff
        buffer_store_dwordx2 v[{sS}:{sS+1}], v{u}, s[{WS}:{WS+3}], s47 offen
        ''')
    else:
        u2 = X[0] + 4
        vout = X[1]
        k(f'''
        v_mul_u32_u24 v{vout}, 1280, v{vtok}
        v_lshl_add_u32 v{vout}, v{vG}, 3, v{vout}
        ''')
        for ft in range(5):
            unpack(ex+2*ft, u); unpack(e1+2*ft, u2)
            for i in range(4):
                a_ = acc + 4*ft + i
                k(f'v_add_f32 v{u+i}, v{u+i}, v{u2+i}')
                k(f'v_add_f32 v{a_}, v{a_}, v{u+i}')
            pk = X[2] + 2*ft
            k(f'v_cvt_pk_bf16_f32 v{pk}, v{acc+4*ft}, v{acc+4*ft+1}')
            k(f'v_cvt_pk_bf16_f32 v{pk+1}, v{acc+4*ft+2}, v{acc+4*ft+3}')
            k(f'buffer_store_dwordx2 v[{pk}:{pk+1}], v{vout}, s[{OUT}:{OUT+3}], s49 offen offset:{ft*32}')
    k(f'{Lend}:')
    if stamps:
        Lx = k.label('x')
        k(f's_cmp_ge_u32 s2, 256')
        k(f's_cbranch_scc1 {Lx}')
        k('s_mov_b64 exec, -1')
        k('s_waitcnt vmcnt(0)')
        st()
        st.dump(WS, sWave, tmp)
        k(f'{Lx}:')
    k('s_endpgm')
    return k.finish(), kdesc(name, nv), nv

if __name__ == '__main__':
    for m in ('g2', 'g4'):
        t, d, nv = gen_gk(m + '_kernel', m)
        print(m, nv)
```

```python
import sys, importlib
sys.path.insert(0, 'gen')
from common import *
HEADER = open('parallel_sum__mha_block__mixer_s_mlp__prompt.s.ref').read().split('; Override launch geometry')[0]
def build(launches, path):
    s = HEADER
    for (name, txt, desc, grid, block, lds) in launches:
        s += f'; @launch kernel={name} grid=({grid},1,1) block=({block},1,1) lds={lds}\n'
    s += '.amdgcn_target "amdgcn-amd-amdhsa--gfx950"\n.text\n'
    seen = set()
    for (name, txt, desc, grid, block, lds) in launches:
        if name in seen: continue
        seen.add(name)
        s += txt + desc
    open(path, 'w').write(s)
    return s
if __name__ == '__main__':
    import g1
    L = []
    t, d, nv = g1.gen_g1(stamps=('stamps' in sys.argv)); L.append(('g1_kernel', t, d, 256, 256, 149504))
    import att
    t, d, nv = att.gen_att(stamps=('stamps_att' in sys.argv), force_slow=('slow' in sys.argv)); L.append(('att_kernel', t, d, 256, 256, 49152))
    import gk, g3
    t, d, nv = gk.gen_gk('g2_kernel', 'g2', stamps=('stamps_g2' in sys.argv)); L.append(('g2_kernel', t, d, 256, 256, 61440))
    t, d, nv = g3.gen_g3(stamps=('stamps_g3' in sys.argv)); L.append(('g3_kernel', t, d, 256, 256, 49152+512))
    t, d, nv = gk.gen_gk('g4_kernel', 'g4', stamps=('stamps_g4' in sys.argv)); L.append(('g4_kernel', t, d, 256, 256, 61440))
    out = sys.argv[1] if len(sys.argv) > 1 else 'cur.s'
    build(L, out)
    print('written', out)
```

```python
import re

TRANS = ('v_exp_f32','v_log_f32','v_rcp_f32','v_rsq_f32','v_sqrt_f32','v_sin_f32','v_cos_f32','v_exp_f16','v_rcp_f16')

def parse_regs(tok):
    tok = tok.strip()
    neg = tok.lstrip('-')
    if neg.startswith('abs(') or neg.startswith('|'):
        neg = neg.replace('abs(','').replace(')','').replace('|','')
    m = re.fullmatch(r'([vsa])(\d+)', neg)
    if m: return {(m.group(1), int(m.group(2)))}
    m = re.fullmatch(r'([vsa])\[(\d+):(\d+)\]', neg)
    if m: return {(m.group(1), i) for i in range(int(m.group(2)), int(m.group(3))+1)}
    if neg == 'vcc': return {('vcc',0)}
    if neg in ('vcc_lo','vcc_hi'): return {('vcc',0)}
    if neg in ('exec','exec_lo','exec_hi'): return {('exec',0)}
    if neg == 'm0': return {('m0',0)}
    if neg == 'scc': return {('scc',0)}
    return set()

class Ins:
    __slots__ = ('text','op','ops','cls','dst','src','passes','mods','srcC','srcAB','is_label','target')
    def __init__(self, text):
        self.text = text
        t = text.split(';')[0].strip()
        self.is_label = t.endswith(':')
        self.target = None
        self.dst = set(); self.src = set(); self.srcC = set(); self.srcAB = set()
        self.passes = 0; self.mods = ''
        if self.is_label or not t or t.startswith('.'):
            self.op = ''; self.cls = 'label' if self.is_label else 'dir'; self.ops = []
            return
        parts = t.split(None, 1)
        self.op = parts[0]
        rest = parts[1] if len(parts) > 1 else ''
        ops = []; cur = ''; depth = 0
        for ch in rest:
            if ch in '[(': depth += 1
            if ch in '])': depth -= 1
            if ch == ',' and depth == 0:
                ops.append(cur.strip()); cur = ''
            else: cur += ch
        if cur.strip(): ops.append(cur.strip())
        if ops:
            lp = ops[-1].split()
            if len(lp) > 1:
                ops[-1] = lp[0]; self.mods = ' '.join(lp[1:])
        self.ops = ops
        op = self.op
        R = [parse_regs(o) for o in ops]
        if op.startswith('v_mfma'):
            self.cls = 'mfma'
            self.dst = R[0]; self.srcAB = R[1] | R[2]; self.srcC = R[3]; self.src = self.srcAB | self.srcC
            if '32x32x16' in op or '32x32x8' in op: self.passes = 8
            elif '16x16x32' in op: self.passes = 4
            elif '4x4x4' in op: self.passes = 2
            else: raise ValueError('mfma passes unknown ' + op)
        elif op.startswith('v_'):
            self.cls = 'valu'
            if op.startswith('v_cmp'):
                self.dst = R[0]; self.src = set().union(*R[1:])
                if op.startswith('v_cmpx'): self.dst |= {('exec',0)}
            elif op.startswith('v_readfirstlane') or op.startswith('v_readlane'):
                self.dst = R[0]; self.src = set().union(*R[1:])
            elif op.startswith('v_permlane'):
                self.dst = R[0] | R[1]; self.src = R[0] | R[1]
            elif op in ('v_add_co_u32','v_sub_co_u32','v_addc_co_u32','v_subb_co_u32','v_subrev_co_u32'):
                self.dst = R[0] | R[1]; self.src = set().union(*R[2:])
            else:
                self.dst = R[0]; self.src = set().union(*R[1:]) if len(R) > 1 else set()
                if op.startswith('v_fmac') or op.startswith('v_dot2c') or op.startswith('v_pk_fmac') or 'UNUSED_PRESERVE' in self.mods or op.startswith('v_writelane'):
                    self.src |= R[0]
                if op.startswith('v_cndmask') and len(ops) == 3: self.src |= {('vcc',0)}
        elif op.startswith('buffer_') or op.startswith('global_'):
            self.cls = 'vmem'
            if op.startswith('buffer_wbl2') or op.startswith('buffer_inv'):
                pass
            elif 'lds' in self.mods.split() or op.startswith('global_load_lds'):
                self.src = set().union(*R) | {('m0',0)}
            elif '_load' in op:
                self.dst = R[0]; self.src = set().union(*R[1:])
            elif 'atomic' in op:
                self.src = set().union(*R)
                if 'sc0' in self.mods.split():
                    self.dst = R[0] if op.startswith('global') else R[0]
            else:
                self.src = set().union(*R)
        elif op.startswith('ds_'):
            self.cls = 'ds'
            if op.startswith('ds_read') or op.startswith('ds_bpermute') or op.startswith('ds_permute') or op.startswith('ds_swizzle'):
                self.dst = R[0]; self.src = set().union(*R[1:])
            else:
                self.src = set().union(*R)
        elif op.startswith('s_'):
            self.cls = 'salu'
            if op in ('s_waitcnt','s_barrier','s_nop','s_endpgm','s_setprio','s_sleep','s_branch') or op.startswith('s_cbranch'):
                if op == 's_branch' or op.startswith('s_cbranch'): self.target = ops[0]
                if op == 's_cbranch_vccz' or op == 's_cbranch_vccnz': self.src = {('vcc',0)}
            elif op == 's_getpc_b64':
                self.dst = R[0]
            elif op.startswith('s_cmp') or op.startswith('s_bitcmp'):
                self.src = set().union(*R)
            else:
                self.dst = R[0] if R else set()
                self.src = set().union(*R[1:]) if len(R) > 1 else set()
                if 'saveexec' in op: self.dst |= {('exec',0)}
        else:
            raise ValueError('unknown op: ' + text)
    def nstates(self):
        if self.cls in ('label','dir'): return 0
        if self.op == 's_nop': return int(self.ops[0], 0) + 1
        return 1

def vregs(s): return {r for r in s if r[0] in 'va'}
def sregs(s): return {r for r in s if r[0] == 's' or r[0] == 'vcc'}

def need(p, c):
    n = 0
    if p.cls == 'valu':
        pv = vregs(p.dst); ps = sregs(p.dst)
        if pv:
            if c.cls == 'mfma' and (pv & c.src): n = max(n, 2)
            if c.cls == 'valu':
                if c.op.startswith('v_permlane') and (pv & c.src): n = max(n, 2)
                if ('dpp' in c.op or 'row_' in c.mods or 'quad_perm' in c.mods) and (pv & c.src): n = max(n, 2)
                if (c.op.startswith('v_readfirstlane') or c.op.startswith('v_readlane')) and (pv & c.src): n = max(n, 1)
                if p.op in TRANS and c.op not in TRANS and (pv & c.src): n = max(n, 1)
                if p.op in TRANS and c.op in TRANS and (pv & c.src): n = max(n, 1)
                if ('sdwa' in p.op or 'op_sel' in p.mods) and (pv & (c.src | c.dst)): n = max(n, 1)
                if p.op.startswith('v_dot2'):
                    if pv & (c.src | c.dst):
                        same = (c.op == p.op)
                        if same:
                            ab = set()
                            for o in c.ops[1:3]: ab |= parse_regs(o)
                            if pv & ab: n = max(n, 3)
                        else: n = max(n, 3)
            if c.cls in ('vmem','ds','mfma') and p.op.startswith('v_dot2') and (pv & c.src): n = max(n, 3)
        if ps:
            if c.cls == 'vmem' and (ps & c.src): n = max(n, 5)
            if c.cls == 'valu' and (ps & c.src):
                n = max(n, 4 if (c.op.startswith('v_readlane') or c.op.startswith('v_writelane')) else 2)
            if c.cls == 'salu' and (ps & c.src): n = max(n, 1)
        if ('exec',0) in p.dst:
            if c.cls == 'mfma': n = max(n, 4)
            if c.cls == 'valu' and (c.op.startswith('v_readfirstlane') or c.op.startswith('v_readlane') or c.op.startswith('v_permlane')): n = max(n, 4)
            if c.cls == 'valu' and ('row_' in c.mods or 'quad_perm' in c.mods): n = max(n, 5)
    if p.cls == 'mfma':
        D = p.dst
        if c.cls == 'mfma':
            if D & c.srcC:
                if c.srcC == D and c.passes == p.passes: n = max(n, 2 if p.passes == 2 else 0)
                else: n = max(n, {2:4, 4:6, 8:10}[p.passes])
            if D & c.srcAB: n = max(n, {2:5, 4:8, 8:12}[p.passes])
            if (D & c.dst) and not (D & c.srcC): n = max(n, {2:4, 4:6, 8:10}[p.passes])
        elif c.cls == 'valu':
            if D & (c.src | c.dst): n = max(n, {2:5, 4:8, 8:12}[p.passes])
            if p.srcC & c.dst: n = max(n, {2:1, 4:3, 8:7}[p.passes])
        elif c.cls in ('vmem','ds'):
            if D & (c.src | c.dst): n = max(n, {2:5, 4:8, 8:12}[p.passes])
    if p.cls == 'vmem' and ('_store' in p.op) and ('x3' in p.op or 'x4' in p.op):
        data = vregs(parse_regs(p.ops[0]) if p.op.startswith('buffer') else parse_regs(p.ops[1]))
        if c.cls == 'valu' and (data & c.dst): n = max(n, 2)
        elif c.cls in ('mfma','vmem','ds') and (data & c.dst): n = max(n, 2)
    if p.cls == 'ds' and p.op in ('ds_write_b128','ds_write_b96'):
        pass
    if p.cls == 'salu':
        if ('m0',0) in p.dst and (('m0',0) in c.src): n = max(n, 1)
        if ('exec',0) in p.dst and c.cls == 'mfma': n = max(n, 1)
    return n

WINDOW = 24
def fix_linear(ins):
    out = []
    for c in ins:
        if c.cls in ('label','dir'):
            out.append(c); continue
        dist = 0; req = 0
        for p in reversed(out):
            if p.cls in ('label','dir'): continue
            r = need(p, c) - dist
            if r > req: req = r
            dist += p.nstates()
            if dist >= WINDOW: break
        while req > 0:
            k = min(req, 16)
            out.append(Ins(f's_nop {k-1}'))
            req -= k
        out.append(c)
    return out

def fix_branches(ins):
    labels = {i.text.split(':')[0].strip(): n for n, i in enumerate(ins) if i.is_label}
    changed = True
    while changed:
        changed = False
        labels = {i.text.split(':')[0].strip(): n for n, i in enumerate(ins) if i.is_label}
        for n, b in enumerate(ins):
            if b.target is None or b.target not in labels: continue
            tail = [i for i in ins[max(0, n-40):n+1] if i.cls not in ('label','dir')]
            head = [i for i in ins[labels[b.target]:labels[b.target]+40] if i.cls not in ('label','dir')]
            req = 0
            d_head = 0
            for c in head:
                if d_head >= WINDOW: break
                d = d_head
                for p in reversed(tail):
                    r = need(p, c) - d
                    if r > req: req = r
                    d += p.nstates()
                    if d >= WINDOW: break
                d_head += c.nstates()
                if c.op in ('s_branch','s_endpgm'): break
            if req > 0:
                ins.insert(n, Ins(f's_nop {min(req,16)-1}'))
                changed = True
                break
    return ins

class K:
    def __init__(self, name):
        self.name = name; self.l = []; self._lab = 0
    def __call__(self, s):
        for line in s.split('\n'):
            line = line.strip()
            if line and not line.startswith(';'): self.l.append(line)
    def label(self, base='L'):
        self._lab += 1
        return f'{self.name}_{base}{self._lab}'
    def finish(self):
        ins = [Ins(x) for x in self.l]
        ins = fix_linear(ins)
        ins = fix_branches(ins)
        ins = fix_linear(ins)
        txt = f'.globl {self.name}\n.p2align 8\n.type {self.name},@function\n{self.name}:\n'
        for i in ins:
            txt += (i.text if i.is_label else '  ' + i.text) + '\n'
        return txt

def kdesc(name, nvgpr, nsgpr=102, accum=None):
    acc = accum if accum is not None else min(256, (nvgpr + 3)//4*4)
    return f'''.section .rodata,"a"
.p2align 6
.amdhsa_kernel {name}
  .amdhsa_next_free_vgpr {nvgpr}
  .amdhsa_next_free_sgpr {nsgpr}
  .amdhsa_accum_offset {acc}
  .amdhsa_group_segment_fixed_size 0
  .amdhsa_kernarg_size 88
  .amdhsa_user_sgpr_count 2
  .amdhsa_user_sgpr_kernarg_segment_ptr 1
  .amdhsa_system_sgpr_workgroup_id_x 1
.end_amdhsa_kernel
.text
'''

class VA:
    def __init__(self, start=1, limit=256):
        self.n = start; self.limit = limit; self.names = {}
    def alloc(self, cnt=1, align=1, name=None):
        if cnt >= 2 and align < 2: align = 2
        self.n = (self.n + align - 1)//align*align
        r = self.n; self.n += cnt
        assert self.n <= self.limit, f'out of vgprs allocating {name} ({self.n})'
        if name: self.names[name] = (r, cnt)
        return r
def vr(base, cnt=1):
    return f'v{base}' if cnt == 1 else f'v[{base}:{base+cnt-1}]'
def sr(base, cnt=1):
    return f's{base}' if cnt == 1 else f's[{base}:{base+cnt-1}]'
```

```python
from common import *

THR = 48.0
def body_att(k, st=None, force_slow=False, dbg=()):
    st = st or (lambda: None)
    va = VA(1, 256)
    vL = va.alloc(); vT = va.alloc(); vH = va.alloc()
    vK1 = va.alloc(); vK2 = va.alloc(); vV = va.alloc()
    tmp = va.alloc(6, align=2)
    Q1 = va.alloc(32, align=4)
    Q2 = va.alloc(18, align=2)
    O = va.alloc(100, align=4)
    Sb = [va.alloc(16, align=4) for _ in range(2)]
    P = [va.alloc(8, align=4) for _ in range(2)]
    K1 = [va.alloc(4, align=4) for _ in range(2)]
    K2 = [va.alloc(4, align=4) for _ in range(2)]
    V = [va.alloc(8, align=4) for _ in range(2)]
    nv = va.n
    WS = 8
    sWave, sHead, sQc, sKo, sVo, sQo = 20, 21, 22, 23, 24, 25
    sLo, sVm, sHi = 26, 28, 30
    sCnt = 32
    st()
    k(f'''
    s_load_dwordx2 s[4:5], s[0:1], {KA_WS}
    s_and_b32 s36, s2, 7
    s_lshr_b32 s37, s2, 3
    s_lshl_b32 s{sHead}, s36, 2
    s_lshr_b32 s38, s37, 3
    s_add_u32 s{sHead}, s{sHead}, s38
    s_and_b32 s{sQc}, s37, 7
    v_and_b32 v{vL}, 63, v0
    v_lshrrev_b32 v{tmp}, 6, v0
    v_and_b32 v{vT}, 31, v{vL}
    v_readfirstlane_b32 s{sWave}, v{tmp}
    v_lshrrev_b32 v{vH}, 5, v{vL}
    s_mov_b32 s{sLo}, -1
    s_mov_b32 s{sLo+1}, 0
    s_mov_b32 s{sHi}, 0
    s_mov_b32 s{sHi+1}, -1
    s_mov_b32 s{sVm}, 0xfffff
    s_mov_b32 s{sVm+1}, 0xfffff
    v_lshlrev_b32 v{vK1}, 4, v{vL}
    v_lshlrev_b32 v{vK2}, 4, v{vT}
    v_add_u32 v{vK2}, 1024, v{vK2}
    v_mul_u32_u24 v{vV}, 320, v{vH}
    v_lshl_add_u32 v{vV}, v{vT}, 4, v{vV}
    s_waitcnt lgkmcnt(0)
    ''')
    srd(k, WS, 4, 5, WS_USED)
    k(f'''
    s_mul_i32 s40, s{sHead}, {QK_HEAD}
    s_mul_i32 s41, s{sQc}, {8*1536}
    s_add_u32 s{sQo}, s40, s41
    s_add_u32 s{sQo}, s{sQo}, {QF}
    s_mul_i32 s41, s{sWave}, {16*1536}
    s_add_u32 s{sKo}, s40, s41
    s_add_u32 s{sKo}, s{sKo}, {KF}
    s_mul_i32 s40, s{sHead}, {V_HEAD}
    s_mul_i32 s41, s{sWave}, {16*1280}
    s_add_u32 s{sVo}, s40, s41
    s_add_u32 s{sVo}, s{sVo}, {VF}
    ''')
    def kv_load(b, first=False):
        if 'noload' in dbg and not first: return
        if 'lprio' in dbg: k('s_setprio 3')
        k(f'buffer_load_dwordx4 v[{K1[b]}:{K1[b]+3}], v{vK1}, s[{WS}:{WS+3}], s{sKo} offen')
        k(f's_mov_b64 exec, s[{sLo}:{sLo+1}]')
        k(f'buffer_load_dwordx2 v[{K2[b]}:{K2[b]+1}], v{vK2}, s[{WS}:{WS+3}], s{sKo} offen')
        k(f's_mov_b64 exec, s[{sVm}:{sVm+1}]')
        k(f'buffer_load_dwordx4 v[{V[b]}:{V[b]+3}], v{vV}, s[{WS}:{WS+3}], s{sVo} offen')
        k(f'buffer_load_dwordx4 v[{V[b]+4}:{V[b]+7}], v{vV}, s[{WS}:{WS+3}], s{sVo} offen offset:640')
        k(f's_mov_b64 exec, -1')
        if 'lprio' in dbg: k('s_setprio 0')
        k(f's_add_u32 s{sKo}, s{sKo}, 1536')
        k(f's_add_u32 s{sVo}, s{sVo}, 1280')
    k(f'''
    v_cmp_eq_u32 vcc, 20, v{vT}
    v_mov_b32 v{tmp}, 0x3f803f80
    ''')
    k(f'v_cndmask_b32 v{tmp+1}, 0, v{tmp}, vcc')
    for b in range(2):
        for i in range(8): k(f'v_mov_b32 v{V[b]+i}, v{tmp+1}')
    k(f'v_cmp_eq_u32 vcc, 1, v{vH}')
    k(f'v_cndmask_b32 v{tmp+1}, 0, v{tmp}, vcc')
    for b in range(2):
        k(f'v_mov_b32 v{K2[b]}, v{tmp+1}')
        for i in range(1, 4): k(f'v_mov_b32 v{K2[b]+i}, 0')
    for i in range(18): k(f'v_mov_b32 v{Q2+i}, 0')
    for j in range(8):
        k(f's_add_u32 s42, s{sQo}, {j*1536}')
        k(f'buffer_load_dwordx4 v[{Q1+4*j}:{Q1+4*j+3}], v{vK1}, s[{WS}:{WS+3}], s42 offen')
        k(f's_mov_b64 exec, s[{sLo}:{sLo+1}]')
        k(f'buffer_load_dwordx2 v[{Q2+2*j}:{Q2+2*j+1}], v{vK2}, s[{WS}:{WS+3}], s42 offen')
        k(f's_mov_b64 exec, -1')
    km = Sb[0]
    k(f'''
    s_lshl_b32 s42, s{sHead}, 8
    s_add_u32 s42, s42, {KMAX}
    v_lshlrev_b32 v{tmp}, 2, v{vL}
    buffer_load_dword v{km}, v{tmp}, s[{WS}:{WS+3}], s42 offen
    ''')
    kv_load(0, True); kv_load(1, True)
    st()
    for i in range(100): k(f'v_mov_b32 v{O+i}, 0')
    k('s_waitcnt vmcnt(8)')
    for mod in ('quad_perm:[1,0,3,2]', 'quad_perm:[2,3,0,1]', 'row_half_mirror', 'row_mirror'):
        k(f'v_max_f32_dpp v{km}, v{km}, v{km} {mod} row_mask:0xf bank_mask:0xf')
    k(f'''
    v_mov_b32 v{km+1}, v{km}
    v_permlane16_swap_b32 v{km}, v{km+1}
    v_max_f32 v{km}, v{km}, v{km+1}
    v_mov_b32 v{km+1}, v{km}
    v_permlane32_swap_b32 v{km}, v{km+1}
    v_max_f32 v{km}, v{km}, v{km+1}
    ''')
    U = Sb[1]
    for j in range(8):
        u = U + j
        k(f'v_mov_b32 v{u}, 0')
        for i in range(4): k(f'v_dot2_f32_bf16 v{u}, v{Q1+4*j+i}, v{Q1+4*j+i}, v{u}')
        for i in range(2): k(f'v_dot2_f32_bf16 v{u}, v{Q2+2*j+i}, v{Q2+2*j+i}, v{u}')
    for j in range(8): cross_half_sum(k, U+j, Sb[0]+4+(j&3))
    for j in range(8):
        k(f'v_mul_f32 v{U+j}, v{U+j}, v{km}')
        k(f'v_sqrt_f32 v{U+j}, v{U+j}')
        k(f'v_mul_f32 v{U+j}, {hx(f2u(1.015625))}, v{U+j}')
    mx = Sb[0]+2
    k(f'v_max3_f32 v{mx}, v{U}, v{U+1}, v{U+2}')
    k(f'v_max3_f32 v{mx}, v{mx}, v{U+3}, v{U+4}')
    k(f'v_max3_f32 v{mx}, v{mx}, v{U+5}, v{U+6}')
    k(f'v_max_f32 v{mx}, v{mx}, v{U+7}')
    Lfast = k.label('fast')
    k(f'v_mov_b32 v{Sb[0]+3}, {hx(f2u(THR))}')
    k(f'v_cmp_nle_f32 vcc, v{mx}, v{Sb[0]+3}')
    if force_slow:
        k('s_mov_b64 vcc, -1')
    k(f's_cbranch_vccz {Lfast}')
    M = U
    k('s_waitcnt vmcnt(0)')
    for j in range(8): k(f'v_mov_b32 v{M+j}, {hx(0xff800000)}')
    sK2o = 33
    k(f's_sub_u32 s{sK2o}, s{sKo}, {2*1536}')
    k(f's_mov_b32 s{sCnt}, 16')
    Lsl = k.label('slow')
    T1, T2 = P[0], P[1]
    Sx = Sb[0]
    k(f'''
    v_mov_b32 v{T2}, 0
    v_mov_b32 v{T2+1}, 0
    v_mov_b32 v{T2+2}, 0
    v_mov_b32 v{T2+3}, 0
    {Lsl}:
    buffer_load_dwordx4 v[{T1}:{T1+3}], v{vK1}, s[{WS}:{WS+3}], s{sK2o} offen
    s_mov_b64 exec, s[{sLo}:{sLo+1}]
    buffer_load_dwordx2 v[{T2}:{T2+1}], v{vK2}, s[{WS}:{WS+3}], s{sK2o} offen
    s_mov_b64 exec, -1
    s_add_u32 s{sK2o}, s{sK2o}, 1536
    s_waitcnt vmcnt(0)
    ''')
    for j in range(8):
        k(f'v_mfma_f32_32x32x16_bf16 v[{Sx}:{Sx+15}], v[{T1}:{T1+3}], v[{Q1+4*j}:{Q1+4*j+3}], 0')
        k(f'v_mfma_f32_32x32x16_bf16 v[{Sx}:{Sx+15}], v[{T2}:{T2+3}], v[{Q2+2*j}:{Q2+2*j+3}], v[{Sx}:{Sx+15}]')
        for i in range(8):
            k(f'v_max3_f32 v{M+j}, v{M+j}, v{Sx+2*i}, v{Sx+2*i+1}')
    k(f'''
    s_sub_u32 s{sCnt}, s{sCnt}, 1
    s_cmp_lg_u32 s{sCnt}, 0
    s_cbranch_scc1 {Lsl}
    ''')
    for j in range(8):
        k(f'v_mov_b32 v{Sx+j}, v{M+j}')
        k(f'v_permlane32_swap_b32 v{M+j}, v{Sx+j}')
        k(f'v_max_f32 v{M+j}, v{M+j}, v{Sx+j}')
    k(f'''
    v_lshlrev_b32 v{tmp}, 2, v{vT}
    s_lshl_b32 s40, s{sWave}, 10
    v_add_u32 v{tmp+1}, s40, v{tmp}
    ''')
    for j in range(8): k(f'ds_write_b32 v{tmp+1}, v{M+j} offset:{j*128}')
    k('s_waitcnt lgkmcnt(0)')
    k('s_barrier')
    for w in range(4):
        for j in range(8): k(f'ds_read_b32 v{Sx+j}, v{tmp} offset:{w*1024 + j*128}')
        k('s_waitcnt lgkmcnt(0)')
        for j in range(8): k(f'v_max_f32 v{M+j}, v{M+j}, v{Sx+j}')
    k('s_barrier')
    k(f'{Lfast}:')
    k(f's_mov_b64 exec, s[{sHi}:{sHi+1}]')
    for j in range(8):
        a, b_ = Sb[0], Sb[0]+1
        k(f'v_sub_f32 v{a}, 0, v{U+j}')
        k(f'v_and_b32 v{b_}, 0xffff0000, v{a}')
        k(f'v_sub_f32 v{a}, v{a}, v{b_}')
        k(f'v_cvt_pk_bf16_f32 v{Q2+2*j}, v{b_}, v{a}')
    k('s_mov_b64 exec, -1')
    st()
    def qk(n_j, kb, sb, part):
        if part == 0:
            return f'v_mfma_f32_32x32x16_bf16 v[{Sb[sb]}:{Sb[sb]+15}], v[{K1[kb]}:{K1[kb]+3}], v[{Q1+4*n_j}:{Q1+4*n_j+3}], 0'
        return f'v_mfma_f32_32x32x16_bf16 v[{Sb[sb]}:{Sb[sb]+15}], v[{K2[kb]}:{K2[kb]+3}], v[{Q2+2*n_j}:{Q2+2*n_j+3}], v[{Sb[sb]}:{Sb[sb]+15}]'
    def pv(j, vb, pb, part):
        o = O + 12*j
        return f'v_mfma_f32_32x32x16_bf16 v[{o}:{o+15}], v[{V[vb]+4*part}:{V[vb]+4*part+3}], v[{P[pb]+4*part}:{P[pb]+4*part+3}], v[{o}:{o+15}]'
    def step(j, kb, first=False, lastkt=False, pre=None):
        sb = j & 1
        e = lambda i: k(f'v_exp_f32 v{Sb[sb]+i}, v{Sb[sb]+i}')
        c = lambda i: k(f'v_cvt_pk_bf16_f32 v{P[sb]+i}, v{Sb[sb]+2*i}, v{Sb[sb]+2*i+1}')
        nj = (j + 1) % 8; nkb = kb if j < 7 else kb ^ 1
        do_next = not (lastkt and j == 7)
        e(0); e(1)
        if not first:
            pj = (j - 1) % 8; pkb = kb if j > 0 else kb ^ 1
            k(pv(pj, pkb, sb ^ 1, 1))
        if pre: pre()
        e(2); e(3); e(4); e(5)
        if do_next: k(qk(nj, nkb, sb ^ 1, 0))
        e(6); e(7); c(0); c(1)
        if do_next: k(qk(nj, nkb, sb ^ 1, 1))
        c(2); c(3); e(8); e(9); e(10); e(11)
        k(pv(j, kb, sb, 0))
        e(12); e(13); e(14); e(15)
        c(4); c(5); c(6); c(7)
    k('s_waitcnt vmcnt(4)')
    k(qk(0, 0, 0, 0)); k(qk(0, 0, 0, 1))
    k('s_nop 7'); k('s_nop 3')
    def keytile(kb, first, load_next, last):
        for j in range(8):
            pre = None
            if j == 1 and load_next: pre = lambda: kv_load(kb ^ 1)
            if j == 7 and not last and 'nowait' not in dbg: k('s_waitcnt vmcnt(2)')
            if j == 0 and not first and 'nowait' not in dbg: k('s_waitcnt vmcnt(0)')
            step(j, kb, first=(first and j == 0), lastkt=last, pre=pre)
    keytile(0, True, False, False)
    Lloop = k.label('loop')
    k(f's_mov_b32 s{sCnt}, 7')
    k(f'{Lloop}:')
    keytile(1, False, True, False)
    keytile(0, False, True, False)
    k(f's_sub_u32 s{sCnt}, s{sCnt}, 1')
    k(f's_cmp_lg_u32 s{sCnt}, 0')
    k(f's_cbranch_scc1 {Lloop}')
    keytile(1, False, False, True)
    k(pv(7, 1, 1, 1))
    st()
    k('s_nop 7'); k('s_nop 7')
    wa, ra = tmp, tmp+1
    k(f'''
    v_lshlrev_b32 v{wa}, 4, v{vL}
    s_mul_i32 s40, s{sWave}, {12*1024}
    v_add_u32 v{ra}, 0, v{wa}
    v_add_u32 v{wa}, s40, v{wa}
    s_mul_i32 s41, s{sWave}, 3072
    v_add_u32 v{ra}, s41, v{ra}
    ''')
    def foff(dst, d0):
        k(f'''
        s_mul_i32 s44, s{sHead}, 20
        s_add_u32 s44, s44, {d0}
        s_lshr_b32 s45, s44, 5
        s_lshl_b32 s{dst}, s45, 10
        s_bfe_u32 s45, s44, 0x10004
        s_lshl_b32 s45, s45, 9
        s_add_u32 s{dst}, s{dst}, s45
        s_bfe_u32 s45, s44, 0x10002
        s_lshl_b32 s45, s45, 8
        s_add_u32 s{dst}, s{dst}, s45
        s_bfe_u32 s45, s44, 0x10003
        s_lshl_b32 s45, s45, 3
        s_add_u32 s{dst}, s{dst}, s45
        ''')
    so = [50, 51, 52, 53, 54]
    for i, d0 in enumerate((0, 4, 8, 12, 16)): foff(so[i], d0)
    T = Sb[0]
    Rr = Q1
    vo = [K1[0], K1[0]+1, K1[0]+2]
    for r in range(2):
        for jj in range(4):
            o = O + 12*(4*r + jj)
            for g in range(3):
                k(f'ds_write_b128 v{wa}, v[{o+4*g}:{o+4*g+3}] offset:{jj*3072 + g*1024}')
        k('s_waitcnt lgkmcnt(0)')
        k('s_barrier')
        for w in range(4):
            dstb = T if w == 0 else Rr + 12*(w-1) if w < 3 else Rr + 24
            for g in range(3):
                k(f'ds_read_b128 v[{dstb+4*g}:{dstb+4*g+3}], v{ra} offset:{w*12*1024 + g*1024}')
        k(f'''
        s_lshl_b32 s40, s{sQc}, 8
        s_lshl_b32 s41, s{sWave}, 5
        s_add_u32 s40, s40, s41
        s_add_u32 s40, s40, {128*r}
        v_add_u32 v{vo[0]}, s40, v{vT}
        v_lshrrev_b32 v{vo[1]}, 4, v{vo[0]}
        s_mov_b32 s41, {NK4*1024}
        v_mul_lo_u32 v{vo[1]}, v{vo[1]}, s41
        v_and_b32 v{vo[0]}, 15, v{vo[0]}
        v_lshl_add_u32 v{vo[0]}, v{vo[0]}, 4, v{vo[1]}
        s_waitcnt lgkmcnt(0)
        ''')
        for i in range(12):
            k(f'v_add_f32 v{T+i}, v{T+i}, v{Rr+i}')
            k(f'v_add_f32 v{Rr+12+i}, v{Rr+12+i}, v{Rr+24+i}')
        for i in range(12): k(f'v_add_f32 v{T+i}, v{T+i}, v{Rr+12+i}')
        rl, rl2 = Sb[1], Sb[1]+1
        k(f'''
        v_rcp_f32 v{rl}, v{T+8}
        s_nop 0
        v_mov_b32 v{rl2}, v{rl}
        v_permlane32_swap_b32 v{rl}, v{rl2}
        ''')
        for i in range(12): k(f'v_mul_f32 v{T+i}, v{T+i}, v{rl2}')
        pkd = Sb[1]+4
        for g in range(3):
            k(f'v_cvt_pk_bf16_f32 v{pkd+2*g}, v{T+4*g}, v{T+4*g+1}')
            k(f'v_cvt_pk_bf16_f32 v{pkd+2*g+1}, v{T+4*g+2}, v{T+4*g+3}')
        for g in range(3):
            k(f's_add_u32 s42, s{so[2*g]}, {A4}')
            k(f's_mov_b64 exec, s[{sLo}:{sLo+1}]')
            k(f'buffer_store_dwordx2 v[{pkd+2*g}:{pkd+2*g+1}], v{vo[0]}, s[{WS}:{WS+3}], s42 offen')
            if g < 2:
                k(f's_add_u32 s42, s{so[2*g+1]}, {A4}')
                k(f's_mov_b64 exec, s[{sHi}:{sHi+1}]')
                k(f'buffer_store_dwordx2 v[{pkd+2*g}:{pkd+2*g+1}], v{vo[0]}, s[{WS}:{WS+3}], s42 offen')
        k('s_mov_b64 exec, -1')
        if r == 0: k('s_barrier')
    return nv, WS, sWave, tmp

def gen_att(name='att_kernel', stamps=False, force_slow=False):
    k = K(name)
    st = Stamps(k, stamps)
    Lend = k.label('end')
    k('s_cmp_ge_u32 s2, 256')
    k(f's_cbranch_scc1 {Lend}')
    nv, WS, sWave, tmp = body_att(k, st, force_slow)
    if stamps:
        k('s_waitcnt vmcnt(0)')
        st()
        st.dump(WS, sWave, tmp)
    k(f'{Lend}:')
    k('s_endpgm')
    return k.finish(), kdesc(name, nv), nv

if __name__ == '__main__':
    t, d, nv = gen_att()
    print(nv)
```

```python
from asmlib import *
S, D, H, DH, F = 2048, 640, 32, 20, 1536
QF   = 0x000000
KF   = 0x300000
VF   = 0x600000
HS   = 0x880000
X1F  = 0xB00000
A4   = 0xD80000
KMAX = 0x1600000
ST1  = 0x1602000
CS3P = 0x1608000
PS   = 0x1640000
FLAGA = 0x1660000
FLAGB = 0x1661000
PRE  = 0x1700000
PW   = 0x1C00000
PW_W2, PW_WO, PW_W4 = 0, 160, 320
PW3  = 0x1C00000 + 704*5120 + 0x20000 - (704*5120 % 0x10000)
PW3  = (0x1C00000 + 704*5120 + 0xFFFF) // 0x10000 * 0x10000
WS_USED = PW3 + 16*40*3072
QK_HEAD = 64*1536
V_HEAD  = 64*1280
NK4 = 68
KA_X, KA_WQKV, KA_WO, KA_BX, KA_W1, KA_W2, KA_W3, KA_W4, KA_OUT, KA_DBG, KA_WS = [8*i for i in range(11)]
import struct, math
def f2u(x): return struct.unpack('<I', struct.pack('<f', x))[0]
def hx(x): return '0x%08x' % x
LOG2E = 1.4426950408889634
QSCALE = (DH ** -0.5) * LOG2E
GELU_C0 = 2.0 * math.sqrt(2.0/math.pi) * LOG2E
GELU_C1 = GELU_C0 * 0.044715
EPS = 1e-5

def srd(k, s, base_lo, base_hi, size):
    k(f's_mov_b32 s{s}, s{base_lo}')
    k(f's_and_b32 s{s+1}, s{base_hi}, 0xffff')
    k(f's_mov_b32 s{s+2}, {size}')
    k(f's_mov_b32 s{s+3}, 0x20000')

def cross_half_sum(k, a, tmp):
    k(f'v_mov_b32 v{tmp}, v{a}')
    k(f'v_permlane32_swap_b32 v{a}, v{tmp}')
    k(f'v_add_f32 v{a}, v{a}, v{tmp}')

def gelu_pk(k, x, t0, t1, cC0, cC1, cOne):
    k(f'v_pk_mul_f32 v[{t0}:{t0+1}], v[{x}:{x+1}], v[{x}:{x+1}]')
    k(f'v_pk_fma_f32 v[{t0}:{t0+1}], v[{t0}:{t0+1}], v[{cC1}:{cC1+1}], v[{cC0}:{cC0+1}]')
    k(f'v_pk_mul_f32 v[{t0}:{t0+1}], v[{t0}:{t0+1}], v[{x}:{x+1}]')
    k(f'v_exp_f32 v{t1}, v{t0}')
    k(f'v_exp_f32 v{t1+1}, v{t0+1}')
    k(f'v_pk_add_f32 v[{t1}:{t1+1}], v[{t1}:{t1+1}], v[{cOne}:{cOne+1}]')
    k(f'v_rcp_f32 v{t1}, v{t1}')
    k(f'v_rcp_f32 v{t1+1}, v{t1+1}')
    k(f'v_pk_mul_f32 v[{x}:{x+1}], v[{x}:{x+1}], v[{t1}:{t1+1}]')

STAMP = 0x1680000
class Stamps:
    def __init__(self, k, on):
        self.k = k; self.on = on; self.n = 0
    def __call__(self):
        if not self.on: return
        r = 80 + 2*self.n; self.n += 1
        assert self.n <= 8
        self.k(f's_memtime s[{r}:{r+1}]')
        if self.n == 1: self.k('s_memrealtime s[98:99]')
    def dump(self, srd, sWave, vtmp):
        if not self.on: return
        k = self.k
        k('s_memrealtime s[100:101]')
        k('s_waitcnt lgkmcnt(0)')
        k('s_sub_u32 s94, s100, s98')
        k('s_mov_b64 exec, 1')
        k(f's_lshl_b32 s96, s2, 2')
        k(f's_add_u32 s96, s96, s{sWave}')
        k(f's_lshl_b32 s96, s96, 5')
        k(f's_add_u32 s96, s96, {STAMP}')
        k(f'v_mov_b32 v{vtmp}, 0')
        assert self.n <= 7
        k(f'v_mov_b32 v{vtmp+1}, s94')
        k(f'buffer_store_dword v{vtmp+1}, v{vtmp}, s[{srd}:{srd+3}], s96 offen offset:28')
        for i in range(self.n):
            k(f'v_mov_b32 v{vtmp+1}, s{80+2*i}')
            k(f'buffer_store_dword v{vtmp+1}, v{vtmp}, s[{srd}:{srd+3}], s96 offen offset:{4*i}')

def publish(k, srdn, sflagoff, sWave, vtmp, lab):
    L = k.label(lab)
    k('s_waitcnt vmcnt(0)')
    k('s_barrier')
    k(f's_cmp_lg_u32 s{sWave}, 0')
    k(f's_cbranch_scc1 {L}')
    k(f'v_mov_b32 v{vtmp}, 0')
    k(f'v_mov_b32 v{vtmp+1}, 1')
    k('s_mov_b64 exec, 1')
    k(f'buffer_store_dword v{vtmp+1}, v{vtmp}, s[{srdn}:{srdn+3}], s{sflagoff} offen sc1')
    k('s_mov_b64 exec, -1')
    k(f'{L}:')

def wait_flags(k, srdn, sflagoff, sWave, vtmp, lab):
    L = k.label(lab); Lp = k.label(lab + 'p')
    k(f's_cmp_lg_u32 s{sWave}, 0')
    k(f's_cbranch_scc1 {L}')
    k(f'v_and_b32 v{vtmp}, 15, v0')
    k(f'v_lshlrev_b32 v{vtmp}, 2, v{vtmp}')
    k(f'{Lp}:')
    k(f'buffer_load_dword v{vtmp+1}, v{vtmp}, s[{srdn}:{srdn+3}], s{sflagoff} offen sc1')
    k('s_waitcnt vmcnt(0)')
    k(f'v_cmp_ne_u32 vcc, 1, v{vtmp+1}')
    k(f's_cbranch_vccz {L}')
    k('s_sleep 2')
    k(f's_branch {Lp}')
    k(f'{L}:')
    k('s_barrier')
```

```python
from common import *

def gen_g1(name='g1_kernel', stamps=False, dbg=()):
    k = K(name)
    st = Stamps(k, stamps)
    va = VA(1, 256)
    vL = va.alloc(); vT = va.alloc(); vH = va.alloc()
    vXoff = va.alloc(4); vWoff = va.alloc(5, align=1)
    vXa = va.alloc(4); vW0 = va.alloc(); vW1 = va.alloc()
    ones = va.alloc(2, align=2)
    acc = va.alloc(80, align=4)
    Xf = [va.alloc(4, align=4) for _ in range(3)]
    Wf = [va.alloc(20, align=4) for _ in range(3)]
    aS = va.alloc(4, align=4); aQ = va.alloc(4, align=4); aC = va.alloc(20, align=4)
    tmp = va.alloc(32, align=4)
    cst = va.alloc(12, align=2)
    nv = va.n
    sWave, sMb, sType, sNq, sLdw, sLdw64, sXl, sWl, sRot, sXo, sWo = 20,21,23,24,25,26,27,28,29,30,31
    XS, WS_, OS = 8, 12, 16
    LW = 65536
    CSB = 147456
    STB = CSB + 1024
    Lend = k.label('end')
    k(f'''
    s_cmp_ge_u32 s2, 256
    s_cbranch_scc1 {Lend}
    ''')
    st()
    k(f'''
    s_load_dwordx2 s[4:5], s[0:1], {KA_X}
    s_load_dwordx2 s[6:7], s[0:1], {KA_WQKV}
    s_load_dwordx2 s[32:33], s[0:1], {KA_W1}
    s_load_dwordx2 s[34:35], s[0:1], {KA_WS}
    s_load_dwordx2 s[52:53], s[0:1], {KA_W3}
    s_load_dwordx2 s[58:59], s[0:1], {KA_W2}
    s_load_dwordx2 s[60:61], s[0:1], {KA_WO}
    s_load_dwordx2 s[62:63], s[0:1], {KA_W4}
    s_and_b32 s36, s2, 7
    s_lshr_b32 s37, s2, 3
    s_and_b32 s38, s36, 1
    s_lshl_b32 s38, s38, 3
    s_and_b32 s39, s37, 7
    s_add_u32 s{sMb}, s38, s39
    s_lshr_b32 s{sType}, s36, 1
    s_lshr_b32 s{sNq}, s37, 3
    v_and_b32 v{vL}, 63, v0
    v_lshrrev_b32 v{tmp}, 6, v0
    v_and_b32 v{vT}, 31, v{vL}
    v_readfirstlane_b32 s{sWave}, v{tmp}
    v_lshrrev_b32 v{vH}, 5, v{vL}
    s_mul_i32 s41, s{sNq}, {0 if 'norot' in dbg else 5}
    s_lshr_b32 s41, s41, 1
    s_mul_i32 s39, s39, {0 if 'norot' in dbg else 1}
    s_add_u32 s41, s41, s39
    s_cmp_ge_u32 s41, 10
    s_cselect_b32 s42, 10, 0
    s_sub_u32 s{sRot}, s41, s42
    ''')
    t0, t1, t2, t3 = tmp, tmp+1, tmp+2, tmp+3
    k(f'''
    s_lshl_b32 s{sXl}, s{sWave}, 12
    s_mul_i32 s{sWl}, s{sWave}, 5120
    s_add_u32 s{sWl}, s{sWl}, {LW}
    s_movk_i32 s40, 1280
    s_cmp_eq_u32 s{sType}, 3
    s_cselect_b32 s{sLdw}, s40, 3840
    s_lshl_b32 s{sLdw64}, s{sLdw}, 6
    v_lshlrev_b32 v{t0}, 2, v0
    v_add_u32 v{t0}, {CSB}, v{t0}
    v_mov_b32 v{t1}, 0
    ds_write_b32 v{t0}, v{t1}
    v_lshrrev_b32 v{t0}, 3, v{vL}
    s_lshl_b32 s40, s{sWave}, 5
    v_add_u32 v{t0}, s40, v{t0}
    v_lshrrev_b32 v{t1}, 4, v{vL}
    v_and_b32 v{t2}, 7, v{vL}
    ''')
    for i in range(4):
        k(f'''
        v_add_u32 v{t3}, {8*i}, v{t0}
        v_mul_u32_u24 v{t3}, 1280, v{t3}
        v_add_u32 v{vXoff+i}, {4*(i&1)}, v{t1}
        v_xor_b32 v{vXoff+i}, v{vXoff+i}, v{t2}
        v_lshlrev_b32 v{vXoff+i}, 4, v{vXoff+i}
        v_add_u32 v{vXoff+i}, v{vXoff+i}, v{t3}
        ''')
    k(f's_mul_i32 s40, s{sWave}, 320')
    for i in range(5):
        k(f'''
        v_add_u32 v{t0}, s40, v{vL}
        v_add_u32 v{t0}, {64*i}, v{t0}
        v_mul_u32_u24 v{t1}, 3277, v{t0}
        v_lshrrev_b32 v{t1}, 16, v{t1}
        v_mul_u32_u24 v{t2}, 20, v{t1}
        v_sub_u32 v{t2}, v{t0}, v{t2}
        v_lshlrev_b32 v{t2}, 4, v{t2}
        v_mul_lo_u32 v{t1}, v{t1}, s{sLdw}
        v_add_u32 v{vWoff+i}, v{t1}, v{t2}
        ''')
    k('s_waitcnt lgkmcnt(0)')
    st()
    k(f'''
    s_mul_i32 s40, s{sMb}, 163840
    s_add_u32 s4, s4, s40
    s_addc_u32 s5, s5, 0
    ''')
    srd(k, XS, 4, 5, 163840)
    Lw1 = k.label('w1'); Lwd = k.label('wd')
    k(f'''
    s_mul_i32 s41, s{sNq}, 320
    s_cmp_eq_u32 s{sType}, 3
    s_cbranch_scc1 {Lw1}
    s_mul_i32 s42, s{sType}, 1280
    s_add_u32 s41, s41, s42
    s_add_u32 s44, s6, s41
    s_addc_u32 s45, s7, 0
    s_sub_u32 s46, {640*3840}, s41
    s_branch {Lwd}
    {Lw1}:
    s_add_u32 s44, s32, s41
    s_addc_u32 s45, s33, 0
    s_sub_u32 s46, {640*1280}, s41
    {Lwd}:
    s_mov_b32 s{WS_}, s44
    s_and_b32 s{WS_+1}, s45, 0xffff
    s_mov_b32 s{WS_+2}, s46
    s_mov_b32 s{WS_+3}, 0x20000
    ''')
    srd(k, OS, 34, 35, WS_USED)
    Lnf = k.label('nf')
    k(f'''
    s_or_b32 s40, s{sType}, s{sNq}
    s_or_b32 s40, s40, s{sWave}
    s_cmp_lg_u32 s40, 0
    s_cbranch_scc1 {Lnf}
    s_lshl_b32 s40, s{sMb}, 7
    s_add_u32 s40, s40, {FLAGA}
    s_add_u32 s41, s40, {FLAGB-FLAGA}
    v_lshlrev_b32 v{t0}, 2, v{vL}
    v_mov_b32 v{t1}, 0
    s_mov_b32 exec_hi, 0
    buffer_store_dword v{t1}, v{t0}, s[{OS}:{OS+3}], s40 offen
    buffer_store_dword v{t1}, v{t0}, s[{OS}:{OS+3}], s41 offen
    s_mov_b64 exec, -1
    {Lnf}:
    ''')
    def dma_stage(s):
        slot = s % 4
        k(f'''
        s_add_u32 s45, s{sRot}, {s}
        s_cmp_ge_u32 s45, 10
        s_cselect_b32 s46, 10, 0
        s_sub_u32 s45, s45, s46
        s_lshl_b32 s{sXo}, s45, 7
        s_mul_i32 s{sWo}, s45, s{sLdw64}
        ''')
        for i in range(4):
            k(f's_add_u32 m0, s{sXl}, {slot*16384 + i*1024}')
            k(f'buffer_load_dwordx4 v{vXoff+i}, s[{XS}:{XS+3}], s{sXo} offen {"nt" if "ntx" in dbg else ""} lds')
        for i in range(5):
            k(f's_add_u32 m0, s{sWl}, {slot*20480 + i*1024}')
            k(f'buffer_load_dwordx4 v{vWoff+i}, s[{WS_}:{WS_+3}], s{sWo} offen {"nt" if "ntw" in dbg else ""} lds')
    if 'pf' in dbg:
        pf = Wf[2]
        k(f'''
        s_lshl_b32 s40, s{sNq}, 5
        v_add_u32 v{t0}, s40, v{vT}
        v_mul_u32_u24 v{t0}, 1280, v{t0}
        s_lshl_b32 s40, s{sWave}, 1
        v_add_u32 v{t1}, s40, v{vH}
        v_lshl_add_u32 v{t0}, v{t1}, 7, v{t0}
        buffer_load_dword v{pf}, v{t0}, s[{XS}:{XS+3}], 0 offen
        v_mul_u32_u24 v{t2}, 43, v{vL}
        v_lshrrev_b32 v{t2}, 7, v{t2}
        v_mul_u32_u24 v{t3}, 3, v{t2}
        v_sub_u32 v{t3}, v{vL}, v{t3}
        v_lshrrev_b32 v{t1}, 3, v{t2}
        v_and_b32 v{t2}, 7, v{t2}
        s_lshl_b32 s40, s{sWave}, 1
        v_add_u32 v{t1}, s40, v{t1}
        v_lshlrev_b32 v{t1}, 6, v{t1}
        s_and_b32 s41, s{sMb}, 7
        s_lshl_b32 s41, s41, 3
        v_add3_u32 v{t1}, v{t1}, v{t2}, s41
        v_mul_lo_u32 v{t1}, v{t1}, s{sLdw}
        v_lshl_add_u32 v{t1}, v{t3}, 7, v{t1}
        s_mov_b32 exec_hi, 0xffff
        buffer_load_dword v{pf+1}, v{t1}, s[{WS_}:{WS_+3}], 0 offen
        s_mov_b64 exec, -1
        ''')
        k(f'''
        v_add_u32 v{t0}, {8*128}, v{t0}
        s_lshl_b32 s40, s{sWave}, 8
        v_subrev_u32 v{t0}, s40, v{t0}
        s_mul_i32 s41, s{sLdw}, 512
        v_add_u32 v{t1}, s41, v{t1}
        s_mul_i32 s41, s{sLdw}, 128
        s_mul_i32 s41, s41, s{sWave}
        v_subrev_u32 v{t1}, s41, v{t1}
        ''')
    dma_stage(0); dma_stage(1)
    if 'pf' in dbg:
        Lp1 = k.label('pf1'); Lp2 = k.label('pf2')
        k(f'''
        s_cmp_lg_u32 s{sWave}, 0
        s_cbranch_scc1 {Lp1}
        buffer_load_dword v{pf+2}, v{t0}, s[{XS}:{XS+3}], 0 offen
        {Lp1}:
        s_cmp_lg_u32 s{sWave}, 1
        s_cbranch_scc1 {Lp2}
        s_mov_b32 exec_hi, 0xffff
        buffer_load_dword v{pf+3}, v{t1}, s[{WS_}:{WS_+3}], 0 offen
        s_mov_b64 exec, -1
        {Lp2}:
        ''')
    k(f'''
    s_lshl_b32 s54, s{sType}, 2
    s_add_u32 s54, s54, s{sNq}
    ''')
    dma_stage(2)
    st()
    k(f'''
    v_lshrrev_b32 v{t0}, 1, v{vT}
    v_and_b32 v{t0}, 7, v{t0}
    v_lshlrev_b32 v{t1}, 7, v{vT}
    v_add_u32 v{t1}, s{sXl}, v{t1}
    ''')
    for ks in range(4):
        k(f'''
        v_add_u32 v{t2}, {2*ks}, v{vH}
        v_xor_b32 v{t2}, v{t2}, v{t0}
        v_lshlrev_b32 v{t2}, 4, v{t2}
        v_add_u32 v{vXa+ks}, v{t1}, v{t2}
        ''')
    k(f'''
    v_lshrrev_b32 v{t0}, 4, v{vL}
    v_and_b32 v{t1}, 15, v{vL}
    v_lshrrev_b32 v{t2}, 2, v{t1}
    v_and_b32 v{t1}, 3, v{t1}
    v_lshrrev_b32 v{t3}, 1, v{t0}
    v_lshlrev_b32 v{t3}, 3, v{t3}
    v_add_u32 v{t2}, v{t2}, v{t3}
    v_mul_u32_u24 v{t2}, 320, v{t2}
    v_and_b32 v{t0}, 1, v{t0}
    v_lshlrev_b32 v{t0}, 5, v{t0}
    v_lshlrev_b32 v{t1}, 3, v{t1}
    v_add3_u32 v{vW0}, v{t2}, v{t0}, v{t1}
    v_add_u32 v{vW0}, {LW}, v{vW0}
    v_add_u32 v{vW1}, 61440, v{vW0}
    v_mov_b32 v{ones}, 0x3f803f80
    v_mov_b32 v{ones+1}, 0x3f803f80
    ''')
    for i in range(80): k(f'v_mov_b32 v{acc+i}, 0')
    for r in list(range(aS, aS+4)) + list(range(aQ, aQ+4)) + list(range(aC, aC+20)): k(f'v_mov_b32 v{r}, 0')
    k('s_waitcnt vmcnt(9)')
    k('s_barrier')
    if 'pf' in dbg: k(f'v_mov_b32 v{Wf[2]}, 0')
    dma_stage(3)
    def reads(n):
        s, ks = divmod(n, 4)
        slot = s % 4; buf = n % 3
        out = [f'ds_read_b128 v[{Xf[buf]}:{Xf[buf]+3}], v{vXa+ks} offset:{slot*16384}']
        for t in range(5):
            for j in range(2):
                base = vW1 if slot == 3 else vW0
                off = (0 if slot == 3 else slot*20480) + (16*ks + 4*j)*320 + t*64
                r = Wf[buf] + 4*t + 2*j
                out.append(f'ds_read_b64_tr_b16 v[{r}:{r+1}], v{base} offset:{off}')
        return out
    RP3 = 32768
    RP16 = LW + 2*20480
    vR3, vR16 = cst+10, cst+11
    def repack_issue():
        L3 = k.label('rp3'); L16 = k.label('rp16'); La = k.label('rpa'); Lb = k.label('rpb'); Lc = k.label('rpc')
        t0, t1, t2 = tmp+20, tmp+21, tmp+22
        srd(k, 48, 52, 53, 640*3072)
        k(f'''
        s_lshl_b32 s68, s{sWave}, 4
        s_add_u32 s68, s68, s{sMb}
        s_cmp_lt_u32 s68, 40
        s_cselect_b32 s64, 1, 0
        s_cbranch_scc0 {L3}
        s_mul_i32 s66, s54, 40
        s_add_u32 s66, s66, s68
        s_mul_i32 s66, s66, 3072
        s_add_u32 s66, s66, {PW3}
        s_mul_i32 s69, s68, {16*3072}
        s_mul_i32 s70, s54, 192
        s_add_u32 s69, s69, s70
        s_mul_i32 s70, s{sWave}, 3072
        s_add_u32 s70, s70, {RP3}
        ''')
        for i in range(3):
            k(f'''
            v_add_u32 v{t0}, {64*i}, v{vL}
            v_mul_u32_u24 v{t1}, 5462, v{t0}
            v_lshrrev_b32 v{t1}, 16, v{t1}
            v_mul_u32_u24 v{t2}, 12, v{t1}
            v_sub_u32 v{t2}, v{t0}, v{t2}
            v_lshlrev_b32 v{t2}, 4, v{t2}
            v_mul_u32_u24 v{t1}, 3072, v{t1}
            v_add_u32 v{t0}, v{t1}, v{t2}
            s_add_u32 m0, s70, {i*1024}
            buffer_load_dwordx4 v{t0}, s[48:51], s69 offen lds
            ''')
        k(f'''
        {L3}:
        s_lshl_b32 s68, s{sWave}, 8
        s_add_u32 s68, s68, s2
        s_cmp_lt_u32 s68, 704
        s_cselect_b32 s65, 1, 0
        s_cbranch_scc0 {L16}
        s_mul_i32 s67, s68, 5120
        s_add_u32 s67, s67, {PW}
        s_cmp_lt_u32 s68, 320
        s_cbranch_scc0 {La}
        s_cmp_lt_u32 s68, 160
        s_cbranch_scc0 {Lb}
        s_mov_b32 s72, s58
        s_mov_b32 s73, s59
        s_branch {Lc}b
        {Lb}:
        s_sub_u32 s68, s68, 160
        s_mov_b32 s72, s60
        s_mov_b32 s73, s61
        {Lc}b:
        s_mul_i32 s69, s68, 3277
        s_lshr_b32 s69, s69, 16
        s_mul_i32 s70, s69, 20
        s_sub_u32 s70, s68, s70
        s_mov_b32 s74, {640*1280}
        s_branch {Lc}
        {La}:
        s_sub_u32 s68, s68, 320
        s_mov_b32 s72, s62
        s_mov_b32 s73, s63
        s_mul_i32 s69, s68, 1366
        s_lshr_b32 s69, s69, 16
        s_mul_i32 s70, s69, 48
        s_sub_u32 s70, s68, s70
        s_mov_b32 s74, {1536*1280}
        {Lc}:
        s_mul_i32 s70, s70, {32*1280}
        s_mul_i32 s69, s69, 160
        s_add_u32 s69, s69, s70
        s_mov_b32 s76, s72
        s_and_b32 s77, s73, 0xffff
        s_mov_b32 s78, s74
        s_mov_b32 s79, 0x20000
        s_mul_i32 s70, s{sWave}, 5120
        s_add_u32 s70, s70, {RP16}
        ''')
        for i in range(5):
            k(f'''
            v_add_u32 v{t0}, {64*i}, v{vL}
            v_mul_u32_u24 v{t1}, 6554, v{t0}
            v_lshrrev_b32 v{t1}, 16, v{t1}
            v_mul_u32_u24 v{t2}, 10, v{t1}
            v_sub_u32 v{t2}, v{t0}, v{t2}
            v_lshlrev_b32 v{t2}, 4, v{t2}
            v_mul_u32_u24 v{t1}, 1280, v{t1}
            v_add_u32 v{t0}, v{t1}, v{t2}
            s_add_u32 m0, s70, {i*1024}
            buffer_load_dwordx4 v{t0}, s[76:79], s69 offen lds
            ''')
        k(f'{L16}:')
    def repack_finish():
        L3 = k.label('rf3'); L16 = k.label('rf16')
        t0, t1, t2, t3 = tmp+20, tmp+21, tmp+22, tmp+23
        F = Wf[0]
        k('s_waitcnt vmcnt(0)')
        k(f'''
        s_cmp_eq_u32 s64, 0
        s_cbranch_scc1 {L3}
        v_lshrrev_b32 v{t0}, 4, v{vL}
        v_and_b32 v{t1}, 15, v{vL}
        v_lshrrev_b32 v{t2}, 2, v{t1}
        v_and_b32 v{t1}, 3, v{t1}
        v_lshrrev_b32 v{t3}, 1, v{t0}
        v_lshlrev_b32 v{t3}, 3, v{t3}
        v_add_u32 v{t2}, v{t2}, v{t3}
        v_mul_u32_u24 v{t2}, 192, v{t2}
        v_and_b32 v{t0}, 1, v{t0}
        v_lshlrev_b32 v{t0}, 5, v{t0}
        v_lshlrev_b32 v{t1}, 3, v{t1}
        v_add3_u32 v{t0}, v{t2}, v{t0}, v{t1}
        s_mul_i32 s70, s{sWave}, 3072
        s_add_u32 s70, s70, {RP3}
        v_add_u32 v{t0}, s70, v{t0}
        ''')
        for ft in range(3):
            for j in range(2):
                k(f'ds_read_b64_tr_b16 v[{F+4*ft+2*j}:{F+4*ft+2*j+1}], v{t0} offset:{4*j*192 + ft*64}')
        k(f'''
        v_lshlrev_b32 v{t1}, 4, v{vL}
        v_lshlrev_b32 v{t2}, 2, v{vT}
        v_add_u32 v{t2}, {CSB+640}, v{t2}
        s_waitcnt lgkmcnt(0)
        ''')
        for ft in range(3):
            k(f'buffer_store_dwordx4 v[{F+4*ft}:{F+4*ft+3}], v{t1}, s[{OS}:{OS+3}], s66 offen offset:{ft*1024}')
        for ft in range(3):
            c = F + 12 + ft
            k(f'v_mov_b32 v{c}, 0')
            for i in range(4): k(f'v_dot2_f32_bf16 v{c}, v{F+4*ft+i}, v{ones}, v{c}')
        for ft in range(3): k(f'ds_add_f32 v{t2}, v{F+12+ft} offset:{ft*128}')
        k(f'''
        {L3}:
        s_cmp_eq_u32 s65, 0
        s_cbranch_scc1 {L16}
        v_lshrrev_b32 v{t3}, 4, v{vL}
        v_and_b32 v{t2}, 15, v{vL}
        v_lshrrev_b32 v{t0}, 1, v{t3}
        v_lshlrev_b32 v{t0}, 4, v{t0}
        v_and_b32 v{t1}, 1, v{t3}
        v_lshl_add_u32 v{t0}, v{t1}, 2, v{t0}
        v_lshrrev_b32 v{t1}, 2, v{t2}
        v_add_u32 v{t0}, v{t0}, v{t1}
        v_mul_u32_u24 v{t0}, 160, v{t0}
        v_and_b32 v{t1}, 3, v{t2}
        v_lshl_add_u32 v{t0}, v{t1}, 3, v{t0}
        s_mul_i32 s70, s{sWave}, 5120
        s_add_u32 s70, s70, {RP16}
        v_add_u32 v{t0}, s70, v{t0}
        ''')
        F2 = Wf[1]
        for ft in range(5):
            for j in range(2):
                k(f'ds_read_b64_tr_b16 v[{F2+4*ft+2*j}:{F2+4*ft+2*j+1}], v{t0} offset:{j*1280 + ft*32}')
        k(f'''
        v_lshlrev_b32 v{t1}, 4, v{vL}
        s_add_u32 s70, s67, 4096
        s_waitcnt lgkmcnt(0)
        ''')
        for ft in range(5):
            so, off = (67, ft*1024) if ft < 4 else (70, 0)
            k(f'buffer_store_dwordx4 v[{F2+4*ft}:{F2+4*ft+3}], v{t1}, s[{OS}:{OS+3}], s{so} offen offset:{off}')
        k(f'{L16}:')
    m4 = lambda d, a, b: f'v_mfma_f32_4x4x4_16b_bf16 v[{d}:{d+3}], v[{a}:{a+1}], v[{b}:{b+1}], v[{d}:{d+3}]'
    def main_loop(orient):
        if stamps: k(f's_memtime s[{80+2*st.n}:{81+2*st.n}]')
        k('s_waitcnt lgkmcnt(0)')
        for r in reads(0) + reads(1): k(r)
        for n in range(40):
            s, ks = divmod(n, 4)
            buf = n % 3
            if ks == 2 and s < 9:
                if s >= 1:
                    issued = [2, 3] + list(range(4, min(s + 3, 10)))
                    rem = 9 * len([g for g in issued if g > s + 1])
                    if 'nodma' not in dbg: k(f's_waitcnt vmcnt({rem})')
                if 'nobar' not in dbg: k('s_barrier')
                if s >= 1 and s + 3 <= 9 and 'nodma' not in dbg: dma_stage(s + 3)
                if s == 8: repack_issue()
            nxt = reads(n + 2) if (n + 2 < 40 and 'noread' not in dbg) else []
            if 'nox' in dbg: nxt = nxt[1:]
            if 'now' in dbg: nxt = nxt[:1]
            k(f's_waitcnt lgkmcnt({11 if n + 1 < 40 else 0})')
            x = Xf[buf]
            for t in range(5):
                w = Wf[buf] + 4*t; a = acc + 16*t
                if orient == 'T':
                    k(f'v_mfma_f32_32x32x16_bf16 v[{a}:{a+15}], v[{w}:{w+3}], v[{x}:{x+3}], v[{a}:{a+15}]')
                else:
                    k(f'v_mfma_f32_32x32x16_bf16 v[{a}:{a+15}], v[{x}:{x+3}], v[{w}:{w+3}], v[{a}:{a+15}]')
                for _ in range(3 if t == 0 else 2):
                    if nxt: k(nxt.pop(0))
            if 'nosmall' in dbg: continue
            k(m4(aS, ones, x)); k(m4(aQ, x, x)); k('s_nop 0'); k(m4(aS, ones, x+2)); k(m4(aQ, x+2, x+2))
            Ls = k.label('cs')
            k(f's_cmp_lg_u32 s{sWave}, {ks}')
            k(f's_cbranch_scc1 {Ls}')
            for j in range(2):
                for t in range(5):
                    k(m4(aC + 4*t, ones, Wf[buf] + 4*t + 2*j))
            k(f'{Ls}:')
    LV = k.label('V'); Lep = k.label('ep')
    k(f's_cmp_eq_u32 s{sType}, 2')
    k(f's_cbranch_scc1 {LV}')
    main_loop('T')
    k(f's_branch {Lep}')
    k(f'{LV}:')
    main_loop('N')
    st.n += 1 if stamps else 0
    k(f'{Lep}:')
    st()
    repack_finish()
    mu, rr, var = tmp, tmp+1, tmp+2
    sS, sQ = aS, tmp+3
    k(f'''
    v_lshlrev_b32 v{tmp+4}, 2, v{vT}
    v_add_u32 v{tmp+4}, {CSB}, v{tmp+4}
    ''')
    for t in range(5): k(f'ds_add_f32 v{tmp+4}, v{aC+4*t} offset:{t*128}')
    k(f'''
    v_and_b32 v{tmp+5}, 3, v{vL}
    v_cmp_eq_u32 vcc, 1, v{tmp+5}
    v_cndmask_b32 v{sQ}, v{aQ}, v{aQ+1}, vcc
    v_cmp_eq_u32 vcc, 2, v{tmp+5}
    v_cndmask_b32 v{sQ}, v{sQ}, v{aQ+2}, vcc
    v_cmp_eq_u32 vcc, 3, v{tmp+5}
    v_cndmask_b32 v{sQ}, v{sQ}, v{aQ+3}, vcc
    ''')
    cross_half_sum(k, sS, tmp+5)
    cross_half_sum(k, sQ, tmp+6)
    k(f'''
    v_mul_f32 v{mu}, {hx(f2u(1.0/640))}, v{sS}
    v_mul_f32 v{var}, {hx(f2u(1.0/640))}, v{sQ}
    v_fma_f32 v{var}, -v{mu}, v{mu}, v{var}
    v_max_f32 v{var}, 0, v{var}
    v_add_f32 v{rr}, {hx(f2u(EPS))}, v{var}
    v_rsq_f32 v{rr}, v{rr}
    s_waitcnt lgkmcnt(0)
    s_barrier
    ''')
    k(f'''
    v_lshlrev_b32 v{tmp+4}, 2, v0
    v_add_u32 v{tmp+5}, {CSB+640}, v{tmp+4}
    v_cmp_gt_u32 vcc, 96, v0
    s_and_saveexec_b64 s[44:45], vcc
    ds_read_b32 v{tmp+6}, v{tmp+5}
    s_mul_i32 s41, s54, {16*384}
    s_mul_i32 s42, s{sMb}, 384
    s_add_u32 s41, s41, s42
    s_add_u32 s41, s41, {CS3P}
    s_waitcnt lgkmcnt(0)
    buffer_store_dword v{tmp+6}, v{tmp+4}, s[{OS}:{OS+3}], s41 offen
    s_mov_b64 exec, s[44:45]
    ''')
    sBlk = 40
    k(f'''
    s_lshl_b32 s{sBlk}, s{sMb}, 2
    s_add_u32 s{sBlk}, s{sBlk}, s{sWave}
    ''')
    LQ, LK, LVe, LH = k.label('eQ'), k.label('eK'), k.label('eV'), k.label('eH')
    k(f'''
    s_cmp_eq_u32 s{sType}, 2
    s_cbranch_scc1 {LVe}
    ''')
    CS = Xf[0]
    assert Wf[0] == Xf[0] + 12 and aS == Wf[2] + 20 and aQ == aS + 4
    vCsA = tmp+7
    k(f'''
    v_lshlrev_b32 v{vCsA}, 4, v{vH}
    v_add_u32 v{vCsA}, {CSB}, v{vCsA}
    ''')
    for g in range(20):
        k(f'ds_read_b128 v[{CS+4*g}:{CS+4*g+3}], v{vCsA} offset:{(32*(g//4)+8*(g%4))*4}')
    k(f'''
    s_cmp_eq_u32 s{sType}, 1
    s_cbranch_scc1 {LK}
    s_cmp_eq_u32 s{sType}, 3
    s_cbranch_scc1 {LH}
    ''')
    nmu2 = cst; r2 = cst+2
    pk = tmp+16
    def ln_all():
        k('s_waitcnt lgkmcnt(0)')
        for g in range(20):
            a = acc + 4*g; c = CS + 4*g
            for p in range(2):
                k(f'v_pk_fma_f32 v[{a+2*p}:{a+2*p+1}], v[{c+2*p}:{c+2*p+1}], v[{nmu2}:{nmu2+1}], v[{a+2*p}:{a+2*p+1}]')
        for g in range(20):
            a = acc + 4*g
            for p in range(2):
                k(f'v_pk_mul_f32 v[{a+2*p}:{a+2*p+1}], v[{a+2*p}:{a+2*p+1}], v[{r2}:{r2+1}]')
    def set_mu_r(rscale):
        k(f'''
        v_sub_f32 v{nmu2}, 0, v{mu}
        v_sub_f32 v{nmu2+1}, 0, v{mu}
        v_mul_f32 v{r2}, {hx(f2u(rscale))}, v{rr}
        v_mul_f32 v{r2+1}, {hx(f2u(rscale))}, v{rr}
        ''')
    def qk_epilogue(isK):
        sec = KF if isK else QF
        vA, vB, vC = cst+4, cst+5, cst+6
        set_mu_r(1.0 if isK else QSCALE)
        k(f'''
        v_lshlrev_b32 v{vA}, 4, v{vT}
        v_mul_u32_u24 v{vB}, 504, v{vH}
        v_add_u32 v{vB}, v{vB}, v{vA}
        s_mov_b32 s41, 97280
        v_mul_lo_u32 v{vC}, v{vH}, s41
        v_add_u32 v{vC}, v{vC}, v{vA}
        v_lshlrev_b32 v{tmp+3}, 3, v{vH}
        v_add_u32 v{vA}, v{vA}, v{tmp+3}
        s_mul_i32 s41, s{sNq}, {8*QK_HEAD}
        s_mul_i32 s42, s{sBlk}, 1536
        s_add_u32 s41, s41, s42
        s_add_u32 s41, s41, {sec}
        ''')
        if not isK:
            Lns = k.label('ns')
            k(f'''
            s_cmp_lg_u32 s{sNq}, 0
            s_cbranch_scc1 {Lns}
            s_lshl_b32 s42, s{sBlk}, 8
            s_add_u32 s42, s42, {ST1}
            v_lshlrev_b32 v{tmp+3}, 3, v{vT}
            s_mov_b64 s[44:45], exec
            s_mov_b32 exec_hi, 0
            buffer_store_dwordx2 v[{mu}:{mu+1}], v{tmp+3}, s[{OS}:{OS+3}], s42 offen
            s_mov_b64 exec, s[44:45]
            {Lns}:
            ''')
        ln_all()
        cdm = {0:0, 4:8, 8:512, 12:520, 16:1024}
        for g in range(20):
            t, j = divmod(g, 4)
            f0 = 32*t + 8*j; f1 = f0 + 4
            h0, d0 = divmod(f0, 20); h1, d1 = divmod(f1, 20)
            C0 = h0*QK_HEAD + cdm[d0]; C1 = h1*QK_HEAD + cdm[d1]
            va_ = {8: vA, 504: vB, 97280: vC}[C1 - C0]
            a = acc + 4*g; p_ = CS + 2*g
            k(f'v_cvt_pk_bf16_f32 v{p_}, v{a}, v{a+1}')
            k(f'v_cvt_pk_bf16_f32 v{p_+1}, v{a+2}, v{a+3}')
            k(f's_add_u32 s42, s41, {C0}')
            k(f'buffer_store_dwordx2 v[{p_}:{p_+1}], v{va_}, s[{OS}:{OS+3}], s42 offen')
        if isK:
            ss = CS + 40
            gs = CS + 48
            mH0, mH1 = cst+8, cst+9
            for a in range(8): k(f'v_mov_b32 v{ss+a}, 0')
            k(f'''
            v_cvt_f32_u32 v{mH1}, v{vH}
            v_sub_f32 v{mH0}, 1.0, v{mH1}
            ''')
            for g in range(20):
                t, j = divmod(g, 4)
                f0 = 32*t + 8*j
                h0 = f0 // 20; h1 = (f0 + 4) // 20
                a = acc + 4*g; gg = gs + (g & 3)
                k(f'v_mul_f32 v{gg}, v{a}, v{a}')
                for i in range(1, 4): k(f'v_fmac_f32 v{gg}, v{a+i}, v{a+i}')
                if h0 == h1: k(f'v_add_f32 v{ss+h0}, v{ss+h0}, v{gg}')
                else:
                    k(f'v_fmac_f32 v{ss+h0}, v{gg}, v{mH0}')
                    k(f'v_fmac_f32 v{ss+h1}, v{gg}, v{mH1}')
            for a in range(8): cross_half_sum(k, ss+a, gs+(a&3))
            for mod in ('quad_perm:[1,0,3,2]', 'quad_perm:[2,3,0,1]', 'row_half_mirror', 'row_mirror'):
                for a in range(8):
                    k(f'v_max_f32_dpp v{ss+a}, v{ss+a}, v{ss+a} {mod} row_mask:0xf bank_mask:0xf')
            for a in range(8):
                k(f'v_mov_b32 v{gs+(a&3)}, v{ss+a}')
                k(f'v_permlane16_swap_b32 v{ss+a}, v{gs+(a&3)}')
                k(f'v_max_f32 v{ss+a}, v{ss+a}, v{gs+(a&3)}')
            k(f'''
            s_lshl_b32 s42, s{sNq}, 11
            s_lshl_b32 s43, s{sBlk}, 2
            s_add_u32 s42, s42, s43
            s_add_u32 s42, s42, {KMAX}
            v_mov_b32 v{tmp+3}, 0
            s_mov_b64 exec, 1
            ''')
            for a in range(8):
                k(f'buffer_store_dword v{ss+a}, v{tmp+3}, s[{OS}:{OS+3}], s42 offen offset:{a*256}')
        k(f's_branch {Lend}')
    qk_epilogue(False)
    k(f'{LK}:')
    qk_epilogue(True)
    k(f'{LH}:')
    cC0, cC1, cOne = cst+4, cst+6, cst+8
    dst = tmp+3
    k(f'''
    v_mul_f32 v{tmp+4}, v{rr}, v{rr}
    v_mul_f32 v{tmp+4}, v{tmp+4}, v{var}
    v_add_f32 v{tmp+4}, {hx(f2u(EPS))}, v{tmp+4}
    v_rsq_f32 v{tmp+4}, v{tmp+4}
    s_lshl_b32 s41, s{sBlk}, 5
    v_add_u32 v{dst}, s41, v{vT}
    s_and_b32 s42, s{sNq}, 1
    s_lshr_b32 s43, s{sNq}, 1
    s_add_u32 s43, s43, 1
    s_sub_u32 s44, 0, s43
    s_cmp_eq_u32 s42, 0
    s_cselect_b32 s43, s43, s44
    v_add_u32 v{dst}, s43, v{dst}
    v_mul_f32 v{rr}, v{rr}, v{tmp+4}
    v_cmp_gt_u32 vcc, 2048, v{dst}
    v_cndmask_b32 v{rr}, 0, v{rr}, vcc
    v_and_b32 v{dst}, 2047, v{dst}
    v_lshrrev_b32 v{tmp+4}, 4, v{dst}
    v_mul_u32_u24 v{tmp+4}, 20480, v{tmp+4}
    v_and_b32 v{dst}, 15, v{dst}
    v_lshlrev_b32 v{dst}, 4, v{dst}
    v_lshlrev_b32 v{tmp+5}, 8, v{vH}
    v_add3_u32 v{dst}, v{dst}, v{tmp+4}, v{tmp+5}
    s_mul_i32 s41, s{sNq}, 5120
    s_add_u32 s41, s41, {HS}
    s_add_u32 s42, s41, 4096
    v_mov_b32 v{cC0}, {hx(f2u(-GELU_C0))}
    v_mov_b32 v{cC0+1}, {hx(f2u(-GELU_C0))}
    v_mov_b32 v{cC1}, {hx(f2u(-GELU_C1))}
    v_mov_b32 v{cC1+1}, {hx(f2u(-GELU_C1))}
    v_mov_b32 v{cOne}, 1.0
    v_mov_b32 v{cOne+1}, 1.0
    ''')
    set_mu_r(1.0)
    ln_all()
    for g in range(20):
        t, j = divmod(g, 4)
        a = acc + 4*g
        g0 = CS + 8*(g & 3)
        gelu_pk(k, a, g0, g0+2, cC0, cC1, cOne)
        gelu_pk(k, a+2, g0+4, g0+6, cC0, cC1, cOne)
        p_ = CS + 40 + 2*(g & 7)
        k(f'v_cvt_pk_bf16_f32 v{p_}, v{a}, v{a+1}')
        k(f'v_cvt_pk_bf16_f32 v{p_+1}, v{a+2}, v{a+3}')
        off = t*1024 + (j//2)*512 + (j%2)*8
        so = 41
        if off >= 4096: off -= 4096; so = 42
        k(f'buffer_store_dwordx2 v[{p_}:{p_+1}], v{dst}, s[{OS}:{OS+3}], s{so} offen offset:{off}')
    k(f's_branch {Lend}')
    k(f'{LVe}:')
    rt = CS
    mrt = CS + 16
    csl = CS + 32
    voff = CS + 40
    k(f'''
    v_mul_f32 v{tmp+3}, v{mu}, v{rr}
    v_lshlrev_b32 v{tmp+4}, 2, v{vT}
    s_lshl_b32 s41, s{sWave}, 7
    s_add_u32 s41, s41, {STB}
    v_add_u32 v{tmp+4}, s41, v{tmp+4}
    ds_write_b32 v{tmp+4}, v{rr}
    ds_write_b32 v{tmp+4}, v{tmp+3} offset:512
    v_lshlrev_b32 v{tmp+5}, 4, v{vH}
    v_add_u32 v{tmp+5}, s41, v{tmp+5}
    v_lshlrev_b32 v{tmp+4}, 2, v{vT}
    v_add_u32 v{tmp+4}, {CSB}, v{tmp+4}
    s_waitcnt lgkmcnt(0)
    ''')
    for j in range(4):
        k(f'ds_read_b128 v[{rt+4*j}:{rt+4*j+3}], v{tmp+5} offset:{j*32}')
        k(f'ds_read_b128 v[{mrt+4*j}:{mrt+4*j+3}], v{tmp+5} offset:{512+j*32}')
    for t in range(5): k(f'ds_read_b32 v{csl+t}, v{tmp+4} offset:{t*128}')
    k(f'''
    s_mul_i32 s41, s{sNq}, {8*V_HEAD}
    s_mul_i32 s42, s{sBlk}, 1280
    s_add_u32 s41, s41, s42
    s_add_u32 s41, s41, {VF}
    s_mov_b32 s43, {V_HEAD}
    v_mul_u32_u24 v{voff+7}, 320, v{vH}
    ''')
    for t in range(5):
        k(f'''
        v_add_u32 v{voff+t}, {32*t}, v{vT}
        v_mul_u32_u24 v{voff+5}, 205, v{voff+t}
        v_lshrrev_b32 v{voff+5}, 12, v{voff+5}
        v_mul_u32_u24 v{voff+6}, 20, v{voff+5}
        v_sub_u32 v{voff+t}, v{voff+t}, v{voff+6}
        v_lshlrev_b32 v{voff+t}, 4, v{voff+t}
        v_mul_lo_u32 v{voff+5}, v{voff+5}, s43
        v_add3_u32 v{voff+t}, v{voff+t}, v{voff+5}, v{voff+7}
        ''')
    k('s_waitcnt lgkmcnt(0)')
    for t in range(5):
        for i in range(16):
            a = acc + 16*t + i
            k(f'v_mul_f32 v{a}, v{a}, v{rt+i}')
        for i in range(16):
            a = acc + 16*t + i
            k(f'v_fma_f32 v{a}, -v{mrt+i}, v{csl+t}, v{a}')
        for m in range(2):
            d = CS + 48 + 4*((2*t + m) & 3)
            for p in range(4):
                a = acc + 16*t + 8*m + 2*p
                k(f'v_cvt_pk_bf16_f32 v{d+p}, v{a}, v{a+1}')
            k(f'buffer_store_dwordx4 v[{d}:{d+3}], v{voff+t}, s[{OS}:{OS+3}], s41 offen offset:{m*640}')
    k(f'{Lend}:')
    if stamps:
        Lx = k.label('x')
        k(f's_cmp_ge_u32 s2, 256')
        k(f's_cbranch_scc1 {Lx}')
        k('s_mov_b64 exec, -1')
        k('s_waitcnt vmcnt(0)')
        st()
        st.dump(OS, sWave, tmp)
        k(f'{Lx}:')
    k('s_endpgm')
    return k.finish(), kdesc(name, nv), nv

if __name__ == '__main__':
    t, d, nv = gen_g1()
    print(nv)
```

```python
from common import *

def gen_g1(name='g1_kernel', stamps=False, dbg=()):
    k = K(name)
    st = Stamps(k, stamps)
    va = VA(1, 256)
    vL = va.alloc(); vT = va.alloc(); vH = va.alloc()
    ones = va.alloc(2, align=2)
    tmp = va.alloc(32, align=4)
    cst = va.alloc(12, align=2)
    dmy = va.alloc(2, align=2)
    pfa = va.alloc(2, align=2)
    base = va.n
    vXa = va.alloc(4); vW0 = va.alloc(); vW1 = va.alloc()
    acc = va.alloc(80, align=4)
    Xf = [va.alloc(4, align=4) for _ in range(3)]
    Wf = [va.alloc(20, align=4) for _ in range(3)]
    aC = va.alloc(20, align=4)
    cS = va.alloc(4, align=4); cQ = va.alloc(4, align=4); cU = va.alloc(4, align=4)
    nvc = va.n
    vb = VA(base, 256)
    vXoff = vb.alloc(4); vWoff = vb.alloc(5, align=1)
    vSa = vb.alloc(4)
    SX = [vb.alloc(16, align=4) for _ in range(2)]
    aS = vb.alloc(4, align=4); aQ = vb.alloc(4, align=4); un = vb.alloc(8, align=4)
    F = vb.alloc(20, align=4); Fc = vb.alloc(4, align=4); RPo = vb.alloc(5, align=1)
    nv = max(nvc, vb.n)
    sWave, sMb, sType, sNq, sLdw, sLdw64, sXl, sWl, sC, sXo, sWo, sNb, sBlk = 20,21,23,24,25,26,27,28,29,30,31,32,33
    XS, WS_, OS = 8, 12, 16
    pX, pQKV, pWO, pBX, pW1, pW2, pW3, pW4, pWS = 40, 42, 44, 46, 48, 50, 52, 54, 56
    LW = 65536
    CSP = 147456
    CSF = CSP + 2560
    STB = CSF + 2560
    STR = STB + 2048
    LDS_TOTAL = STR + 1024
    Lend = k.label('end'); Lload = k.label('loader')
    k(f'''
    s_cmp_ge_u32 s2, 256
    s_cbranch_scc1 {Lend}
    s_load_dwordx16 s[40:55], s[0:1], 0
    s_load_dwordx2 s[56:57], s[0:1], {KA_WS}
    ''')
    st()
    t0, t1, t2, t3 = tmp, tmp+1, tmp+2, tmp+3
    k(f'''
    v_lshrrev_b32 v{tmp}, 6, v0
    s_and_b32 s36, s2, 7
    s_lshr_b32 s37, s2, 3
    v_readfirstlane_b32 s{sWave}, v{tmp}
    s_and_b32 s38, s36, 1
    s_lshl_b32 s38, s38, 3
    s_and_b32 s39, s37, 7
    s_add_u32 s{sMb}, s38, s39
    s_lshr_b32 s{sType}, s36, 1
    s_lshr_b32 s{sNq}, s37, 3
    v_and_b32 v{vL}, 63, v0
    v_and_b32 v{vT}, 31, v{vL}
    v_lshrrev_b32 v{vH}, 5, v{vL}
    s_and_b32 s{sC}, s{sWave}, 3
    s_lshl_b32 s{sNb}, s{sType}, 2
    s_add_u32 s{sNb}, s{sNb}, s{sNq}
    s_lshl_b32 s{sBlk}, s{sMb}, 2
    s_add_u32 s{sBlk}, s{sBlk}, s{sC}
    s_lshl_b32 s{sXl}, s{sC}, 12
    s_movk_i32 s34, 1280
    s_cmp_eq_u32 s{sType}, 3
    s_cselect_b32 s{sLdw}, s34, 3840
    s_lshl_b32 s{sLdw64}, s{sLdw}, 6
    v_mov_b32 v{ones}, 0x3f803f80
    v_mov_b32 v{ones+1}, 0x3f803f80
    s_cmp_ge_u32 s{sWave}, 4
    s_cbranch_scc1 {Lload}
    ''')
    def srd_xw():
        k(f'''
        s_mul_i32 s34, s{sMb}, 163840
        s_add_u32 s4, s{pX}, s34
        s_addc_u32 s5, s{pX+1}, 0
        ''')
        srd(k, XS, 4, 5, 163840)
        Lw1 = k.label('w1'); Lwd = k.label('wd')
        k(f'''
        s_mul_i32 s35, s{sNq}, 320
        s_cmp_eq_u32 s{sType}, 3
        s_cbranch_scc1 {Lw1}
        s_mul_i32 s36, s{sType}, 1280
        s_add_u32 s35, s35, s36
        s_add_u32 s6, s{pQKV}, s35
        s_addc_u32 s7, s{pQKV+1}, 0
        s_sub_u32 s36, {640*3840}, s35
        s_branch {Lwd}
        {Lw1}:
        s_add_u32 s6, s{pW1}, s35
        s_addc_u32 s7, s{pW1+1}, 0
        s_sub_u32 s36, {640*1280}, s35
        {Lwd}:
        s_mov_b32 s{WS_}, s6
        s_and_b32 s{WS_+1}, s7, 0xffff
        s_mov_b32 s{WS_+2}, s36
        s_mov_b32 s{WS_+3}, 0x20000
        ''')
    def prefetch(half):
        if 'nopf' in dbg: return
        u0, u1, u2 = tmp+24, tmp+25, tmp+26
        def xpf(cidx):
            k(f'''
            v_mul_u32_u24 v{u0}, 52, v{vL}
            v_lshrrev_b32 v{u0}, 8, v{u0}
            v_mul_u32_u24 v{u1}, 5, v{u0}
            v_sub_u32 v{u1}, v{vL}, v{u1}
            s_lshl_b32 s34, s{sNq}, 5
            s_lshl_b32 s35, s{cidx}, 3
            s_add_u32 s34, s34, s35
            v_add_u32 v{u0}, s34, v{u0}
            v_mul_u32_u24 v{u0}, 1280, v{u0}
            v_lshl_add_u32 v{pfa}, v{u1}, 7, v{u0}
            s_mov_b32 exec_hi, 0xff
            s_mov_b32 s34, {640*half}
            buffer_load_dword v{dmy}, v{pfa}, s[{XS}:{XS+3}], s34 offen
            {f'buffer_load_dword v{dmy}, v{pfa}, s[{XS}:{XS+3}], s34 offen offset:64' if 'pf2' in dbg or 'pf4' in dbg else ''}
            {f'buffer_load_dword v{dmy}, v{pfa}, s[{XS}:{XS+3}], s34 offen offset:32' if 'pf4' in dbg else ''}
            {f'buffer_load_dword v{dmy}, v{pfa}, s[{XS}:{XS+3}], s34 offen offset:96' if 'pf4' in dbg else ''}
            s_mov_b64 exec, -1
            ''')
        def wpf(cidx):
            k(f'''
            s_mul_i32 s34, s{cidx}, 30
            v_add_u32 v{u0}, s34, v{vL}
            v_mul_u32_u24 v{u1}, 43, v{u0}
            v_lshrrev_b32 v{u1}, 7, v{u1}
            v_mul_u32_u24 v{u2}, 3, v{u1}
            v_sub_u32 v{u2}, v{u0}, v{u2}
            v_lshrrev_b32 v{u0}, 3, v{u1}
            v_and_b32 v{u1}, 7, v{u1}
            v_lshl_add_u32 v{u0}, v{u0}, 6, v{u1}
            s_and_b32 s34, s{sMb}, 7
            s_lshl_b32 s34, s34, 3
            v_add_u32 v{u0}, s34, v{u0}
            v_mul_lo_u32 v{u0}, v{u0}, s{sLdw}
            v_lshl_add_u32 v{pfa+1}, v{u2}, 7, v{u0}
            s_mov_b32 exec_lo, 0x3fffffff
            s_mov_b32 exec_hi, 0
            s_mul_i32 s34, s{sLdw}, {320*half}
            buffer_load_dword v{dmy+1}, v{pfa+1}, s[{WS_}:{WS_+3}], s34 offen
            {f'buffer_load_dword v{dmy+1}, v{pfa+1}, s[{WS_}:{WS_+3}], s34 offen offset:64' if 'pf2' in dbg or 'pf4' in dbg else ''}
            {f'buffer_load_dword v{dmy+1}, v{pfa+1}, s[{WS_}:{WS_+3}], s34 offen offset:32' if 'pf4' in dbg else ''}
            {f'buffer_load_dword v{dmy+1}, v{pfa+1}, s[{WS_}:{WS_+3}], s34 offen offset:96' if 'pf4' in dbg else ''}
            s_mov_b64 exec, -1
            ''')
        return xpf, wpf
    k(f'''
    v_lshrrev_b32 v{t0}, 1, v{vT}
    v_and_b32 v{t0}, 7, v{t0}
    v_lshlrev_b32 v{t1}, 7, v{vT}
    v_add_u32 v{t1}, s{sXl}, v{t1}
    ''')
    for ks in range(4):
        k(f'''
        v_add_u32 v{t2}, {2*ks}, v{vH}
        v_xor_b32 v{t2}, v{t2}, v{t0}
        v_lshlrev_b32 v{t2}, 4, v{t2}
        v_add_u32 v{vXa+ks}, v{t1}, v{t2}
        ''')
    k(f'''
    v_lshrrev_b32 v{t0}, 4, v{vL}
    v_and_b32 v{t1}, 15, v{vL}
    v_lshrrev_b32 v{t2}, 2, v{t1}
    v_and_b32 v{t1}, 3, v{t1}
    v_lshrrev_b32 v{t3}, 1, v{t0}
    v_lshlrev_b32 v{t3}, 3, v{t3}
    v_add_u32 v{t2}, v{t2}, v{t3}
    v_mul_u32_u24 v{t2}, 320, v{t2}
    v_and_b32 v{t0}, 1, v{t0}
    v_lshlrev_b32 v{t0}, 5, v{t0}
    v_lshlrev_b32 v{t1}, 3, v{t1}
    v_add3_u32 v{vW0}, v{t2}, v{t0}, v{t1}
    v_add_u32 v{vW0}, {LW}, v{vW0}
    v_add_u32 v{vW1}, 61440, v{vW0}
    ''')
    k('s_waitcnt lgkmcnt(0)')
    srd_xw()
    if 'nopf' not in dbg: prefetch(0)[0](sC)
    for r in list(range(aC, aC+20)) + list(range(cS, cS+4)) + list(range(cQ, cQ+4)): k(f'v_mov_b32 v{r}, 0')
    def reads(n):
        s, ks = divmod(n, 4)
        slot = s % 4; buf = n % 3
        out = [f'ds_read_b128 v[{Xf[buf]}:{Xf[buf]+3}], v{vXa+ks} offset:{slot*16384}']
        for t in range(5):
            for j in range(2):
                b_ = vW1 if slot == 3 else vW0
                off = (0 if slot == 3 else slot*20480) + (16*ks + 4*j)*320 + t*64
                r = Wf[buf] + 4*t + 2*j
                out.append(f'ds_read_b64_tr_b16 v[{r}:{r+1}], v{b_} offset:{off}')
        return out
    m4 = lambda d, a, b: f'v_mfma_f32_4x4x4_16b_bf16 v[{d}:{d+3}], v[{a}:{a+1}], v[{b}:{b+1}], v[{d}:{d+3}]'
    def main_loop(orient):
        k('s_barrier')
        if 'nopf' not in dbg:
            xp, wp = prefetch(1); xp(sC); wp(sC)
        if stamps: k(f's_memtime s[{80+2*st.n}:{81+2*st.n}]')
        for r in reads(0) + reads(1): k(r)
        for n in range(40):
            s, ks = divmod(n, 4)
            buf = n % 3
            if n == 2: k('s_barrier')
            if ks == 0 and s >= 1: k('s_barrier')
            nxt = reads(n + 2) if n + 2 < 40 else []
            k(f's_waitcnt lgkmcnt({11 if n + 1 < 40 else 0})')
            x = Xf[buf]
            sv = []
            if 'cstats' in dbg:
                for i in range(4):
                    lo, hi = cU + 2*(i & 1), cU + 2*(i & 1) + 1
                    sv += [f'v_lshlrev_b32 v{lo}, 16, v{x+i}', f'v_and_b32 v{hi}, 0xffff0000, v{x+i}',
                           f'v_add_f32 v{cS+(i&1)}, v{cS+(i&1)}, v{lo}', f'v_fmac_f32 v{cQ+(i&1)}, v{lo}, v{lo}',
                           f'v_add_f32 v{cS+2+(i&1)}, v{cS+2+(i&1)}, v{hi}', f'v_fmac_f32 v{cQ+2+(i&1)}, v{hi}, v{hi}']
            for t in range(5):
                w = Wf[buf] + 4*t; a = acc + 16*t
                c = '0' if n == 0 else f'v[{a}:{a+15}]'
                if orient == 'T':
                    k(f'v_mfma_f32_32x32x16_bf16 v[{a}:{a+15}], v[{w}:{w+3}], v[{x}:{x+3}], {c}')
                else:
                    k(f'v_mfma_f32_32x32x16_bf16 v[{a}:{a+15}], v[{x}:{x+3}], v[{w}:{w+3}], {c}')
                for _ in range(3 if t == 0 else 2):
                    if nxt: k(nxt.pop(0))
                for _ in range(5 if t < 4 else 4):
                    if sv: k(sv.pop(0))
            if 'nocs' in dbg: continue
            Ls = k.label('cs')
            k(f's_cmp_lg_u32 s{sC}, {ks}')
            k(f's_cbranch_scc1 {Ls}')
            for j in range(2):
                for t in range(5):
                    k(m4(aC + 4*t, ones, Wf[buf] + 4*t + 2*j))
            k(f'{Ls}:')
    LV = k.label('V'); Lep = k.label('ep')
    k(f's_cmp_eq_u32 s{sType}, 2')
    k(f's_cbranch_scc1 {LV}')
    main_loop('T')
    k(f's_branch {Lep}')
    k(f'{LV}:')
    main_loop('N')
    st.n += 1 if stamps else 0
    k(f'{Lep}:')
    st()
    if 'cstats' in dbg:
        mu, rr, var = tmp, tmp+1, tmp+2
        k(f'''
        v_add_f32 v{cS}, v{cS}, v{cS+1}
        v_add_f32 v{cS+2}, v{cS+2}, v{cS+3}
        v_add_f32 v{cQ}, v{cQ}, v{cQ+1}
        v_add_f32 v{cQ+2}, v{cQ+2}, v{cQ+3}
        v_add_f32 v{cS}, v{cS}, v{cS+2}
        v_add_f32 v{cQ}, v{cQ}, v{cQ+2}
        ''')
        cross_half_sum(k, cS, tmp+5); cross_half_sum(k, cQ, tmp+6)
        k(f'''
        v_mul_f32 v{mu}, {hx(f2u(1.0/640))}, v{cS}
        v_mul_f32 v{var}, {hx(f2u(1.0/640))}, v{cQ}
        v_fma_f32 v{var}, -v{mu}, v{mu}, v{var}
        v_max_f32 v{var}, 0, v{var}
        v_add_f32 v{rr}, {hx(f2u(EPS))}, v{var}
        v_rsq_f32 v{rr}, v{rr}
        v_lshlrev_b32 v{tmp+4}, 4, v{vT}
        s_lshl_b32 s34, s{sC}, 9
        s_add_u32 s34, s34, {STB}
        v_add_u32 v{tmp+4}, s34, v{tmp+4}
        v_mul_f32 v{tmp+3}, v{mu}, v{rr}
        ds_write_b96 v{tmp+4}, v[{mu}:{mu+2}]
        v_lshlrev_b32 v{tmp+4}, 2, v{vT}
        s_lshl_b32 s34, s{sC}, 7
        s_add_u32 s34, s34, {STR}
        v_add_u32 v{tmp+4}, s34, v{tmp+4}
        ds_write_b32 v{tmp+4}, v{rr}
        ds_write_b32 v{tmp+4}, v{tmp+3} offset:512
        ''')
        Lns = k.label('ns')
        k(f'''
        s_cmp_lg_u32 s{sNb}, 0
        s_cbranch_scc1 {Lns}
        s_lshl_b32 s34, s{sBlk}, 8
        s_add_u32 s34, s34, {ST1}
        v_lshlrev_b32 v{tmp+3}, 3, v{vT}
        s_mov_b32 exec_hi, 0
        buffer_store_dwordx2 v[{mu}:{mu+1}], v{tmp+3}, s[{OS}:{OS+3}], s34 offen
        s_mov_b64 exec, -1
        {Lns}:
        ''')
    for t in range(5): cross_half_sum(k, aC+4*t, aC+4*t+1)
    k(f'''
    s_mul_i32 s34, s{sC}, 640
    v_lshlrev_b32 v{tmp+4}, 2, v{vT}
    v_add_u32 v{tmp+4}, s34, v{tmp+4}
    v_add_u32 v{tmp+4}, {CSP}, v{tmp+4}
    ''')
    for t in range(5): k(f'ds_write_b32 v{tmp+4}, v{aC+4*t} offset:{t*128}')
    k('s_waitcnt lgkmcnt(0)')
    k('s_barrier')
    st()
    k(f'''
    v_lshlrev_b32 v{tmp+4}, 2, v{vL}
    v_add_u32 v{tmp+5}, {CSP}, v{tmp+4}
    v_add_u32 v{tmp+4}, s34, v{tmp+4}
    v_add_u32 v{tmp+4}, {CSF}, v{tmp+4}
    ''')
    for i in range(3):
        for w in range(4):
            k(f'ds_read_b32 v{aC+4*i+w}, v{tmp+5} offset:{w*640 + i*256}')
    k('s_waitcnt lgkmcnt(0)')
    for i in range(3):
        k(f'v_add_f32 v{aC+4*i}, v{aC+4*i}, v{aC+4*i+1}')
        k(f'v_add_f32 v{aC+4*i+2}, v{aC+4*i+2}, v{aC+4*i+3}')
    for i in range(3): k(f'v_add_f32 v{aC+4*i}, v{aC+4*i}, v{aC+4*i+2}')
    for i in range(2): k(f'ds_write_b32 v{tmp+4}, v{aC+4*i} offset:{i*256}')
    k('s_mov_b32 exec_hi, 0')
    k(f'ds_write_b32 v{tmp+4}, v{aC+8} offset:512')
    k('s_mov_b64 exec, -1')
    k(f's_add_u32 s34, s34, {CSF}')
    k('s_waitcnt lgkmcnt(0)')
    mu, rr, var = tmp, tmp+1, tmp+2
    LK, LVe, LH = k.label('eK'), k.label('eV'), k.label('eH')
    k(f'''
    s_cmp_eq_u32 s{sType}, 2
    s_cbranch_scc1 {LVe}
    v_lshlrev_b32 v{tmp+4}, 4, v{vT}
    s_lshl_b32 s39, s{sC}, 9
    s_add_u32 s39, s39, {STB}
    v_add_u32 v{tmp+4}, s39, v{tmp+4}
    ds_read_b96 v[{mu}:{mu+2}], v{tmp+4}
    ''')
    CS = Xf[0]
    assert Wf[0] == Xf[0] + 12 and aC == Wf[2] + 20
    vCsA = tmp+7
    k(f'''
    v_lshlrev_b32 v{vCsA}, 4, v{vH}
    v_add_u32 v{vCsA}, s34, v{vCsA}
    ''')
    for g in range(20):
        k(f'ds_read_b128 v[{CS+4*g}:{CS+4*g+3}], v{vCsA} offset:{(32*(g//4)+8*(g%4))*4}')
    k(f'''
    s_waitcnt lgkmcnt(15)
    s_cmp_eq_u32 s{sType}, 1
    s_cbranch_scc1 {LK}
    s_cmp_eq_u32 s{sType}, 3
    s_cbranch_scc1 {LH}
    ''')
    nmu2 = cst; r2 = cst+2
    def ln_all():
        k('s_waitcnt lgkmcnt(0)')
        for g in range(20):
            a = acc + 4*g; c = CS + 4*g
            for p in range(2):
                k(f'v_pk_fma_f32 v[{a+2*p}:{a+2*p+1}], v[{c+2*p}:{c+2*p+1}], v[{nmu2}:{nmu2+1}], v[{a+2*p}:{a+2*p+1}]')
        for g in range(20):
            a = acc + 4*g
            for p in range(2):
                k(f'v_pk_mul_f32 v[{a+2*p}:{a+2*p+1}], v[{a+2*p}:{a+2*p+1}], v[{r2}:{r2+1}]')
    def set_mu_r(rscale):
        k(f'''
        v_sub_f32 v{nmu2}, 0, v{mu}
        v_sub_f32 v{nmu2+1}, 0, v{mu}
        v_mul_f32 v{r2}, {hx(f2u(rscale))}, v{rr}
        v_mul_f32 v{r2+1}, {hx(f2u(rscale))}, v{rr}
        ''')
    def qk_epilogue(isK):
        sec = KF if isK else QF
        vA, vB, vC = cst+4, cst+5, cst+6
        set_mu_r(1.0 if isK else QSCALE)
        k(f'''
        v_lshlrev_b32 v{vA}, 4, v{vL}
        s_mov_b32 s35, {QK_HEAD}
        v_mul_lo_u32 v{vB}, v{vH}, s35
        v_lshl_add_u32 v{vB}, v{vT}, 4, v{vB}
        s_mul_i32 s35, s{sNq}, {8*QK_HEAD}
        s_mul_i32 s36, s{sBlk}, 1536
        s_add_u32 s35, s35, s36
        s_add_u32 s35, s35, {sec}
        ''')
        ln_all()
        for hp in range(4):
            G0 = 5*hp
            pkb = CS + 12*hp
            for which, (ga, gb) in enumerate(((G0, G0+1), (G0+3, G0+4))):
                p_ = pkb + 4*which
                for q_, g in enumerate((ga, gb)):
                    a_ = acc + 4*g
                    k(f'v_cvt_pk_bf16_f32 v{p_+2*q_}, v{a_}, v{a_+1}')
                    k(f'v_cvt_pk_bf16_f32 v{p_+2*q_+1}, v{a_+2}, v{a_+3}')
            a_ = acc + 4*(G0+2)
            k(f'v_cvt_pk_bf16_f32 v{pkb+8}, v{a_}, v{a_+1}')
            k(f'v_cvt_pk_bf16_f32 v{pkb+9}, v{a_+2}, v{a_+3}')
            for which in range(2):
                p_ = pkb + 4*which
                k(f'v_permlane32_swap_b32 v{p_}, v{p_+2}')
                k(f'v_permlane32_swap_b32 v{p_+1}, v{p_+3}')
            for which in range(2):
                p_ = pkb + 4*which
                k(f's_add_u32 s36, s35, {(2*hp+which)*QK_HEAD}')
                k(f'buffer_store_dwordx4 v[{p_}:{p_+3}], v{vA}, s[{OS}:{OS+3}], s36 offen')
            k(f's_add_u32 s36, s35, {2*hp*QK_HEAD + 1024}')
            k(f'buffer_store_dwordx2 v[{pkb+8}:{pkb+9}], v{vB}, s[{OS}:{OS+3}], s36 offen')
        if isK:
            M = CS + 48; g2 = CS + 56
            k(f'v_cmp_eq_u32 vcc, 1, v{vH}')
            for hp in range(4):
                pkb = CS + 12*hp
                se, so_, p2 = g2 + 4*(hp & 1), g2 + 4*(hp & 1) + 1, g2 + 4*(hp & 1) + 2
                for r, base_ in ((se, pkb), (so_, pkb + 4)):
                    k(f'v_mov_b32 v{r}, 0')
                    for i in range(4): k(f'v_dot2_f32_bf16 v{r}, v{base_+i}, v{base_+i}, v{r}')
                k(f'v_mov_b32 v{p2}, 0')
                for i in range(2): k(f'v_dot2_f32_bf16 v{p2}, v{pkb+8+i}, v{pkb+8+i}, v{p2}')
                cross_half_sum(k, se, p2 + 1); cross_half_sum(k, so_, p2 + 1)
                k(f'v_cndmask_b32 v{M+hp}, v{se}, v{so_}, vcc')
                k(f'v_add_f32 v{M+hp}, v{M+hp}, v{p2}')
            for mod in ('quad_perm:[1,0,3,2]', 'quad_perm:[2,3,0,1]', 'row_half_mirror', 'row_mirror'):
                for a_ in range(4):
                    k(f'v_max_f32_dpp v{M+a_}, v{M+a_}, v{M+a_} {mod} row_mask:0xf bank_mask:0xf')
            for a_ in range(4):
                k(f'v_mov_b32 v{g2+a_}, v{M+a_}')
                k(f'v_permlane16_swap_b32 v{M+a_}, v{g2+a_}')
                k(f'v_max_f32 v{M+a_}, v{M+a_}, v{g2+a_}')
            k(f'''
            s_lshl_b32 s36, s{sNq}, 11
            s_lshl_b32 s37, s{sBlk}, 2
            s_add_u32 s36, s36, s37
            s_add_u32 s36, s36, {KMAX}
            v_lshlrev_b32 v{tmp+3}, 8, v{vH}
            s_mov_b32 exec_lo, 1
            s_mov_b32 exec_hi, 1
            ''')
            for a_ in range(4):
                k(f'buffer_store_dword v{M+a_}, v{tmp+3}, s[{OS}:{OS+3}], s36 offen offset:{a_*512}')
        k(f's_branch {Lend}')
    def srd_out(): srd(k, OS, pWS, pWS+1, WS_USED)
    pos = len(k.l)
    qk_epilogue(False)
    k(f'{LK}:')
    qk_epilogue(True)
    k(f'{LH}:')
    cC0, cC1, cOne = cst+4, cst+6, cst+8
    dst = tmp+3
    k(f'''
    v_mul_f32 v{tmp+4}, v{rr}, v{rr}
    v_mul_f32 v{tmp+4}, v{tmp+4}, v{var}
    v_add_f32 v{tmp+4}, {hx(f2u(EPS))}, v{tmp+4}
    v_rsq_f32 v{tmp+4}, v{tmp+4}
    s_lshl_b32 s35, s{sBlk}, 5
    v_add_u32 v{dst}, s35, v{vT}
    s_and_b32 s36, s{sNq}, 1
    s_lshr_b32 s37, s{sNq}, 1
    s_add_u32 s37, s37, 1
    s_sub_u32 s38, 0, s37
    s_cmp_eq_u32 s36, 0
    s_cselect_b32 s37, s37, s38
    v_add_u32 v{dst}, s37, v{dst}
    v_mul_f32 v{rr}, v{rr}, v{tmp+4}
    v_cmp_gt_u32 vcc, 2048, v{dst}
    v_cndmask_b32 v{rr}, 0, v{rr}, vcc
    v_and_b32 v{dst}, 2047, v{dst}
    v_lshrrev_b32 v{tmp+4}, 4, v{dst}
    v_mul_u32_u24 v{tmp+4}, 20480, v{tmp+4}
    v_and_b32 v{dst}, 15, v{dst}
    v_lshlrev_b32 v{dst}, 4, v{dst}
    v_lshlrev_b32 v{tmp+5}, 8, v{vH}
    v_add3_u32 v{dst}, v{dst}, v{tmp+4}, v{tmp+5}
    s_mul_i32 s35, s{sNq}, 5120
    s_add_u32 s35, s35, {HS}
    s_add_u32 s36, s35, 4096
    v_mov_b32 v{cC0}, {hx(f2u(-GELU_C0))}
    v_mov_b32 v{cC0+1}, {hx(f2u(-GELU_C0))}
    v_mov_b32 v{cC1}, {hx(f2u(-GELU_C1))}
    v_mov_b32 v{cC1+1}, {hx(f2u(-GELU_C1))}
    v_mov_b32 v{cOne}, 1.0
    v_mov_b32 v{cOne+1}, 1.0
    ''')
    set_mu_r(1.0)
    ln_all()
    for g in range(20):
        t, j = divmod(g, 4)
        a = acc + 4*g
        g0 = CS + 8*(g & 3)
        gelu_pk(k, a, g0, g0+2, cC0, cC1, cOne)
        gelu_pk(k, a+2, g0+4, g0+6, cC0, cC1, cOne)
        p_ = CS + 40 + 4*((g >> 1) & 3) + 2*(g & 1)
        k(f'v_cvt_pk_bf16_f32 v{p_}, v{a}, v{a+1}')
        k(f'v_cvt_pk_bf16_f32 v{p_+1}, v{a+2}, v{a+3}')
        if g & 1:
            off = t*1024 + (j//2)*512
            so = 35
            if off >= 4096: off -= 4096; so = 36
            k(f'buffer_store_dwordx4 v[{p_-2}:{p_+1}], v{dst}, s[{OS}:{OS+3}], s{so} offen offset:{off}')
    k(f's_branch {Lend}')
    k(f'{LVe}:')
    rt = CS; mrt = CS + 16; csl = CS + 32; voff = CS + 40
    k(f'''
    s_lshl_b32 s35, s{sC}, 7
    s_add_u32 s35, s35, {STR}
    v_lshlrev_b32 v{tmp+5}, 4, v{vH}
    v_add_u32 v{tmp+5}, s35, v{tmp+5}
    v_lshlrev_b32 v{tmp+4}, 2, v{vT}
    v_add_u32 v{tmp+4}, s34, v{tmp+4}
    ''')
    for j in range(4):
        k(f'ds_read_b128 v[{rt+4*j}:{rt+4*j+3}], v{tmp+5} offset:{j*32}')
        k(f'ds_read_b128 v[{mrt+4*j}:{mrt+4*j+3}], v{tmp+5} offset:{512+j*32}')
    for t in range(5): k(f'ds_read_b32 v{csl+t}, v{tmp+4} offset:{t*128}')
    k(f'''
    s_mul_i32 s35, s{sNq}, {8*V_HEAD}
    s_mul_i32 s36, s{sBlk}, 1280
    s_add_u32 s35, s35, s36
    s_add_u32 s35, s35, {VF}
    s_mov_b32 s37, {V_HEAD}
    v_mul_u32_u24 v{voff+7}, 320, v{vH}
    ''')
    for t in range(5):
        k(f'''
        v_add_u32 v{voff+t}, {32*t}, v{vT}
        v_mul_u32_u24 v{voff+5}, 205, v{voff+t}
        v_lshrrev_b32 v{voff+5}, 12, v{voff+5}
        v_mul_u32_u24 v{voff+6}, 20, v{voff+5}
        v_sub_u32 v{voff+t}, v{voff+t}, v{voff+6}
        v_lshlrev_b32 v{voff+t}, 4, v{voff+t}
        v_mul_lo_u32 v{voff+5}, v{voff+5}, s37
        v_add3_u32 v{voff+t}, v{voff+t}, v{voff+5}, v{voff+7}
        ''')
    k('s_waitcnt lgkmcnt(0)')
    for t in range(5):
        for i in range(16):
            a = acc + 16*t + i
            k(f'v_mul_f32 v{a}, v{a}, v{rt+i}')
        for i in range(16):
            a = acc + 16*t + i
            k(f'v_fma_f32 v{a}, -v{mrt+i}, v{csl+t}, v{a}')
        for m in range(2):
            d = CS + 48 + 4*((2*t + m) & 3)
            for p in range(4):
                a = acc + 16*t + 8*m + 2*p
                k(f'v_cvt_pk_bf16_f32 v{d+p}, v{a}, v{a+1}')
            k(f'buffer_store_dwordx4 v[{d}:{d+3}], v{voff+t}, s[{OS}:{OS+3}], s35 offen offset:{m*640}')
    k(f's_branch {Lend}')
    k(f'{Lload}:')
    k('s_setprio 1')
    k(f'''
    s_mul_i32 s{sWl}, s{sC}, 5120
    s_add_u32 s{sWl}, s{sWl}, {LW}
    v_lshrrev_b32 v{t0}, 3, v{vL}
    s_lshl_b32 s34, s{sC}, 5
    v_add_u32 v{t0}, s34, v{t0}
    v_lshrrev_b32 v{t1}, 4, v{vL}
    v_and_b32 v{t2}, 7, v{vL}
    ''')
    for i in range(4):
        k(f'''
        v_add_u32 v{t3}, {8*i}, v{t0}
        v_mul_u32_u24 v{t3}, 1280, v{t3}
        v_add_u32 v{vXoff+i}, {4*(i&1)}, v{t1}
        v_xor_b32 v{vXoff+i}, v{vXoff+i}, v{t2}
        v_lshlrev_b32 v{vXoff+i}, 4, v{vXoff+i}
        v_add_u32 v{vXoff+i}, v{vXoff+i}, v{t3}
        ''')
    k(f's_mul_i32 s34, s{sC}, 320')
    for i in range(5):
        k(f'''
        v_add_u32 v{t0}, s34, v{vL}
        v_add_u32 v{t0}, {64*i}, v{t0}
        v_mul_u32_u24 v{t1}, 3277, v{t0}
        v_lshrrev_b32 v{t1}, 16, v{t1}
        v_mul_u32_u24 v{t2}, 20, v{t1}
        v_sub_u32 v{t2}, v{t0}, v{t2}
        v_lshlrev_b32 v{t2}, 4, v{t2}
        v_mul_lo_u32 v{t1}, v{t1}, s{sLdw}
        v_add_u32 v{vWoff+i}, v{t1}, v{t2}
        ''')
    k('s_waitcnt lgkmcnt(0)')
    srd_xw()
    if 'nopf' not in dbg: prefetch(0)[1](sC)
    def dma_list(s):
        slot = s % 4
        out = []
        pre = [f's_mov_b32 s{sXo}, {s*128}', f's_mul_i32 s{sWo}, s{sLdw64}, {s}']
        for i in range(4):
            out.append([f's_add_u32 m0, s{sXl}, {slot*16384 + i*1024}', f'buffer_load_dwordx4 v{vXoff+i}, s[{XS}:{XS+3}], s{sXo} offen {"nt" if "ntx" in dbg else ""} lds'])
        for i in range(5):
            out.append([f's_add_u32 m0, s{sWl}, {slot*20480 + i*1024}', f'buffer_load_dwordx4 v{vWoff+i}, s[{WS_}:{WS_+3}], s{sWo} offen {"nt" if "ntw" in dbg else ""} lds'])
        out[0] = pre + out[0]
        return out
    def dma_stage(s):
        for grp in dma_list(s):
            for l in grp: k(l)
    dma_stage(0); dma_stage(1)
    srd(k, OS, pWS, pWS+1, WS_USED)
    k(f'''
    v_lshrrev_b32 v{t0}, 1, v{vT}
    v_and_b32 v{t0}, 7, v{t0}
    v_lshlrev_b32 v{t1}, 7, v{vT}
    v_add_u32 v{t1}, s{sXl}, v{t1}
    ''')
    for i in range(4):
        k(f'''
        v_lshlrev_b32 v{t2}, 2, v{vH}
        v_add_u32 v{t2}, {i}, v{t2}
        v_xor_b32 v{t2}, v{t2}, v{t0}
        v_lshlrev_b32 v{t2}, 4, v{t2}
        v_add_u32 v{vSa+i}, v{t1}, v{t2}
        ''')
    for r in list(range(aS, aS+4)) + list(range(aQ, aQ+4)): k(f'v_mov_b32 v{r}, 0')
    Lnf = k.label('nf')
    k(f'''
    s_or_b32 s34, s{sNb}, s{sC}
    s_cmp_lg_u32 s34, 0
    s_cbranch_scc1 {Lnf}
    s_lshl_b32 s34, s{sMb}, 7
    s_add_u32 s34, s34, {FLAGA}
    s_add_u32 s35, s34, {FLAGB-FLAGA}
    v_lshlrev_b32 v{t0}, 2, v{vL}
    v_mov_b32 v{t1}, 0
    s_mov_b32 exec_hi, 0
    '''.replace('XX',''))
    k(f'''
    buffer_store_dword v{t1}, v{t0}, s[{OS}:{OS+3}], s34 offen
    buffer_store_dword v{t1}, v{t0}, s[{OS}:{OS+3}], s35 offen
    s_mov_b64 exec, -1
    s_waitcnt vmcnt(0)
    {Lnf}:
    ''')
    RP3 = 32768; RP16 = LW + 2*20480
    def repack_setup():
        L3 = k.label('rp3'); L16 = k.label('rp16'); La = k.label('rpa'); Lb = k.label('rpb'); Lc = k.label('rpc')
        u0, u1, u2 = tmp+20, tmp+21, tmp+22
        k(f'''
        s_cmp_lg_u32 s{sC}, 0
        s_cbranch_scc1 {L3}
        ''')
        srd(k, 76, pW3, pW3+1, 640*3072)
        for i in range(3):
            k(f'''
            v_add_u32 v{u0}, {64*i}, v{vL}
            v_mul_u32_u24 v{u1}, 5462, v{u0}
            v_lshrrev_b32 v{u1}, 16, v{u1}
            v_mul_u32_u24 v{u2}, 12, v{u1}
            v_sub_u32 v{u2}, v{u0}, v{u2}
            v_lshlrev_b32 v{u2}, 4, v{u2}
            v_mul_u32_u24 v{u1}, 3072, v{u1}
            v_add_u32 v{RPo+i}, v{u1}, v{u2}
            ''')
        k(f'''
        s_mul_i32 s69, s{sMb}, {16*3072}
        s_mul_i32 s70, s{sNb}, 192
        s_add_u32 s69, s69, s70
        s_branch {L16}
        {L3}:
        s_sub_u32 s68, s{sC}, 1
        s_lshl_b32 s68, s68, 8
        s_add_u32 s68, s68, s2
        s_cmp_lt_u32 s68, 704
        s_cselect_b32 s65, 1, 0
        s_mul_i32 s67, s68, 5120
        s_add_u32 s67, s67, {PW}
        s_cmp_lt_u32 s68, 320
        s_cbranch_scc0 {La}
        s_cmp_lt_u32 s68, 160
        s_cbranch_scc0 {Lb}
        s_mov_b32 s72, s{pW2}
        s_mov_b32 s73, s{pW2+1}
        s_branch {Lc}b
        {Lb}:
        s_sub_u32 s68, s68, 160
        s_mov_b32 s72, s{pWO}
        s_mov_b32 s73, s{pWO+1}
        {Lc}b:
        s_mul_i32 s69, s68, 3277
        s_lshr_b32 s69, s69, 16
        s_mul_i32 s70, s69, 20
        s_sub_u32 s70, s68, s70
        s_mov_b32 s74, {640*1280}
        s_branch {Lc}
        {La}:
        s_sub_u32 s68, s68, 320
        s_mov_b32 s72, s{pW4}
        s_mov_b32 s73, s{pW4+1}
        s_mul_i32 s69, s68, 1366
        s_lshr_b32 s69, s69, 16
        s_mul_i32 s70, s69, 48
        s_sub_u32 s70, s68, s70
        s_mov_b32 s74, {1536*1280}
        {Lc}:
        s_mul_i32 s70, s70, {32*1280}
        s_mul_i32 s69, s69, 160
        s_add_u32 s69, s69, s70
        s_mov_b32 s76, s72
        s_and_b32 s77, s73, 0xffff
        s_mov_b32 s78, s74
        s_mov_b32 s79, 0x20000
        s_sub_u32 s70, s{sC}, 1
        s_mul_i32 s70, s70, 5120
        s_add_u32 s70, s70, {RP16}
        ''')
        for i in range(5):
            k(f'''
            v_add_u32 v{u0}, {64*i}, v{vL}
            v_mul_u32_u24 v{u1}, 6554, v{u0}
            v_lshrrev_b32 v{u1}, 16, v{u1}
            v_mul_u32_u24 v{u2}, 10, v{u1}
            v_sub_u32 v{u2}, v{u0}, v{u2}
            v_lshlrev_b32 v{u2}, 4, v{u2}
            v_mul_u32_u24 v{u1}, 1280, v{u1}
            v_add_u32 v{RPo+i}, v{u1}, v{u2}
            ''')
        k(f'{L16}:')
    def repack_issue():
        L3 = k.label('ri3'); Lx_ = k.label('rix')
        k(f'''
        s_cmp_lg_u32 s{sC}, 0
        s_cbranch_scc1 {L3}
        ''')
        for j in range(3):
            if j == 2:
                k(f's_cmp_ge_u32 s{sMb}, 8')
                k(f's_cbranch_scc1 {Lx_}')
            for i in range(3):
                k(f's_mov_b32 m0, {RP3 + j*3072 + i*1024}')
                k(f'buffer_load_dwordx4 v{RPo+i}, s[76:79], s69 offen lds')
            k(f's_add_u32 s69, s69, {16*16*3072}')
        k(f'''
        s_branch {Lx_}
        {L3}:
        s_cmp_eq_u32 s65, 0
        s_cbranch_scc1 {Lx_}
        ''')
        for i in range(5):
            k(f's_add_u32 m0, s70, {i*1024}')
            k(f'buffer_load_dwordx4 v{RPo+i}, s[76:79], s69 offen lds')
        k(f'{Lx_}:')
    def stats(s, dmas=None):
        slot = s % 4; b = SX[s & 1]
        dmas = list(dmas or [])
        if 'cstats' in dbg:
            for grp in dmas:
                for l in grp: k(l)
            return
        for i in range(4):
            k(f'ds_read_b128 v[{b+4*i}:{b+4*i+3}], v{vSa+i} offset:{slot*16384}')
        if dmas:
            for l in dmas.pop(0): k(l)
        k('s_waitcnt lgkmcnt(0)')
        if 'nostats' in dbg:
            for grp in dmas:
                for l in grp: k(l)
            return
        for i in range(16):
            if dmas and i % 2 == 1:
                for l in dmas.pop(0): k(l)
            lo, hi = un + 2*(i & 3), un + 2*(i & 3) + 1
            k(f'v_lshlrev_b32 v{lo}, 16, v{b+i}')
            k(f'v_and_b32 v{hi}, 0xffff0000, v{b+i}')
            k(f'v_add_f32 v{aS+(i&1)}, v{aS+(i&1)}, v{lo}')
            k(f'v_fmac_f32 v{aQ+(i&1)}, v{lo}, v{lo}')
            k(f'v_add_f32 v{aS+2+(i&1)}, v{aS+2+(i&1)}, v{hi}')
            k(f'v_fmac_f32 v{aQ+2+(i&1)}, v{hi}, v{hi}')
    repack_setup()
    k('s_waitcnt vmcnt(9) lgkmcnt(0)')
    k('s_barrier')
    dma_stage(2)
    k('s_waitcnt vmcnt(9)')
    k('s_barrier')
    stats(0, dma_list(3))
    for s in range(1, 10):
        if s + 1 <= 9:
            later = [g for g in range(s + 2, min(s + 3, 10))]
            k(f's_waitcnt vmcnt({9*len(later)})')
        k('s_barrier')
        if 'lst' in dbg and s in (7, 8, 9): k(f's_memtime s[{80+2*(s-6)}:{81+2*(s-6)}]')
        stats(s, dma_list(s + 3) if (s + 3 <= 9 and 'nodma' not in dbg) else None)
        if s == 8: repack_issue()
    if 'lst' in dbg: k('s_memtime s[88:89]')
    if 'cstats' in dbg:
        k('s_barrier')
    else:
        mu, rr, var = tmp, tmp+1, tmp+2
        k(f'''
        v_add_f32 v{aS}, v{aS}, v{aS+1}
        v_add_f32 v{aS+2}, v{aS+2}, v{aS+3}
        v_add_f32 v{aQ}, v{aQ}, v{aQ+1}
        v_add_f32 v{aQ+2}, v{aQ+2}, v{aQ+3}
        v_add_f32 v{aS}, v{aS}, v{aS+2}
        v_add_f32 v{aQ}, v{aQ}, v{aQ+2}
        ''')
        cross_half_sum(k, aS, tmp+5); cross_half_sum(k, aQ, tmp+6)
        k(f'''
        v_mul_f32 v{mu}, {hx(f2u(1.0/640))}, v{aS}
        v_mul_f32 v{var}, {hx(f2u(1.0/640))}, v{aQ}
        v_fma_f32 v{var}, -v{mu}, v{mu}, v{var}
        v_max_f32 v{var}, 0, v{var}
        v_add_f32 v{rr}, {hx(f2u(EPS))}, v{var}
        v_rsq_f32 v{rr}, v{rr}
        v_lshlrev_b32 v{tmp+4}, 4, v{vT}
        s_lshl_b32 s34, s{sC}, 9
        s_add_u32 s34, s34, {STB}
        v_add_u32 v{tmp+4}, s34, v{tmp+4}
        v_mul_f32 v{tmp+3}, v{mu}, v{rr}
        ds_write_b96 v{tmp+4}, v[{mu}:{mu+2}]
        v_lshlrev_b32 v{tmp+4}, 2, v{vT}
        s_lshl_b32 s34, s{sC}, 7
        s_add_u32 s34, s34, {STR}
        v_add_u32 v{tmp+4}, s34, v{tmp+4}
        ds_write_b32 v{tmp+4}, v{rr}
        ds_write_b32 v{tmp+4}, v{tmp+3} offset:512
        s_waitcnt lgkmcnt(0)
        s_barrier
        ''')
        if 'lst' in dbg: k('s_memtime s[90:91]')
        Lns = k.label('ns')
        k(f'''
        s_cmp_lg_u32 s{sNb}, 0
        s_cbranch_scc1 {Lns}
        s_lshl_b32 s34, s{sBlk}, 8
        s_add_u32 s34, s34, {ST1}
        v_lshlrev_b32 v{tmp+3}, 3, v{vT}
        s_mov_b32 exec_hi, 0
        buffer_store_dwordx2 v[{mu}:{mu+1}], v{tmp+3}, s[{OS}:{OS+3}], s34 offen
        s_mov_b64 exec, -1
        {Lns}:
        ''')
    L16f = k.label('rf16'); Lx = k.label('rfx')
    t0, t1, t2, t3 = tmp+20, tmp+21, tmp+22, tmp+23
    k(f'''
    s_waitcnt vmcnt(0)
    s_cmp_lg_u32 s{sC}, 0
    s_cbranch_scc1 {L16f}
    v_lshrrev_b32 v{t0}, 4, v{vL}
    v_and_b32 v{t1}, 15, v{vL}
    v_lshrrev_b32 v{t2}, 2, v{t1}
    v_and_b32 v{t1}, 3, v{t1}
    v_lshrrev_b32 v{t3}, 1, v{t0}
    v_lshlrev_b32 v{t3}, 3, v{t3}
    v_add_u32 v{t2}, v{t2}, v{t3}
    v_mul_u32_u24 v{t2}, 192, v{t2}
    v_and_b32 v{t0}, 1, v{t0}
    v_lshlrev_b32 v{t0}, 5, v{t0}
    v_lshlrev_b32 v{t1}, 3, v{t1}
    v_add3_u32 v{t0}, v{t2}, v{t0}, v{t1}
    v_lshlrev_b32 v{t1}, 4, v{vL}
    ''')
    for ft in range(3): k(f'v_mov_b32 v{Fc+ft}, 0')
    for j in range(3):
        Lsk = k.label('rf3s')
        if j == 2:
            k(f's_cmp_ge_u32 s{sMb}, 8')
            k(f's_cbranch_scc1 {Lsk}')
        for ft in range(3):
            for jj in range(2):
                k(f'ds_read_b64_tr_b16 v[{F+4*ft+2*jj}:{F+4*ft+2*jj+1}], v{t0} offset:{RP3 + j*3072 + 4*jj*192 + ft*64}')
        k(f'''
        s_add_u32 s34, s{sMb}, {16*j}
        s_mul_i32 s35, s{sNb}, 40
        s_add_u32 s34, s34, s35
        s_mul_i32 s34, s34, 3072
        s_add_u32 s34, s34, {PW3}
        s_waitcnt lgkmcnt(0)
        ''')
        for ft in range(3):
            k(f'buffer_store_dwordx4 v[{F+4*ft}:{F+4*ft+3}], v{t1}, s[{OS}:{OS+3}], s34 offen offset:{ft*1024}')
        for ft in range(3):
            for i in range(4): k(f'v_dot2_f32_bf16 v{Fc+ft}, v{F+4*ft+i}, v{ones}, v{Fc+ft}')
        k('s_nop 1')
        k(f'{Lsk}:')
    for ft in range(3): cross_half_sum(k, Fc+ft, tmp+24+ft)
    k(f'''
    s_mul_i32 s34, s{sNb}, {16*384}
    s_mul_i32 s35, s{sMb}, 384
    s_add_u32 s34, s34, s35
    s_add_u32 s34, s34, {CS3P}
    v_lshlrev_b32 v{t0}, 2, v{vT}
    s_mov_b32 exec_hi, 0
    ''')
    for ft in range(3):
        k(f'buffer_store_dword v{Fc+ft}, v{t0}, s[{OS}:{OS+3}], s34 offen offset:{ft*128}')
    k(f'''
    s_branch {Lend}
    {L16f}:
    s_cmp_eq_u32 s65, 0
    s_cbranch_scc1 {Lend}
    v_lshrrev_b32 v{t3}, 4, v{vL}
    v_and_b32 v{t2}, 15, v{vL}
    v_lshrrev_b32 v{t0}, 1, v{t3}
    v_lshlrev_b32 v{t0}, 4, v{t0}
    v_and_b32 v{t1}, 1, v{t3}
    v_lshl_add_u32 v{t0}, v{t1}, 2, v{t0}
    v_lshrrev_b32 v{t1}, 2, v{t2}
    v_add_u32 v{t0}, v{t0}, v{t1}
    v_mul_u32_u24 v{t0}, 160, v{t0}
    v_and_b32 v{t1}, 3, v{t2}
    v_lshl_add_u32 v{t0}, v{t1}, 3, v{t0}
    s_sub_u32 s70, s{sC}, 1
    s_mul_i32 s70, s70, 5120
    s_add_u32 s70, s70, {RP16}
    v_add_u32 v{t0}, s70, v{t0}
    ''')
    for ft in range(5):
        for j in range(2):
            k(f'ds_read_b64_tr_b16 v[{F+4*ft+2*j}:{F+4*ft+2*j+1}], v{t0} offset:{j*1280 + ft*32}')
    k(f'''
    v_lshlrev_b32 v{t1}, 4, v{vL}
    s_add_u32 s70, s67, 4096
    s_waitcnt lgkmcnt(0)
    ''')
    for ft in range(5):
        so, off = (67, ft*1024) if ft < 4 else (70, 0)
        k(f'buffer_store_dwordx4 v[{F+4*ft}:{F+4*ft+3}], v{t1}, s[{OS}:{OS+3}], s{so} offen offset:{off}')
    k(f'{Lend}:')
    if stamps:
        Lx2 = k.label('x')
        k(f's_cmp_ge_u32 s2, 256')
        k(f's_cbranch_scc1 {Lx2}')
        k(f's_cmp_ge_u32 s{sWave}, 4')
        k(f's_cbranch_scc{0 if "lst" in dbg else 1} {Lx2}')
        if 'lst' in dbg:
            k(f's_and_b32 s{sWave}, s{sWave}, 3')
            st.n = 6
            k('s_waitcnt vmcnt(0)')
            k('s_memtime s[92:93]')
            st.n = 7
            st.dump(OS, sWave, tmp)
            k('s_endpgm')
            st.n = 5
        k('s_mov_b64 exec, -1')
        st()
        k('s_waitcnt vmcnt(0)')
        st()
        st.dump(OS, sWave, tmp)
        k(f'{Lx2}:')
    k('s_endpgm')
    idx = next(i for i, l in enumerate(k.l) if l.startswith(f'v_lshrrev_b32 v{t0-20}, 1, v{vT}'))
    ins = ['s_waitcnt lgkmcnt(0)', f's_mov_b32 s{OS}, s{pWS}', f's_and_b32 s{OS+1}, s{pWS+1}, 0xffff', f's_mov_b32 s{OS+2}, {WS_USED}', f's_mov_b32 s{OS+3}, 0x20000']
    k.l[idx:idx] = ins
    return k.finish(), kdesc(name, nv), nv, LDS_TOTAL

if __name__ == '__main__':
    t, d, nv, lds = gen_g1()
    print(nv, lds)
```

```python
from common import *

def body_g3(k, st=None, merged=False, rot=True):
    st = st or (lambda: None)
    SC = ' sc1' if merged else ''
    va = VA(1, 256)
    vL = va.alloc(); vT = va.alloc(); vH = va.alloc()
    vWoff = va.alloc(3, align=1); vXo = va.alloc(); vWr = va.alloc()
    acc = va.alloc(48, align=4)
    X = [va.alloc(16, align=4) for _ in range(4)]
    Wf = [va.alloc(12, align=4) for _ in range(3)]
    csp = va.alloc(16, align=4)
    ps = va.alloc(8, align=4)
    tmp = va.alloc(28, align=4)
    cst = va.alloc(12, align=2)
    nv = va.n
    WS, W3 = 8, 12
    sWave, sMb, sNb, sWl, sWo, sXo, sRot = 20, 21, 22, 23, 24, 25, 26
    CSB = 49152
    st()
    k(f'''
    s_load_dwordx2 s[4:5], s[0:1], {KA_WS}
    s_and_b32 s36, s2, 7
    s_lshr_b32 s37, s2, 3
    s_and_b32 s38, s36, 3
    s_lshl_b32 s38, s38, 2
    s_and_b32 s39, s37, 3
    s_add_u32 s{sMb}, s38, s39
    s_lshr_b32 s38, s36, 2
    s_lshl_b32 s38, s38, 3
    s_lshr_b32 s40, s37, 2
    s_add_u32 s{sNb}, s38, s40
    v_and_b32 v{vL}, 63, v0
    v_lshrrev_b32 v{tmp}, 6, v0
    v_and_b32 v{vT}, 31, v{vL}
    v_readfirstlane_b32 s{sWave}, v{tmp}
    v_lshrrev_b32 v{vH}, 5, v{vL}
    s_mul_i32 s41, s39, 5
    s_lshr_b32 s41, s41, 1
    s_add_u32 s41, s41, s40
    s_cmp_ge_u32 s41, 10
    s_cselect_b32 s42, 10, 0
    s_sub_u32 s{sRot}, s41, s42
    s_mul_i32 s{sRot}, s{sRot}, {1 if rot else 0}
    s_waitcnt lgkmcnt(0)
    ''')
    srd(k, WS, 4, 5, WS_USED)
    t0, t1, t2, t3 = tmp, tmp+1, tmp+2, tmp+3
    k(f'''
    s_mul_i32 s{sWl}, s{sWave}, 3072
    s_mul_i32 s41, s{sNb}, {40*3072}
    s_add_u32 s41, s41, s{sWl}
    s_add_u32 s57, s41, {PW3}
    ''')
    k(f'''
    v_lshlrev_b32 v{vXo}, 4, v{vL}
    s_lshl_b32 s43, s{sMb}, 2
    s_add_u32 s43, s43, s{sWave}
    s_mul_i32 s44, s43, {40*1024}
    s_add_u32 s44, s44, {X1F}
    ''')
    def stage_loads(s, dow=True, dox=True):
        slot = s % 4
        k(f'''
        s_add_u32 s45, s{sRot}, {s}
        s_cmp_ge_u32 s45, 10
        s_cselect_b32 s46, 10, 0
        s_sub_u32 s45, s45, s46
        s_mul_i32 s{sWo}, s45, 12288
        s_add_u32 s{sWo}, s{sWo}, s57
        s_lshl_b32 s45, s45, 12
        s_add_u32 s{sXo}, s44, s45
        ''')
        for i in range(3):
            if not dow: break
            k(f's_add_u32 m0, s{sWl}, {slot*12288 + i*1024}')
            k(f'buffer_load_dwordx4 v{vXo}, s[{WS}:{WS+3}], s{sWo} offen offset:{0} lds') if i == 0 else (k(f's_add_u32 s{sWo}, s{sWo}, 1024'), k(f'buffer_load_dwordx4 v{vXo}, s[{WS}:{WS+3}], s{sWo} offen lds'))
        for ks in range(4):
            if not dox: break
            r = X[slot] + 4*ks
            k(f'buffer_load_dwordx4 v[{r}:{r+3}], v{vXo}, s[{WS}:{WS+3}], s{sXo} offen offset:{ks*1024}{SC}')
    if merged:
        for s in range(4): stage_loads(s, dox=False)
        k(f's_lshl_b32 s53, s{sMb}, 7')
        k(f's_add_u32 s53, s53, {FLAGA}')
        wait_flags(k, WS, 53, sWave, tmp+8, 'wa')
        for s in range(4): stage_loads(s, dow=False)
    else:
        for s in range(4): stage_loads(s)
    k(f'''
    s_mul_i32 s45, s{sNb}, {16*384}
    s_mul_i32 s46, s{sWave}, 96
    s_add_u32 s45, s45, s46
    s_add_u32 s45, s45, {CS3P}
    v_lshlrev_b32 v{t0}, 2, v{vL}
    s_mov_b64 exec, 0xffffff
    ''')
    for i in range(16):
        if i*384 < 4096: k(f'buffer_load_dword v{csp+i}, v{t0}, s[{WS}:{WS+3}], s45 offen offset:{i*384}')
        else:
            if i == 11: k(f's_add_u32 s45, s45, 4096')
            k(f'buffer_load_dword v{csp+i}, v{t0}, s[{WS}:{WS+3}], s45 offen offset:{i*384-4096}')
    k(f'''
    s_mov_b64 exec, -1
    s_lshl_b32 s45, s43, 11
    s_add_u32 s45, s45, {PS}
    v_lshlrev_b32 v{t0}, 6, v{vT}
    v_lshl_add_u32 v{t0}, v{vH}, 5, v{t0}
    buffer_load_dwordx4 v[{ps}:{ps+3}], v{t0}, s[{WS}:{WS+3}], s45 offen{SC}
    buffer_load_dwordx4 v[{ps+4}:{ps+7}], v{t0}, s[{WS}:{WS+3}], s45 offen offset:16{SC}
    ''')
    NEX = 18
    st()
    def reads(n):
        s, ks = divmod(n, 4)
        out = []
        for t in range(3):
            r = Wf[n % 3] + 4*t
            out.append(f'ds_read_b128 v[{r}:{r+3}], v{vXo} offset:{(s%4)*12288 + (ks*3 + t)*1024}')
        return out
    k(f's_waitcnt vmcnt({(12 if merged else 21)+NEX})')
    k('s_barrier')
    st()
    for r in reads(0) + reads(1): k(r)
    for n in range(40):
        s, ks = divmod(n, 4)
        if ks == 2 and s < 9:
            order = ['s0','s1','s2','s3','ex'] + [f's{i}' for i in range(4, min(s+3, 10))]
            issued = [g for g in order if g in ('s0','s1','s2','s3','ex') or int(g[1:]) <= s + 2]
            idx = issued.index(f's{s+1}')
            rem = sum(NEX if g == 'ex' else (4 if (merged and int(g[1:]) <= 3) else 7) for g in issued[idx+1:])
            k(f's_waitcnt vmcnt({rem})')
            k('s_barrier')
            if s >= 1 and s + 3 <= 9: stage_loads(s + 3)
        nxt = reads(n+2) if n + 2 < 40 else []
        k(f's_waitcnt lgkmcnt({3 if n + 1 < 40 else 0})')
        x = X[s%4] + 4*ks
        for t in range(3):
            w = Wf[n % 3] + 4*t; a = acc + 16*t
            c = '0' if n == 0 else f'v[{a}:{a+15}]'
            k(f'v_mfma_f32_32x32x16_bf16 v[{a}:{a+15}], v[{w}:{w+3}], v[{x}:{x+3}], {c}')
            if nxt: k(nxt.pop(0))
    st()
    k('s_waitcnt vmcnt(0)')
    for step_ in (8, 4, 2, 1):
        for i in range(step_): k(f'v_add_f32 v{csp+i}, v{csp+i}, v{csp+i+step_}')
    k(f'''
    s_mul_i32 s45, s{sWave}, 96
    s_add_u32 s45, s45, {CSB}
    v_lshlrev_b32 v{t0}, 2, v{vL}
    v_add_u32 v{t0}, s45, v{t0}
    s_mov_b64 exec, 0xffffff
    ds_write_b32 v{t0}, v{csp}
    s_mov_b64 exec, -1
    ''')
    sS, sQ = ps, ps+1
    k(f'''
    v_add_f32 v{ps}, v{ps}, v{ps+2}
    v_add_f32 v{ps+1}, v{ps+1}, v{ps+3}
    v_add_f32 v{ps+4}, v{ps+4}, v{ps+6}
    v_add_f32 v{ps+5}, v{ps+5}, v{ps+7}
    v_add_f32 v{ps}, v{ps}, v{ps+4}
    v_add_f32 v{ps+1}, v{ps+1}, v{ps+5}
    ''')
    cross_half_sum(k, sS, tmp+5); cross_half_sum(k, sQ, tmp+6)
    mu, rr, var = tmp, tmp+1, tmp+2
    nmu2, r2, cC0, cC1, cOne = cst, cst+2, cst+4, cst+6, cst+8
    k(f'''
    v_mul_f32 v{mu}, {hx(f2u(1.0/640))}, v{sS}
    v_mul_f32 v{var}, {hx(f2u(1.0/640))}, v{sQ}
    v_fma_f32 v{var}, -v{mu}, v{mu}, v{var}
    v_max_f32 v{var}, 0, v{var}
    v_add_f32 v{rr}, {hx(f2u(EPS))}, v{var}
    v_rsq_f32 v{rr}, v{rr}
    v_sub_f32 v{nmu2}, 0, v{mu}
    v_sub_f32 v{nmu2+1}, 0, v{mu}
    v_mov_b32 v{r2}, v{rr}
    v_mov_b32 v{r2+1}, v{rr}
    v_mov_b32 v{cC0}, {hx(f2u(-GELU_C0))}
    v_mov_b32 v{cC0+1}, {hx(f2u(-GELU_C0))}
    v_mov_b32 v{cC1}, {hx(f2u(-GELU_C1))}
    v_mov_b32 v{cC1+1}, {hx(f2u(-GELU_C1))}
    v_mov_b32 v{cOne}, 1.0
    v_mov_b32 v{cOne+1}, 1.0
    ''')
    dst = tmp+3
    k(f'''
    s_lshl_b32 s45, s43, 5
    v_add_u32 v{dst}, s45, v{vT}
    v_lshrrev_b32 v{tmp+4}, 4, v{dst}
    s_mov_b32 s46, {NK4*1024}
    v_mul_lo_u32 v{tmp+4}, v{tmp+4}, s46
    v_and_b32 v{dst}, 15, v{dst}
    v_lshlrev_b32 v{dst}, 4, v{dst}
    v_lshlrev_b32 v{tmp+5}, 8, v{vH}
    v_add3_u32 v{dst}, v{dst}, v{tmp+4}, v{tmp+5}
    s_mul_i32 s45, s{sNb}, 3072
    s_add_u32 s45, s45, {A4 + 20*1024}
    v_lshlrev_b32 v{tmp+7}, 4, v{vH}
    v_add_u32 v{tmp+7}, {CSB}, v{tmp+7}
    s_waitcnt lgkmcnt(0)
    s_barrier
    ''')
    csr = X[0]
    for t in range(3):
        for j in range(4):
            r = csr + 4*(4*t + j)
            k(f'ds_read_b128 v[{r}:{r+3}], v{tmp+7} offset:{(32*t+8*j)*4}')
    k('s_waitcnt lgkmcnt(0)')
    g0, g1 = tmp+8, tmp+10
    pk = tmp+24
    for t in range(3):
        for j in range(4):
            a = acc + 16*t + 4*j; c = csr + 4*(4*t + j)
            for p in range(2):
                k(f'v_pk_fma_f32 v[{a+2*p}:{a+2*p+1}], v[{c+2*p}:{c+2*p+1}], v[{nmu2}:{nmu2+1}], v[{a+2*p}:{a+2*p+1}]')
            for p in range(2):
                k(f'v_pk_mul_f32 v[{a+2*p}:{a+2*p+1}], v[{a+2*p}:{a+2*p+1}], v[{r2}:{r2+1}]')
            gelu_pk(k, a, g0, g1, cC0, cC1, cOne)
            gelu_pk(k, a+2, g0+4, g1+4, cC0, cC1, cOne)
            p_ = pk + 2*((4*t+j) & 1)
            k(f'v_cvt_pk_bf16_f32 v{p_}, v{a}, v{a+1}')
            k(f'v_cvt_pk_bf16_f32 v{p_+1}, v{a+2}, v{a+3}')
            k(f'buffer_store_dwordx2 v[{p_}:{p_+1}], v{dst}, s[{WS}:{WS+3}], s45 offen offset:{t*1024 + (j//2)*512 + (j%2)*8}{SC}')
    if merged:
        k(f'''
        s_lshl_b32 s53, s{sMb}, 7
        s_lshl_b32 s47, s{sNb}, 2
        s_add_u32 s53, s53, s47
        s_add_u32 s53, s53, {FLAGB}
        ''')
        publish(k, WS, 53, sWave, tmp, 'pb')
    return nv, WS, sWave, tmp

def gen_g3(name='g3_kernel', stamps=False):
    k = K(name)
    st = Stamps(k, stamps)
    Lend = k.label('end')
    k('s_cmp_ge_u32 s2, 256')
    k(f's_cbranch_scc1 {Lend}')
    nv, WS, sWave, tmp = body_g3(k, st)
    if stamps:
        k('s_waitcnt vmcnt(0)')
        st()
        st.dump(WS, sWave, tmp)
    k(f'{Lend}:')
    k('s_endpgm')
    return k.finish(), kdesc(name, nv), nv

if __name__ == '__main__':
    t, d, nv = gen_g3()
    print(nv)
```

```python
from common import *

def body_gs(k, mode, st=None, merged=False, rot=True):
    st = st or (lambda: None)
    va = VA(1, 256)
    vL = va.alloc(); vT16 = va.alloc(); vG = va.alloc()
    vXo = va.alloc(4); vWo = va.alloc()
    acc = va.alloc(80, align=4)
    NB = 3
    X = [va.alloc(16, align=4) for _ in range(NB)]
    W = [va.alloc(20, align=4) for _ in range(NB)]
    ex = va.alloc(20, align=4)
    e1 = va.alloc(10, align=2)
    stt = va.alloc(2, align=2)
    tmp = va.alloc(12, align=4)
    nv = va.n
    WS, XS, OUT = 8, 24, 28
    sWave, sMt, sNt, sAo, sWo, sLw, sRot, sW2 = 20, 21, 22, 23, 32, 33, 34, 35
    SC = ' sc1' if merged else ''
    if mode == 'g2':   abase, nk, ks0, n, ubase, upern, asc = HS, 20, 0, 5, PW_W2, 20, ''
    elif mode == 'g4a': abase, nk, ks0, n, ubase, upern, asc = A4, NK4, 0, 5, PW_WO, 20, ''
    else:              abase, nk, ks0, n, ubase, upern, asc = A4, NK4, 20, 12, PW_W4, 48, SC
    st()
    k(f's_load_dwordx2 s[4:5], s[0:1], {KA_WS}')
    if mode != 'g4a': k(f's_load_dwordx2 s[40:41], s[0:1], {KA_X}')
    else: k(f's_load_dwordx2 s[44:45], s[0:1], {KA_OUT}')
    k(f'''
    s_and_b32 s36, s2, 7
    s_lshr_b32 s37, s2, 3
    s_and_b32 s38, s36, 3
    s_lshl_b32 s38, s38, 3
    s_and_b32 s39, s37, 7
    s_add_u32 s{sMt}, s38, s39
    s_lshr_b32 s38, s36, 2
    s_lshl_b32 s38, s38, 2
    s_lshr_b32 s46, s37, 3
    s_add_u32 s{sNt}, s38, s46
    v_and_b32 v{vL}, 63, v0
    v_lshrrev_b32 v{tmp}, 6, v0
    v_and_b32 v{vT16}, 15, v{vL}
    v_readfirstlane_b32 s{sWave}, v{tmp}
    v_lshrrev_b32 v{vG}, 4, v{vL}
    v_lshlrev_b32 v{vWo}, 4, v{vL}
    ''')
    if rot:
        if n == 5:
            k(f'''
            s_add_u32 s47, s39, s46
            s_mul_i32 s48, s47, 52
            s_lshr_b32 s48, s48, 8
            s_mul_i32 s48, s48, 5
            s_sub_u32 s{sRot}, s47, s48
            ''')
        else:
            k(f'''
            s_mul_i32 s47, s46, 3
            s_add_u32 s47, s47, s39
            s_cmp_ge_u32 s47, 12
            s_cselect_b32 s48, 12, 0
            s_sub_u32 s{sRot}, s47, s48
            ''')
    else:
        k(f's_mov_b32 s{sRot}, 0')
    t0, t1, t2 = tmp, tmp+1, tmp+2
    for a in range(4):
        k(f'''
        s_add_u32 s47, s{sWave}, {a}
        s_and_b32 s47, s47, 3
        s_mul_i32 s47, s47, {nk*1024}
        v_add_u32 v{vXo+a}, s47, v{vWo}
        ''')
    k(f'''
    s_mul_i32 s{sLw}, s{sWave}, 15360
    s_mul_i32 s56, s{sMt}, {4*nk}
    s_add_u32 s56, s56, {ks0}
    s_lshl_b32 s56, s56, 10
    s_add_u32 s56, s56, {abase}
    s_mul_i32 s57, s{sNt}, {upern}
    s_add_u32 s57, s57, {ubase}
    s_mul_i32 s57, s57, 5120
    s_add_u32 s57, s57, {PW}
    s_waitcnt lgkmcnt(0)
    ''')
    srd(k, WS, 4, 5, WS_USED)
    if mode != 'g4a': srd(k, XS, 40, 41, 2048*1280)
    else: srd(k, OUT, 44, 45, 2048*1280)
    def offsets(s):
        k(f'''
        s_add_u32 s47, s{sRot}, {s}
        s_cmp_ge_u32 s47, {n}
        s_cselect_b32 s48, {n}, 0
        s_sub_u32 s47, s47, s48
        s_lshl_b32 s47, s47, 2
        s_add_u32 s47, s47, s{sWave}
        s_mul_i32 s{sWo}, s47, 5120
        s_add_u32 s{sWo}, s{sWo}, s57
        s_add_u32 s{sW2}, s{sWo}, 4096
        s_lshl_b32 s47, s47, 10
        s_add_u32 s{sAo}, s47, s56
        ''')
    def wload1(s, ft):
        r = W[s % NB] + 4*ft
        so, off = (sWo, ft*1024) if ft < 4 else (sW2, 0)
        k(f'buffer_load_dwordx4 v[{r}:{r+3}], v{vWo}, s[{WS}:{WS+3}], s{so} offen offset:{off}')
    def xload1(s, a):
        r = X[s % NB] + 4*a
        k(f'buffer_load_dwordx4 v[{r}:{r+3}], v{vXo+a}, s[{WS}:{WS+3}], s{sAo} offen{asc}')
    need_wait = merged and mode == 'g4b'
    if need_wait:
        for s in range(2):
            offsets(s)
            for i in range(5): wload1(s, i)
        k(f'''
        s_lshr_b32 s53, s{sMt}, 1
        s_lshl_b32 s53, s53, 7
        s_add_u32 s53, s53, {FLAGB}
        ''')
        wait_flags(k, WS, 53, sWave, tmp+8, 'wb')
        for s in range(2):
            offsets(s)
            for a in range(4): xload1(s, a)
    else:
        for s in range(2):
            offsets(s)
            for i in range(5): wload1(s, i)
            for a in range(4): xload1(s, a)
    st()
    vtok, vx1, vxo, vpre = tmp+4, tmp+5, tmp+6, tmp+7
    k(f'''
    s_lshl_b32 s47, s{sMt}, 6
    s_lshl_b32 s48, s{sWave}, 4
    s_add_u32 s47, s47, s48
    v_add_u32 v{vtok}, s47, v{vT16}
    v_mul_u32_u24 v{vxo}, 1280, v{vtok}
    v_lshl_add_u32 v{vxo}, v{vG}, 3, v{vxo}
    s_mul_i32 s49, s{sNt}, 160
    s_lshl_b32 s54, s2, 2
    s_add_u32 s54, s54, s{sWave}
    s_mul_i32 s54, s54, 5120
    s_add_u32 s54, s54, {PRE}
    s_add_u32 s55, s54, 4096
    v_lshrrev_b32 v{t0}, 5, v{vtok}
    v_mul_u32_u24 v{t0}, {40*1024}, v{t0}
    v_and_b32 v{t1}, 31, v{vtok}
    v_lshrrev_b32 v{t2}, 1, v{vG}
    v_lshl_add_u32 v{t1}, v{t2}, 5, v{t1}
    v_lshl_add_u32 v{t0}, v{t1}, 4, v{t0}
    v_and_b32 v{t1}, 1, v{vG}
    v_lshl_add_u32 v{vx1}, v{t1}, 3, v{t0}
    s_mul_i32 s50, s{sNt}, 5120
    s_add_u32 s50, s50, {X1F}
    s_add_u32 s51, s50, 4096
    ''')
    def extra_loads():
        ne = 0
        if mode != 'g4a':
            for ft in range(5):
                k(f'buffer_load_dwordx2 v[{ex+2*ft}:{ex+2*ft+1}], v{vxo}, s[{XS}:{XS+3}], s49 offen offset:{ft*32}')
            ne += 5
        else:
            for ft in range(5):
                so, off = (54, ft*1024) if ft < 4 else (55, 0)
                k(f'buffer_load_dwordx4 v[{ex+4*ft}:{ex+4*ft+3}], v{vWo}, s[{WS}:{WS+3}], s{so} offen offset:{off}')
            ne += 5
        if mode == 'g2':
            k(f'''
            v_lshlrev_b32 v{t0}, 3, v{vtok}
            s_mov_b32 s52, {ST1}
            buffer_load_dwordx2 v[{stt}:{stt+1}], v{t0}, s[{WS}:{WS+3}], s52 offen
            ''')
            ne += 1
        elif mode == 'g4b':
            for ft in range(5):
                so, off = (50, ft*1024) if ft < 4 else (51, 0)
                k(f'buffer_load_dwordx2 v[{e1+2*ft}:{e1+2*ft+1}], v{vx1}, s[{WS}:{WS+3}], s{so} offen offset:{off}{SC}')
            ne += 5
        return ne
    log = []
    if need_wait: log += [('w',0)]*5 + [('w',1)]*5 + [('x',0)]*4 + [('x',1)]*4
    else: log += [('a',0)]*9 + [('a',1)]*9
    for s in range(n):
        last = max(i for i, (t, q) in enumerate(log) if q == s and t != 'e')
        k(f's_waitcnt vmcnt({len(log) - 1 - last})')
        more = s + 2 < n
        ld = []
        if more:
            offsets(s + 2)
            ld = [('w', i) for i in range(5)] + [('x', a) for a in range(4)]
        cnt = 0
        for a in range(4):
            for ft in range(5):
                d = acc + 4*(5*a + ft); x = X[s % NB] + 4*a; w = W[s % NB] + 4*ft
                c = '0' if s == 0 else f'v[{d}:{d+3}]'
                k(f'v_mfma_f32_16x16x32_bf16 v[{d}:{d+3}], v[{w}:{w+3}], v[{x}:{x+3}], {c}')
                cnt += 1
                if ld and cnt % 2 == 0:
                    t, i = ld.pop(0)
                    (wload1 if t == 'w' else xload1)(s + 2, i)
                    log.append(('a', s + 2))
        if s == max(0, n - 3):
            ne = extra_loads(); log += [('e', -1)] * ne
    st()
    wa = tmp+8
    k('s_barrier') if merged else None
    for a in range(1, 4):
        k(f'''
        s_add_u32 s47, s{sWave}, {a}
        s_and_b32 s47, s47, 3
        s_mul_i32 s47, s47, 15360
        s_add_u32 s47, s47, {(a-1)*5120}
        v_add_u32 v{wa}, s47, v{vWo}
        ''')
        for ft in range(5):
            d = acc + 4*(5*a + ft)
            k(f'ds_write_b128 v{wa}, v[{d}:{d+3}] offset:{ft*1024}')
    k(f'''
    v_add_u32 v{wa}, s{sLw}, v{vWo}
    s_waitcnt lgkmcnt(0)
    s_barrier
    ''')
    R = acc + 20
    for sl in range(3):
        for ft in range(5):
            d = R + 20*sl + 4*ft
            k(f'ds_read_b128 v[{d}:{d+3}], v{wa} offset:{sl*5120 + ft*1024}')
    k('s_waitcnt vmcnt(0) lgkmcnt(0)')
    for i in range(20):
        k(f'v_add_f32 v{R+i}, v{R+i}, v{R+20+i}')
        k(f'v_add_f32 v{acc+i}, v{acc+i}, v{R+40+i}')
    for i in range(20): k(f'v_add_f32 v{acc+i}, v{acc+i}, v{R+i}')
    u = X[0]
    def unpack(src, dst):
        k(f'v_lshlrev_b32 v{dst}, 16, v{src}')
        k(f'v_and_b32 v{dst+1}, 0xffff0000, v{src}')
        k(f'v_lshlrev_b32 v{dst+2}, 16, v{src+1}')
        k(f'v_and_b32 v{dst+3}, 0xffff0000, v{src+1}')
    if mode == 'g2':
        sS, sQ = X[1], X[1]+1
        nmr = X[1]+2
        k(f'v_mul_f32 v{nmr}, v{stt}, v{stt+1}')
        k(f'v_mov_b32 v{sS}, 0'); k(f'v_mov_b32 v{sQ}, 0')
        for ft in range(5):
            unpack(ex+2*ft, u)
            for i in range(4):
                a_ = acc + 4*ft + i
                k(f'v_fma_f32 v{u+i}, v{u+i}, v{stt+1}, -v{nmr}')
                k(f'v_add_f32 v{a_}, v{a_}, v{u+i}')
            pk = X[2] + 2*ft
            k(f'v_cvt_pk_bf16_f32 v{pk}, v{acc+4*ft}, v{acc+4*ft+1}')
            k(f'v_cvt_pk_bf16_f32 v{pk+1}, v{acc+4*ft+2}, v{acc+4*ft+3}')
            so, off = (50, ft*1024) if ft < 4 else (51, 0)
            k(f'buffer_store_dwordx2 v[{pk}:{pk+1}], v{vx1}, s[{WS}:{WS+3}], s{so} offen offset:{off}{SC}')
            unpack(pk, u)
            for i in range(4):
                k(f'v_add_f32 v{sS}, v{sS}, v{u+i}')
                k(f'v_fmac_f32 v{sQ}, v{u+i}, v{u+i}')
        for r in (sS, sQ):
            k(f'v_mov_b32 v{u}, v{r}')
            k(f'v_permlane16_swap_b32 v{r}, v{u}')
            k(f'v_add_f32 v{r}, v{r}, v{u}')
            k(f'v_mov_b32 v{u}, v{r}')
            k(f'v_permlane32_swap_b32 v{r}, v{u}')
            k(f'v_add_f32 v{r}, v{r}, v{u}')
        k(f'''
        v_lshlrev_b32 v{u}, 6, v{vtok}
        s_lshl_b32 s47, s{sNt}, 3
        s_add_u32 s47, s47, {PS}
        s_mov_b64 exec, 0xffff
        buffer_store_dwordx2 v[{sS}:{sS+1}], v{u}, s[{WS}:{WS+3}], s47 offen{SC}
        s_mov_b64 exec, -1
        ''')
        if merged:
            k(f'''
            s_lshr_b32 s53, s{sMt}, 1
            s_lshl_b32 s53, s53, 7
            s_and_b32 s47, s{sMt}, 1
            s_lshl_b32 s47, s47, 3
            s_add_u32 s47, s47, s{sNt}
            s_lshl_b32 s47, s47, 2
            s_add_u32 s53, s53, s47
            s_add_u32 s53, s53, {FLAGA}
            ''')
            publish(k, WS, 53, sWave, u, 'pa')
    elif mode == 'g4b':
        u2 = X[0] + 4
        for ft in range(5):
            unpack(ex+2*ft, u); unpack(e1+2*ft, u2)
            for i in range(4):
                a_ = acc + 4*ft + i
                k(f'v_add_f32 v{u+i}, v{u+i}, v{u2+i}')
                k(f'v_add_f32 v{a_}, v{a_}, v{u+i}')
            so, off = (54, ft*1024) if ft < 4 else (55, 0)
            k(f'buffer_store_dwordx4 v[{acc+4*ft}:{acc+4*ft+3}], v{vWo}, s[{WS}:{WS+3}], s{so} offen offset:{off}')
    else:
        for ft in range(5):
            for i in range(4):
                a_ = acc + 4*ft + i
                k(f'v_add_f32 v{a_}, v{a_}, v{ex+4*ft+i}')
            pk = X[2] + 2*ft
            k(f'v_cvt_pk_bf16_f32 v{pk}, v{acc+4*ft}, v{acc+4*ft+1}')
            k(f'v_cvt_pk_bf16_f32 v{pk+1}, v{acc+4*ft+2}, v{acc+4*ft+3}')
            k(f'buffer_store_dwordx2 v[{pk}:{pk+1}], v{vxo}, s[{OUT}:{OUT+3}], s49 offen offset:{ft*32}')
    return nv, WS, sWave, tmp

def gen_gs(name, mode, stamps=False):
    k = K(name)
    st = Stamps(k, stamps)
    Lend = k.label('end')
    k('s_cmp_ge_u32 s2, 256')
    k(f's_cbranch_scc1 {Lend}')
    nv, WS, sWave, tmp = body_gs(k, mode, st)
    if stamps:
        k('s_waitcnt vmcnt(0)')
        st()
        st.dump(WS, sWave, tmp)
    k(f'{Lend}:')
    k('s_endpgm')
    return k.finish(), kdesc(name, nv), nv

if __name__ == '__main__':
    for m in ('g2', 'g4a', 'g4b'):
        t, d, nv = gen_gs(m + '_kernel', m)
        print(m, nv)
```

```python
from common import *
import att, gs, g3
def gen_l2(name='l2_kernel', stamps=None, force_slow=False, prio=2, dbg=()):
    k = K(name)
    Lend = k.label('end'); Latt = k.label('att')
    k('s_cmp_ge_u32 s2, 512')
    k(f's_cbranch_scc1 {Lend}')
    k('s_cmp_ge_u32 s2, 256')
    k(f's_cbranch_scc1 {Latt}')
    if 'prio0' in dbg: prio = 0
    if 'nomix' in dbg: k('s_endpgm')
    if prio: k(f's_setprio {prio}')
    stm = Stamps(k, stamps == 'mix')
    dummy = lambda: None
    stm()
    n1, WS, sWave, tmp = gs.body_gs(k, 'g2', None, merged=True)
    stm()
    n2, _, _, _ = g3.body_g3(k, None, merged=True)
    stm()
    n3, WS, sWave, tmp = gs.body_gs(k, 'g4b', None, merged=True)
    if stamps == 'mix':
        k('s_waitcnt vmcnt(0)')
        stm()
        stm.dump(WS, sWave, tmp)
    k('s_endpgm')
    k(f'{Latt}:')
    k('s_sub_u32 s2, s2, 256')
    sta = Stamps(k, stamps == 'att')
    n4, WS, sWave, tmp = att.body_att(k, sta, force_slow, dbg)
    if stamps == 'att':
        k('s_waitcnt vmcnt(0)')
        sta()
        sta.dump(WS, sWave, tmp)
    k(f'{Lend}:')
    k('s_endpgm')
    nv = max(n1, n2, n3, n4)
    return k.finish(), kdesc(name, nv), nv
if __name__ == '__main__':
    print(gen_l2()[2])
```

```python
import sys, importlib
sys.path.insert(0, 'gen')
from common import *
HEADER = open('parallel_sum__mha_block__mixer_s_mlp__prompt.s.ref').read().split('; Override launch geometry')[0]
def build(launches, path):
    s = HEADER
    for (name, txt, desc, grid, block, lds) in launches:
        s += f'; @launch kernel={name} grid=({grid},1,1) block=({block},1,1) lds={lds}\n'
    s += '.amdgcn_target "amdgcn-amd-amdhsa--gfx950"\n.text\n'
    seen = set()
    for (name, txt, desc, grid, block, lds) in launches:
        if name in seen: continue
        seen.add(name)
        s += txt + desc
    open(path, 'w').write(s)
    return s
if __name__ == '__main__':
    import g1, att, gs, g3, l2
    A = sys.argv
    L = []
    if 'oldg1' in A:
        t, d, nv = g1.gen_g1(stamps=('stamps' in A), dbg=[a[4:] for a in A if a.startswith('dbg_')]); L.append(('g1_kernel', t, d, 256, 256, 149504))
    else:
        import g1v3
        t, d, nv, lds = g1v3.gen_g1(stamps=('stamps' in A), dbg=[a[4:] for a in A if a.startswith('dbg_')]); L.append(('g1_kernel', t, d, 256, 512, lds))
    if 'sep' in A:
        t, d, nv = att.gen_att(stamps=('stamps_att' in A), force_slow=('slow' in A)); L.append(('att_kernel', t, d, 256, 256, 49152))
        t, d, nv = gs.gen_gs('g2_kernel', 'g2', stamps=('stamps_g2' in A)); L.append(('g2_kernel', t, d, 256, 256, 61440))
        t, d, nv = g3.gen_g3(stamps=('stamps_g3' in A)); L.append(('g3_kernel', t, d, 256, 256, 49152+512))
        t, d, nv = gs.gen_gs('g4b_kernel', 'g4b', stamps=('stamps_g4b' in A)); L.append(('g4b_kernel', t, d, 256, 256, 61440))
        t, d, nv = gs.gen_gs('g4a_kernel', 'g4a', stamps=('stamps_g4a' in A)); L.append(('g4a_kernel', t, d, 256, 256, 61440))
    else:
        stp = 'mix' if 'stamps_mix' in A else ('att' if 'stamps_att' in A else None)
        t, d, nv = l2.gen_l2(stamps=stp, force_slow=('slow' in A), dbg=[a[4:] for a in A if a.startswith('dbg_')]); L.append(('l2_kernel', t, d, 512, 256, 61440))
        t, d, nv = gs.gen_gs('g4a_kernel', 'g4a', stamps=('stamps_g4a' in A)); L.append(('g4a_kernel', t, d, 256, 256, 61440))
    out = A[1] if len(A) > 1 else 'cur.s'
    build(L, out)
    print('written', out)
```

```python
from common import *

THR = 48.0
ATT_LDS = 73728
def body_att(k, st=None, force_slow=False, dbg=(), pub=False):
    st = st or (lambda: None)
    va = VA(1, 256)
    vL = va.alloc(); vT = va.alloc(); vH = va.alloc()
    vK1 = va.alloc(); vK2 = va.alloc(); vV = va.alloc()
    tmp = va.alloc(4, align=2)
    Q1 = va.alloc(32, align=4)
    Q2 = va.alloc(16, align=4)
    O = va.alloc(100, align=4)
    Sb = [va.alloc(16, align=4) for _ in range(2)]
    P = [va.alloc(8, align=4) for _ in range(2)]
    NB = 3
    K1 = [va.alloc(4, align=4) for _ in range(NB)]
    V = [va.alloc(8, align=4) for _ in range(NB)]
    K2 = [va.alloc(2, align=2) for _ in range(NB)]
    nv = va.n
    WS = 8
    sWave, sHead, sQc, sKo, sVo, sQo = 20, 21, 22, 23, 24, 25
    sLo, sVm, sHi = 26, 28, 30
    sCnt = 32
    st()
    k('s_setprio 3')
    k(f'''
    s_load_dwordx2 s[4:5], s[0:1], {KA_WS}
    v_lshrrev_b32 v{tmp}, 6, v0
    s_and_b32 s36, s2, 7
    s_lshr_b32 s37, s2, 3
    v_readfirstlane_b32 s{sWave}, v{tmp}
    s_lshl_b32 s{sHead}, s36, 2
    s_lshr_b32 s38, s37, 3
    s_add_u32 s{sHead}, s{sHead}, s38
    s_and_b32 s{sQc}, s37, 7
    v_and_b32 v{vL}, 63, v0
    v_and_b32 v{vT}, 31, v{vL}
    v_lshrrev_b32 v{vH}, 5, v{vL}
    s_mov_b32 s{sLo}, -1
    s_mov_b32 s{sLo+1}, 0
    s_mov_b32 s{sHi}, 0
    s_mov_b32 s{sHi+1}, -1
    s_mov_b32 s{sVm}, 0xfffff
    s_mov_b32 s{sVm+1}, 0xfffff
    v_lshlrev_b32 v{vK1}, 4, v{vL}
    v_lshlrev_b32 v{vK2}, 4, v{vT}
    v_mul_u32_u24 v{vV}, 320, v{vH}
    v_lshl_add_u32 v{vV}, v{vT}, 4, v{vV}
    s_mul_i32 s40, s{sHead}, {QK_HEAD}
    s_mul_i32 s41, s{sQc}, {8*1536}
    s_add_u32 s{sQo}, s40, s41
    s_add_u32 s{sQo}, s{sQo}, {QF}
    s_mul_i32 s41, s{sWave}, {16*1536}
    s_add_u32 s{sKo}, s40, s41
    s_add_u32 s{sKo}, s{sKo}, {KF}
    s_mul_i32 s40, s{sHead}, {V_HEAD}
    s_mul_i32 s41, s{sWave}, {16*1280}
    s_add_u32 s{sVo}, s40, s41
    s_add_u32 s{sVo}, s{sVo}, {VF}
    ''')
    k(f'''
    v_cmp_eq_u32 vcc, 20, v{vT}
    v_mov_b32 v{tmp}, 0x3f803f80
    ''')
    k(f'v_cndmask_b32 v{tmp+1}, 0, v{tmp}, vcc')
    for b in range(NB):
        for i in range(8): k(f'v_mov_b32 v{V[b]+i}, v{tmp+1}')
    k(f'v_cmp_eq_u32 vcc, 1, v{vH}')
    k(f'v_cndmask_b32 v{tmp+1}, 0, v{tmp}, vcc')
    for b in range(NB):
        k(f'v_mov_b32 v{K2[b]}, v{tmp+1}')
        k(f'v_mov_b32 v{K2[b]+1}, 0')
    for i in range(16): k(f'v_mov_b32 v{Q2+i}, 0')
    k('s_waitcnt lgkmcnt(0)')
    srd(k, WS, 4, 5, WS_USED)
    def kv_load(b, first=False):
        if 'lprio' in dbg and not first: k('s_setprio 3')
        k(f'buffer_load_dwordx4 v[{K1[b]}:{K1[b]+3}], v{vK1}, s[{WS}:{WS+3}], s{sKo} offen')
        k(f's_mov_b64 exec, s[{sLo}:{sLo+1}]')
        k(f'buffer_load_dwordx2 v[{K2[b]}:{K2[b]+1}], v{vK2}, s[{WS}:{WS+3}], s{sKo} offen offset:1024')
        k(f's_mov_b64 exec, s[{sVm}:{sVm+1}]')
        k(f'buffer_load_dwordx4 v[{V[b]}:{V[b]+3}], v{vV}, s[{WS}:{WS+3}], s{sVo} offen')
        k(f'buffer_load_dwordx4 v[{V[b]+4}:{V[b]+7}], v{vV}, s[{WS}:{WS+3}], s{sVo} offen offset:640')
        k(f's_mov_b64 exec, -1')
        if 'lprio' in dbg and not first: k('s_setprio 0')
        k(f's_add_u32 s{sKo}, s{sKo}, 1536')
        k(f's_add_u32 s{sVo}, s{sVo}, 1280')
    U = Sb[1]
    km = Sb[0]
    QNr = Sb[0] + 4
    k(f'''
    s_lshl_b32 s42, s{sHead}, 8
    s_add_u32 s42, s42, {KMAX}
    v_lshlrev_b32 v{tmp}, 2, v{vL}
    buffer_load_dword v{km}, v{tmp}, s[{WS}:{WS+3}], s42 offen
    s_lshl_b32 s42, s{sHead}, 13
    s_lshl_b32 s43, s{sQc}, 10
    s_add_u32 s42, s42, s43
    s_add_u32 s42, s42, {QN}
    v_lshlrev_b32 v{tmp}, 5, v{vT}
    ''')
    for i in range(4):
        k(f'''
        s_add_u32 s43, s{sWave}, {i}
        s_and_b32 s43, s43, 3
        s_lshl_b32 s43, s43, 3
        s_add_u32 s43, s43, s42
        buffer_load_dwordx2 v[{U+2*i}:{U+2*i+1}], v{tmp}, s[{WS}:{WS+3}], s43 offen
        ''')
    kv_load(0, True)
    for a in range(8):
        k(f'''
        s_lshl_b32 s43, s{sWave}, 1
        s_add_u32 s43, s43, {a}
        s_and_b32 s43, s43, 7
        s_mul_i32 s43, s43, 1536
        s_add_u32 s43, s43, s{sQo}
        buffer_load_dwordx4 v[{Q1+4*a}:{Q1+4*a+3}], v{vK1}, s[{WS}:{WS+3}], s43 offen
        ''')
    k(f'''
    s_lshl_b32 s42, s{sHead}, 14
    s_lshl_b32 s43, s{sQc}, 11
    s_add_u32 s42, s42, s43
    s_add_u32 s42, s42, {QF2}
    s_mov_b64 exec, s[{sLo}:{sLo+1}]
    ''')
    for i in range(4):
        k(f'''
        s_add_u32 s43, s{sWave}, {i}
        s_and_b32 s43, s43, 3
        s_lshl_b32 s43, s43, 9
        s_add_u32 s43, s43, s42
        buffer_load_dwordx4 v[{Q2+4*i}:{Q2+4*i+3}], v{vK2}, s[{WS}:{WS+3}], s43 offen
        ''')
    k('s_mov_b64 exec, -1')
    kv_load(1, True)
    st()
    k('s_waitcnt vmcnt(20)')
    for mod in ('quad_perm:[1,0,3,2]', 'quad_perm:[2,3,0,1]', 'row_half_mirror', 'row_mirror'):
        k(f'v_max_f32_dpp v{km}, v{km}, v{km} {mod} row_mask:0xf bank_mask:0xf')
    k(f'''
    v_mov_b32 v{km+1}, v{km}
    v_permlane16_swap_b32 v{km}, v{km+1}
    v_max_f32 v{km}, v{km}, v{km+1}
    v_mov_b32 v{km+1}, v{km}
    v_permlane32_swap_b32 v{km}, v{km+1}
    v_max_f32 v{km}, v{km}, v{km+1}
    v_mul_f32 v{km}, {hx(f2u(1.03125))}, v{km}
    ''')
    for j in range(8): k(f'v_mul_f32 v{U+j}, v{U+j}, v{km}')
    for j in range(8): k(f'v_sqrt_f32 v{U+j}, v{U+j}')
    mx = Sb[0]+2
    k(f'v_max3_f32 v{mx}, v{U}, v{U+1}, v{U+2}')
    k(f'v_max3_f32 v{mx}, v{mx}, v{U+3}, v{U+4}')
    k(f'v_max3_f32 v{mx}, v{mx}, v{U+5}, v{U+6}')
    k(f'v_max_f32 v{mx}, v{mx}, v{U+7}')
    Lfast = k.label('fast')
    k(f'v_mov_b32 v{Sb[0]+3}, {hx(f2u(THR))}')
    k(f'v_cmp_nle_f32 vcc, v{mx}, v{Sb[0]+3}')
    if force_slow: k('s_mov_b64 vcc, -1')
    k(f's_cbranch_vccz {Lfast}')
    M = U
    k('s_waitcnt vmcnt(0)')
    for j in range(8): k(f'v_mov_b32 v{M+j}, {hx(0xff800000)}')
    sK2o = 33
    k(f's_sub_u32 s{sK2o}, s{sKo}, {2*1536}')
    k(f's_mov_b32 s{sCnt}, 16')
    Lsl = k.label('slow')
    T1, T2 = P[0], P[1]
    Sx = Sb[0]
    k(f'''
    v_mov_b32 v{T2}, 0
    v_mov_b32 v{T2+1}, 0
    {Lsl}:
    buffer_load_dwordx4 v[{T1}:{T1+3}], v{vK1}, s[{WS}:{WS+3}], s{sK2o} offen
    s_mov_b64 exec, s[{sLo}:{sLo+1}]
    buffer_load_dwordx2 v[{T2}:{T2+1}], v{vK2}, s[{WS}:{WS+3}], s{sK2o} offen offset:1024
    s_mov_b64 exec, -1
    s_add_u32 s{sK2o}, s{sK2o}, 1536
    s_waitcnt vmcnt(0)
    ''')
    for j in range(8):
        k(f'v_mfma_f32_32x32x16_bf16 v[{Sx}:{Sx+15}], v[{T1}:{T1+3}], v[{Q1+4*j}:{Q1+4*j+3}], 0')
        k(f'v_mfma_f32_32x32x8_bf16 v[{Sx}:{Sx+15}], v[{T2}:{T2+1}], v[{Q2+2*j}:{Q2+2*j+1}], v[{Sx}:{Sx+15}]')
        for i in range(8):
            k(f'v_max3_f32 v{M+j}, v{M+j}, v{Sx+2*i}, v{Sx+2*i+1}')
    k(f'''
    s_sub_u32 s{sCnt}, s{sCnt}, 1
    s_cmp_lg_u32 s{sCnt}, 0
    s_cbranch_scc1 {Lsl}
    ''')
    for j in range(8):
        k(f'v_mov_b32 v{Sx+j}, v{M+j}')
        k(f'v_permlane32_swap_b32 v{M+j}, v{Sx+j}')
        k(f'v_max_f32 v{M+j}, v{M+j}, v{Sx+j}')
    k(f'''
    v_lshlrev_b32 v{tmp}, 2, v{vT}
    s_lshl_b32 s40, s{sWave}, 10
    v_add_u32 v{tmp+1}, s40, v{tmp}
    ''')
    for a in range(8):
        k(f'''
        s_lshl_b32 s43, s{sWave}, 1
        s_add_u32 s43, s43, {a}
        s_and_b32 s43, s43, 7
        s_lshl_b32 s43, s43, 7
        v_add_u32 v{tmp+2}, s43, v{tmp+1}
        ds_write_b32 v{tmp+2}, v{M+a}
        ''')
    k('s_waitcnt lgkmcnt(0)')
    k('s_barrier')
    for w in range(4):
        for a in range(8):
            k(f'''
            s_lshl_b32 s43, s{sWave}, 1
            s_add_u32 s43, s43, {a}
            s_and_b32 s43, s43, 7
            s_lshl_b32 s43, s43, 7
            v_add_u32 v{tmp+2}, s43, v{tmp}
            ds_read_b32 v{Sx+a}, v{tmp+2} offset:{w*1024}
            ''')
        k('s_waitcnt lgkmcnt(0)')
        for a in range(8): k(f'v_max_f32 v{M+a}, v{M+a}, v{Sx+a}')
    k('s_barrier')
    k(f'{Lfast}:')
    k('s_waitcnt vmcnt(4)')
    k(f's_mov_b64 exec, s[{sHi}:{sHi+1}]')
    for j in range(8):
        a, b_ = Sb[0] + 2*(j & 1), Sb[0] + 2*(j & 1) + 1
        k(f'v_sub_f32 v{a}, 0, v{U+j}')
        k(f'v_and_b32 v{b_}, 0xffff0000, v{a}')
        k(f'v_sub_f32 v{a}, v{a}, v{b_}')
        k(f'v_cvt_pk_bf16_f32 v{Q2+2*j}, v{b_}, v{a}')
    k('s_mov_b64 exec, -1')
    st()
    def qk(n_j, kb, sb, part):
        if part == 0:
            return f'v_mfma_f32_32x32x16_bf16 v[{Sb[sb]}:{Sb[sb]+15}], v[{K1[kb]}:{K1[kb]+3}], v[{Q1+4*n_j}:{Q1+4*n_j+3}], 0'
        return f'v_mfma_f32_32x32x8_bf16 v[{Sb[sb]}:{Sb[sb]+15}], v[{K2[kb]}:{K2[kb]+1}], v[{Q2+2*n_j}:{Q2+2*n_j+1}], v[{Sb[sb]}:{Sb[sb]+15}]'
    def pv(j, vb, pb, part, zero=False):
        o = O + 12*j
        c = '0' if zero else f'v[{o}:{o+15}]'
        return f'v_mfma_f32_32x32x16_bf16 v[{o}:{o+15}], v[{V[vb]+4*part}:{V[vb]+4*part+3}], v[{P[pb]+4*part}:{P[pb]+4*part+3}], {c}'
    def step(j, kb, first=False, pre=None, firstkt=False):
        sb = j & 1
        e = lambda i: k(f'v_exp_f32 v{Sb[sb]+i}, v{Sb[sb]+i}')
        c = lambda i: k(f'v_cvt_pk_bf16_f32 v{P[sb]+i}, v{Sb[sb]+2*i}, v{Sb[sb]+2*i+1}')
        nj = (j + 1) % 8; nkb = kb if j < 7 else (kb + 1) % NB
        e(0); e(1)
        if not first:
            pj = (j - 1) % 8; pkb = kb if j > 0 else (kb - 1) % NB
            k(pv(pj, pkb, sb ^ 1, 1))
        if pre: pre()
        e(2); e(3); e(4); e(5)
        k(qk(nj, nkb, sb ^ 1, 0))
        e(6); e(7); c(0); c(1)
        k(qk(nj, nkb, sb ^ 1, 1))
        c(2); c(3); e(8); e(9); e(10); e(11)
        k(pv(j, kb, sb, 0, zero=firstkt))
        e(12); e(13); e(14); e(15)
        c(4); c(5); c(6); c(7)
    k('s_setprio 0')
    k(qk(0, 0, 0, 0)); k(qk(0, 0, 0, 1))
    k('s_nop 7'); k('s_nop 3')
    def keytile(kb, first):
        for j in range(8):
            pre = None
            if j == 1: pre = lambda: kv_load((kb + 2) % NB)
            if j == 7: k('s_waitcnt vmcnt(6)')
            if j == 0 and not first: k('s_waitcnt vmcnt(4)')
            step(j, kb, first=(first and j == 0), pre=pre, firstkt=first)
    keytile(0, True)
    Lloop = k.label('loop')
    k(f's_mov_b32 s{sCnt}, 5')
    k(f'{Lloop}:')
    keytile(1, False); keytile(2, False); keytile(0, False)
    k(f's_sub_u32 s{sCnt}, s{sCnt}, 1')
    k(f's_cmp_lg_u32 s{sCnt}, 0')
    k(f's_cbranch_scc1 {Lloop}')
    k(pv(7, 0, 1, 1))
    st()
    k('s_setprio 3')
    wa = tmp
    k(f'''
    s_lshr_b32 s44, s{sHead}, 1
    s_mul_i32 s44, s44, 5
    s_and_b32 s45, s{sHead}, 1
    s_mul_i32 s46, s45, 3
    s_add_u32 s46, s46, s44
    s_lshr_b32 s47, s46, 2
    s_lshl_b32 s47, s47, 10
    s_and_b32 s48, s46, 3
    s_lshl_b32 s48, s48, 8
    s_add_u32 s50, s47, s48
    s_add_u32 s46, s46, 1
    s_lshr_b32 s47, s46, 2
    s_lshl_b32 s47, s47, 10
    s_and_b32 s48, s46, 3
    s_lshl_b32 s48, s48, 8
    s_add_u32 s51, s47, s48
    s_add_u32 s46, s44, 2
    s_lshr_b32 s47, s46, 2
    s_lshl_b32 s47, s47, 10
    s_and_b32 s48, s46, 3
    s_lshl_b32 s48, s48, 8
    s_add_u32 s52, s47, s48
    s_lshl_b32 s45, s45, 3
    s_add_u32 s52, s52, s45
    s_add_u32 s52, s52, {A4}
    s_sub_u32 s51, s51, s50
    s_add_u32 s50, s50, {A4}
    ''')
    for a in range(2, 8):
        k(f'''
        s_add_u32 s40, s{sWave}, {a//2}
        s_and_b32 s40, s40, 3
        s_mul_i32 s40, s40, {18*1024}
        s_add_u32 s40, s40, {((a//2 - 1)*2 + (a & 1))*3072}
        v_add_u32 v{wa + (a & 1)}, s40, v{vK1}
        ''')
        o = O + 12*a
        for g in range(3):
            k(f'ds_write_b128 v{wa + (a & 1)}, v[{o+4*g}:{o+4*g+3}] offset:{g*1024}')
    k(f'''
    s_mul_i32 s40, s{sWave}, {18*1024}
    v_add_u32 v{wa}, s40, v{vK1}
    s_waitcnt lgkmcnt(0)
    s_barrier
    ''')
    R = O + 24
    for sl in range(3):
        for b_ in range(2):
            for g in range(3):
                d = R + 24*sl + 12*b_ + 4*g
                k(f'ds_read_b128 v[{d}:{d+3}], v{wa} offset:{(sl*2 + b_)*3072 + g*1024}')
    vo = K1[0]
    k(f'''
    s_lshl_b32 s40, s{sQc}, 8
    s_lshl_b32 s41, s{sWave}, 6
    s_add_u32 s40, s40, s41
    v_add_u32 v{vo}, s40, v{vT}
    v_lshrrev_b32 v{vo+1}, 4, v{vo}
    s_mov_b32 s41, {NK4*1024}
    v_mul_lo_u32 v{vo+1}, v{vo+1}, s41
    v_and_b32 v{vo}, 15, v{vo}
    v_lshl_add_u32 v{vo}, v{vo}, 4, v{vo+1}
    v_add_u32 v{vo+1}, {2*NK4*1024}, v{vo}
    s_waitcnt lgkmcnt(0)
    ''')
    for i in range(24):
        k(f'v_add_f32 v{R+i}, v{R+i}, v{R+24+i}')
        k(f'v_add_f32 v{O+i}, v{O+i}, v{R+48+i}')
    for i in range(24): k(f'v_add_f32 v{O+i}, v{O+i}, v{R+i}')
    for b_ in range(2):
        T = O + 12*b_
        rl, rl2 = Sb[1] + 2*b_, Sb[1] + 2*b_ + 1
        k(f'v_rcp_f32 v{rl}, v{T+8}')
        k(f'v_mov_b32 v{rl2}, v{rl}')
        k(f'v_permlane32_swap_b32 v{rl}, v{rl2}')
        for i in range(12): k(f'v_mul_f32 v{T+i}, v{T+i}, v{rl2}')
        pkd = Sb[0] + 8*b_
        for g in range(3):
            k(f'v_cvt_pk_bf16_f32 v{pkd+2*g}, v{T+4*g}, v{T+4*g+1}')
            k(f'v_cvt_pk_bf16_f32 v{pkd+2*g+1}, v{T+4*g+2}, v{T+4*g+3}')
        k(f'v_permlane32_swap_b32 v{pkd}, v{pkd+2}')
        k(f'v_permlane32_swap_b32 v{pkd+1}, v{pkd+3}')
    SCX = ' sc1' if pub else ''
    k(f'v_mul_lo_u32 v{vo+2}, v{vH}, s51')
    for b_ in range(2):
        pkd = Sb[0] + 8*b_
        k(f'v_add_u32 v{vo+3}, v{vo+2}, v{vo+b_}')
        k(f'buffer_store_dwordx4 v[{pkd}:{pkd+3}], v{vo+3}, s[{WS}:{WS+3}], s50 offen{SCX}')
    k(f's_mov_b64 exec, s[{sLo}:{sLo+1}]')
    for b_ in range(2):
        pkd = Sb[0] + 8*b_
        k(f'buffer_store_dwordx2 v[{pkd+4}:{pkd+5}], v{vo+b_}, s[{WS}:{WS+3}], s52 offen{SCX}')
    k('s_mov_b64 exec, -1')
    if pub:
        k(f's_lshl_b32 s43, s{sQc}, 7')
        k(f's_lshl_b32 s44, s{sHead}, 2')
        k(f's_add_u32 s43, s43, s44')
        k(f's_add_u32 s43, s43, {FLAGC}')
        st()
        publish(k, WS, 43, sWave, tmp, 'pc')
    return nv, WS, sWave, tmp

def gen_att(name='att_kernel', stamps=False, force_slow=False):
    k = K(name)
    st = Stamps(k, stamps)
    Lend = k.label('end')
    k('s_cmp_ge_u32 s2, 256')
    k(f's_cbranch_scc1 {Lend}')
    nv, WS, sWave, tmp = body_att(k, st, force_slow, ('lprio',))
    if stamps:
        k('s_waitcnt vmcnt(0)')
        st()
        st.dump(WS, sWave, tmp)
    k(f'{Lend}:')
    k('s_endpgm')
    return k.finish(), kdesc(name, nv), nv

if __name__ == '__main__':
    t, d, nv = gen_att()
    print(nv)
```

```python
from asmlib import *
S, D, H, DH, F = 2048, 640, 32, 20, 1536
QF   = 0x000000
KF   = 0x300000
VF   = 0x600000
HS   = 0x880000
X1F  = 0xB00000
A4   = 0xD80000
KMAX = 0x1600000
ST1  = 0x1602000
CS3P = 0x1608000
PS   = 0x1640000
FLAGA = 0x1660000
FLAGB = 0x1661000
FLAGC = 0x1662000
PRE  = 0x1700000
PW   = 0x1C00000
PW_W2, PW_WO, PW_W4 = 0, 160, 320
PW3  = 0x1C00000 + 704*5120 + 0x20000 - (704*5120 % 0x10000)
PW3  = (0x1C00000 + 704*5120 + 0xFFFF) // 0x10000 * 0x10000
QF2 = PW3 + 16*40*3072
QN = QF2 + 0x80000
WS_USED = QN + 0x40000
QK_HEAD = 64*1536
V_HEAD  = 64*1280
NK4 = 68
KA_X, KA_WQKV, KA_WO, KA_BX, KA_W1, KA_W2, KA_W3, KA_W4, KA_OUT, KA_DBG, KA_WS = [8*i for i in range(11)]
import struct, math
def f2u(x): return struct.unpack('<I', struct.pack('<f', x))[0]
def hx(x): return '0x%08x' % x
LOG2E = 1.4426950408889634
QSCALE = (DH ** -0.5) * LOG2E
GELU_C0 = 2.0 * math.sqrt(2.0/math.pi) * LOG2E
GELU_C1 = GELU_C0 * 0.044715
EPS = 1e-5

def srd(k, s, base_lo, base_hi, size):
    k(f's_mov_b32 s{s}, s{base_lo}')
    k(f's_and_b32 s{s+1}, s{base_hi}, 0xffff')
    k(f's_mov_b32 s{s+2}, {size}')
    k(f's_mov_b32 s{s+3}, 0x20000')

def cross_half_sum(k, a, tmp):
    k(f'v_mov_b32 v{tmp}, v{a}')
    k(f'v_permlane32_swap_b32 v{a}, v{tmp}')
    k(f'v_add_f32 v{a}, v{a}, v{tmp}')

def gelu_pk(k, x, t0, t1, cC0, cC1, cOne):
    k(f'v_pk_mul_f32 v[{t0}:{t0+1}], v[{x}:{x+1}], v[{x}:{x+1}]')
    k(f'v_pk_fma_f32 v[{t0}:{t0+1}], v[{t0}:{t0+1}], v[{cC1}:{cC1+1}], v[{cC0}:{cC0+1}]')
    k(f'v_pk_mul_f32 v[{t0}:{t0+1}], v[{t0}:{t0+1}], v[{x}:{x+1}]')
    k(f'v_exp_f32 v{t1}, v{t0}')
    k(f'v_exp_f32 v{t1+1}, v{t0+1}')
    k(f'v_pk_add_f32 v[{t1}:{t1+1}], v[{t1}:{t1+1}], v[{cOne}:{cOne+1}]')
    k(f'v_rcp_f32 v{t1}, v{t1}')
    k(f'v_rcp_f32 v{t1+1}, v{t1+1}')
    k(f'v_pk_mul_f32 v[{x}:{x+1}], v[{x}:{x+1}], v[{t1}:{t1+1}]')

STAMP = 0x1680000
class Stamps:
    def __init__(self, k, on, base=80, maxn=7):
        self.k = k; self.on = on; self.n = 0; self.base = base; self.maxn = maxn
    def __call__(self):
        if not self.on: return
        r = self.base + 2*self.n; self.n += 1
        assert self.n <= self.maxn
        self.k(f's_memtime s[{r}:{r+1}]')
        if self.n == 1: self.k('s_memrealtime s[98:99]')
    def dump(self, srd, sWave, vtmp):
        if not self.on: return
        k = self.k
        k('s_memrealtime s[100:101]')
        k('s_waitcnt lgkmcnt(0)')
        k('s_sub_u32 s97, s100, s98')
        k('s_mov_b64 exec, 1')
        k(f's_lshl_b32 s96, s2, 2')
        k(f's_add_u32 s96, s96, s{sWave}')
        k(f's_lshl_b32 s96, s96, 6')
        k(f's_add_u32 s96, s96, {STAMP}')
        k(f'v_mov_b32 v{vtmp}, 0')
        k(f'v_mov_b32 v{vtmp+1}, s97')
        k(f'buffer_store_dword v{vtmp+1}, v{vtmp}, s[{srd}:{srd+3}], s96 offen offset:60')
        for i in range(self.n):
            k(f'v_mov_b32 v{vtmp+1}, s{self.base+2*i}')
            k(f'buffer_store_dword v{vtmp+1}, v{vtmp}, s[{srd}:{srd+3}], s96 offen offset:{4*i}')

def publish(k, srdn, sflagoff, sWave, vtmp, lab):
    L = k.label(lab)
    k('s_waitcnt vmcnt(0)')
    k('s_barrier')
    k(f's_cmp_lg_u32 s{sWave}, 0')
    k(f's_cbranch_scc1 {L}')
    k(f'v_mov_b32 v{vtmp}, 0')
    k(f'v_mov_b32 v{vtmp+1}, 1')
    k('s_mov_b64 exec, 1')
    k(f'buffer_store_dword v{vtmp+1}, v{vtmp}, s[{srdn}:{srdn+3}], s{sflagoff} offen sc1')
    k('s_mov_b64 exec, -1')
    k(f'{L}:')

def wait_flags(k, srdn, sflagoff, sWave, vtmp, lab, n=16):
    L = k.label(lab); Lp = k.label(lab + 'p')
    k(f's_cmp_lg_u32 s{sWave}, 0')
    k(f's_cbranch_scc1 {L}')
    k(f'v_and_b32 v{vtmp}, {n-1}, v0')
    k(f'v_lshlrev_b32 v{vtmp}, 2, v{vtmp}')
    k(f'{Lp}:')
    k(f'buffer_load_dword v{vtmp+1}, v{vtmp}, s[{srdn}:{srdn+3}], s{sflagoff} offen sc1')
    k('s_waitcnt vmcnt(0)')
    k(f'v_cmp_ne_u32 vcc, 1, v{vtmp+1}')
    k(f's_cbranch_vccz {L}')
    k('s_sleep 2')
    k(f's_branch {Lp}')
    k(f'{L}:')
    k('s_barrier')

def gelu_plain4(k, x, t, sC0, sC1):
    for i in range(4): k(f'v_mul_f32 v{t+i}, v{x+i}, v{x+i}')
    for i in range(4): k(f'v_fma_f32 v{t+i}, v{t+i}, s{sC1}, v{sC0}')
    for i in range(4): k(f'v_mul_f32 v{t+i}, v{t+i}, v{x+i}')
    for i in range(4): k(f'v_exp_f32 v{t+i}, v{t+i}')
    for i in range(4): k(f'v_add_f32 v{t+i}, 1.0, v{t+i}')
    for i in range(4): k(f'v_rcp_f32 v{t+i}, v{t+i}')
    for i in range(4): k(f'v_mul_f32 v{x+i}, v{x+i}, v{t+i}')
```

```python
from common import *

def gen_g1(name='g1_kernel', stamps=False, dbg=()):
    k = K(name)
    st = Stamps(k, stamps)
    va = VA(1, 256)
    vL = va.alloc(); vT = va.alloc(); vH = va.alloc()
    ones = va.alloc(2, align=2)
    tmp = va.alloc(32, align=4)
    cst = va.alloc(12, align=2)
    dmy = va.alloc(2, align=2)
    pfa = va.alloc(2, align=2)
    base = va.n
    vXa = va.alloc(4); vW0 = va.alloc(); vW1 = va.alloc()
    acc = va.alloc(80, align=4)
    Xf = [va.alloc(4, align=4) for _ in range(3)]
    Wf = [va.alloc(20, align=4) for _ in range(3)]
    aC = va.alloc(20, align=4)
    cS = va.alloc(4, align=4); cQ = va.alloc(4, align=4); cU = va.alloc(4, align=4)
    nvc = va.n
    vb = VA(base, 256)
    vXoff = vb.alloc(4); vWoff = vb.alloc(5, align=1)
    vSa = vb.alloc(4)
    SX = [vb.alloc(16, align=4) for _ in range(2)]
    aS = vb.alloc(4, align=4); aQ = vb.alloc(4, align=4); un = vb.alloc(8, align=4)
    F = vb.alloc(20, align=4); Fc = vb.alloc(4, align=4); RPo = vb.alloc(5, align=1)
    nv = max(nvc, vb.n)
    sWave, sMb, sType, sNq, sLdw, sLdw64, sXl, sWl, sC, sXo, sWo, sNb, sBlk = 20,21,23,24,25,26,27,28,29,30,31,32,33
    XS, WS_, OS = 8, 12, 16
    pX, pQKV, pWO, pBX, pW1, pW2, pW3, pW4, pWS = 40, 42, 44, 46, 48, 50, 52, 54, 56
    LW = 65536
    CSP = 147456
    CSF = CSP + 2560
    STB = CSF + 2560
    STR = STB + 2048
    LDS_TOTAL = STR + 1024
    Lend = k.label('end'); Lload = k.label('loader')
    k(f'''
    s_cmp_ge_u32 s2, 256
    s_cbranch_scc1 {Lend}
    s_load_dwordx16 s[40:55], s[0:1], 0
    s_load_dwordx2 s[56:57], s[0:1], {KA_WS}
    ''')
    st()
    t0, t1, t2, t3 = tmp, tmp+1, tmp+2, tmp+3
    k(f'''
    v_lshrrev_b32 v{tmp}, 6, v0
    s_and_b32 s36, s2, 7
    s_lshr_b32 s37, s2, 3
    v_readfirstlane_b32 s{sWave}, v{tmp}
    s_and_b32 s38, s36, 1
    s_lshl_b32 s38, s38, 3
    s_and_b32 s39, s37, 7
    s_add_u32 s{sMb}, s38, s39
    s_lshr_b32 s{sType}, s36, 1
    s_lshr_b32 s{sNq}, s37, 3
    v_and_b32 v{vL}, 63, v0
    v_and_b32 v{vT}, 31, v{vL}
    v_lshrrev_b32 v{vH}, 5, v{vL}
    s_and_b32 s{sC}, s{sWave}, 3
    s_lshl_b32 s{sNb}, s{sType}, 2
    s_add_u32 s{sNb}, s{sNb}, s{sNq}
    s_lshl_b32 s{sBlk}, s{sMb}, 2
    s_add_u32 s{sBlk}, s{sBlk}, s{sC}
    s_lshl_b32 s{sXl}, s{sC}, 12
    s_movk_i32 s34, 1280
    s_cmp_eq_u32 s{sType}, 3
    s_cselect_b32 s{sLdw}, s34, 3840
    s_lshl_b32 s{sLdw64}, s{sLdw}, 6
    v_mov_b32 v{ones}, 0x3f803f80
    v_mov_b32 v{ones+1}, 0x3f803f80
    s_cmp_ge_u32 s{sWave}, 4
    s_cbranch_scc1 {Lload}
    ''')
    def srd_xw():
        k(f'''
        s_mul_i32 s34, s{sMb}, 163840
        s_add_u32 s4, s{pX}, s34
        s_addc_u32 s5, s{pX+1}, 0
        ''')
        srd(k, XS, 4, 5, 163840)
        Lw1 = k.label('w1'); Lwd = k.label('wd')
        k(f'''
        s_mul_i32 s35, s{sNq}, 320
        s_cmp_eq_u32 s{sType}, 3
        s_cbranch_scc1 {Lw1}
        s_mul_i32 s36, s{sType}, 1280
        s_add_u32 s35, s35, s36
        s_add_u32 s6, s{pQKV}, s35
        s_addc_u32 s7, s{pQKV+1}, 0
        s_sub_u32 s36, {640*3840}, s35
        s_branch {Lwd}
        {Lw1}:
        s_add_u32 s6, s{pW1}, s35
        s_addc_u32 s7, s{pW1+1}, 0
        s_sub_u32 s36, {640*1280}, s35
        {Lwd}:
        s_mov_b32 s{WS_}, s6
        s_and_b32 s{WS_+1}, s7, 0xffff
        s_mov_b32 s{WS_+2}, s36
        s_mov_b32 s{WS_+3}, 0x20000
        ''')
    def prefetch(half):
        if 'nopf' in dbg: return
        u0, u1, u2 = tmp+24, tmp+25, tmp+26
        def xpf(cidx):
            k(f'''
            v_mul_u32_u24 v{u0}, 52, v{vL}
            v_lshrrev_b32 v{u0}, 8, v{u0}
            v_mul_u32_u24 v{u1}, 5, v{u0}
            v_sub_u32 v{u1}, v{vL}, v{u1}
            s_lshl_b32 s34, s{sNq}, 5
            s_lshl_b32 s35, s{cidx}, 3
            s_add_u32 s34, s34, s35
            v_add_u32 v{u0}, s34, v{u0}
            v_mul_u32_u24 v{u0}, 1280, v{u0}
            v_lshl_add_u32 v{pfa}, v{u1}, 7, v{u0}
            s_mov_b32 exec_hi, 0xff
            s_mov_b32 s34, {640*half}
            buffer_load_dword v{dmy}, v{pfa}, s[{XS}:{XS+3}], s34 offen
            {f'buffer_load_dword v{dmy}, v{pfa}, s[{XS}:{XS+3}], s34 offen offset:64' if 'pf2' in dbg or 'pf4' in dbg else ''}
            {f'buffer_load_dword v{dmy}, v{pfa}, s[{XS}:{XS+3}], s34 offen offset:32' if 'pf4' in dbg else ''}
            {f'buffer_load_dword v{dmy}, v{pfa}, s[{XS}:{XS+3}], s34 offen offset:96' if 'pf4' in dbg else ''}
            s_mov_b64 exec, -1
            ''')
        def wpf(cidx):
            k(f'''
            s_mul_i32 s34, s{cidx}, 30
            v_add_u32 v{u0}, s34, v{vL}
            v_mul_u32_u24 v{u1}, 43, v{u0}
            v_lshrrev_b32 v{u1}, 7, v{u1}
            v_mul_u32_u24 v{u2}, 3, v{u1}
            v_sub_u32 v{u2}, v{u0}, v{u2}
            v_lshrrev_b32 v{u0}, 3, v{u1}
            v_and_b32 v{u1}, 7, v{u1}
            v_lshl_add_u32 v{u0}, v{u0}, 6, v{u1}
            s_and_b32 s34, s{sMb}, 7
            s_lshl_b32 s34, s34, 3
            v_add_u32 v{u0}, s34, v{u0}
            v_mul_lo_u32 v{u0}, v{u0}, s{sLdw}
            v_lshl_add_u32 v{pfa+1}, v{u2}, 7, v{u0}
            s_mov_b32 exec_lo, 0x3fffffff
            s_mov_b32 exec_hi, 0
            s_mul_i32 s34, s{sLdw}, {320*half}
            buffer_load_dword v{dmy+1}, v{pfa+1}, s[{WS_}:{WS_+3}], s34 offen
            {f'buffer_load_dword v{dmy+1}, v{pfa+1}, s[{WS_}:{WS_+3}], s34 offen offset:64' if 'pf2' in dbg or 'pf4' in dbg else ''}
            {f'buffer_load_dword v{dmy+1}, v{pfa+1}, s[{WS_}:{WS_+3}], s34 offen offset:32' if 'pf4' in dbg else ''}
            {f'buffer_load_dword v{dmy+1}, v{pfa+1}, s[{WS_}:{WS_+3}], s34 offen offset:96' if 'pf4' in dbg else ''}
            s_mov_b64 exec, -1
            ''')
        return xpf, wpf
    k(f'''
    v_lshrrev_b32 v{t0}, 1, v{vT}
    v_and_b32 v{t0}, 7, v{t0}
    v_lshlrev_b32 v{t1}, 7, v{vT}
    v_add_u32 v{t1}, s{sXl}, v{t1}
    ''')
    for ks in range(4):
        k(f'''
        v_add_u32 v{t2}, {2*ks}, v{vH}
        v_xor_b32 v{t2}, v{t2}, v{t0}
        v_lshlrev_b32 v{t2}, 4, v{t2}
        v_add_u32 v{vXa+ks}, v{t1}, v{t2}
        ''')
    k(f'''
    v_lshrrev_b32 v{t0}, 4, v{vL}
    v_and_b32 v{t1}, 15, v{vL}
    v_lshrrev_b32 v{t2}, 2, v{t1}
    v_and_b32 v{t1}, 3, v{t1}
    v_lshrrev_b32 v{t3}, 1, v{t0}
    v_lshlrev_b32 v{t3}, 3, v{t3}
    v_add_u32 v{t2}, v{t2}, v{t3}
    v_mul_u32_u24 v{t2}, 320, v{t2}
    v_and_b32 v{t0}, 1, v{t0}
    v_lshlrev_b32 v{t0}, 5, v{t0}
    v_lshlrev_b32 v{t1}, 3, v{t1}
    v_add3_u32 v{vW0}, v{t2}, v{t0}, v{t1}
    v_add_u32 v{vW0}, {LW}, v{vW0}
    v_add_u32 v{vW1}, 61440, v{vW0}
    ''')
    k('s_waitcnt lgkmcnt(0)')
    srd_xw()
    if 'nopf' not in dbg: prefetch(0)[0](sC)
    for r in list(range(aC, aC+20)) + list(range(cS, cS+4)) + list(range(cQ, cQ+4)): k(f'v_mov_b32 v{r}, 0')
    def reads(n):
        s, ks = divmod(n, 4)
        slot = s % 4; buf = n % 3
        out = [f'ds_read_b128 v[{Xf[buf]}:{Xf[buf]+3}], v{vXa+ks} offset:{slot*16384}']
        for t in range(5):
            for j in range(2):
                b_ = vW1 if slot == 3 else vW0
                off = (0 if slot == 3 else slot*20480) + (16*ks + 4*j)*320 + t*64
                r = Wf[buf] + 4*t + 2*j
                out.append(f'ds_read_b64_tr_b16 v[{r}:{r+1}], v{b_} offset:{off}')
        return out
    m4 = lambda d, a, b: f'v_mfma_f32_4x4x4_16b_bf16 v[{d}:{d+3}], v[{a}:{a+1}], v[{b}:{b+1}], v[{d}:{d+3}]'
    def main_loop(orient):
        k('s_barrier')
        if 'nopf' not in dbg:
            xp, wp = prefetch(1); xp(sC); wp(sC)
        if stamps: k(f's_memtime s[{80+2*st.n}:{81+2*st.n}]')
        for r in reads(0) + reads(1): k(r)
        for n in range(40):
            s, ks = divmod(n, 4)
            buf = n % 3
            if n == 2: k('s_barrier')
            if ks == 0 and s >= 1: k('s_barrier')
            nxt = reads(n + 2) if n + 2 < 40 else []
            k(f's_waitcnt lgkmcnt({11 if n + 1 < 40 else 0})')
            x = Xf[buf]
            sv = []
            if 'cstats' in dbg:
                for i in range(4):
                    lo, hi = cU + 2*(i & 1), cU + 2*(i & 1) + 1
                    sv += [f'v_lshlrev_b32 v{lo}, 16, v{x+i}', f'v_and_b32 v{hi}, 0xffff0000, v{x+i}',
                           f'v_add_f32 v{cS+(i&1)}, v{cS+(i&1)}, v{lo}', f'v_fmac_f32 v{cQ+(i&1)}, v{lo}, v{lo}',
                           f'v_add_f32 v{cS+2+(i&1)}, v{cS+2+(i&1)}, v{hi}', f'v_fmac_f32 v{cQ+2+(i&1)}, v{hi}, v{hi}']
            for t in range(5):
                w = Wf[buf] + 4*t; a = acc + 16*t
                c = '0' if n == 0 else f'v[{a}:{a+15}]'
                if orient == 'T':
                    k(f'v_mfma_f32_32x32x16_bf16 v[{a}:{a+15}], v[{w}:{w+3}], v[{x}:{x+3}], {c}')
                else:
                    k(f'v_mfma_f32_32x32x16_bf16 v[{a}:{a+15}], v[{x}:{x+3}], v[{w}:{w+3}], {c}')
                for _ in range(3 if t == 0 else 2):
                    if nxt: k(nxt.pop(0))
                for _ in range(5 if t < 4 else 4):
                    if sv: k(sv.pop(0))
            if 'nocs' in dbg: continue
            Ls = k.label('cs')
            k(f's_cmp_lg_u32 s{sC}, {ks}')
            k(f's_cbranch_scc1 {Ls}')
            for j in range(2):
                for t in range(5):
                    k(m4(aC + 4*t, ones, Wf[buf] + 4*t + 2*j))
            k(f'{Ls}:')
    LV = k.label('V'); Lep = k.label('ep')
    k(f's_cmp_eq_u32 s{sType}, 2')
    k(f's_cbranch_scc1 {LV}')
    main_loop('T')
    k(f's_branch {Lep}')
    k(f'{LV}:')
    main_loop('N')
    st.n += 1 if stamps else 0
    k(f'{Lep}:')
    st()
    if 'cstats' in dbg:
        mu, rr, var = tmp, tmp+1, tmp+2
        k(f'''
        v_add_f32 v{cS}, v{cS}, v{cS+1}
        v_add_f32 v{cS+2}, v{cS+2}, v{cS+3}
        v_add_f32 v{cQ}, v{cQ}, v{cQ+1}
        v_add_f32 v{cQ+2}, v{cQ+2}, v{cQ+3}
        v_add_f32 v{cS}, v{cS}, v{cS+2}
        v_add_f32 v{cQ}, v{cQ}, v{cQ+2}
        ''')
        cross_half_sum(k, cS, tmp+5); cross_half_sum(k, cQ, tmp+6)
        k(f'''
        v_mul_f32 v{mu}, {hx(f2u(1.0/640))}, v{cS}
        v_mul_f32 v{var}, {hx(f2u(1.0/640))}, v{cQ}
        v_fma_f32 v{var}, -v{mu}, v{mu}, v{var}
        v_max_f32 v{var}, 0, v{var}
        v_add_f32 v{rr}, {hx(f2u(EPS))}, v{var}
        v_rsq_f32 v{rr}, v{rr}
        v_lshlrev_b32 v{tmp+4}, 4, v{vT}
        s_lshl_b32 s34, s{sC}, 9
        s_add_u32 s34, s34, {STB}
        v_add_u32 v{tmp+4}, s34, v{tmp+4}
        v_mul_f32 v{tmp+3}, v{mu}, v{rr}
        ds_write_b96 v{tmp+4}, v[{mu}:{mu+2}]
        v_lshlrev_b32 v{tmp+4}, 2, v{vT}
        s_lshl_b32 s34, s{sC}, 7
        s_add_u32 s34, s34, {STR}
        v_add_u32 v{tmp+4}, s34, v{tmp+4}
        ds_write_b32 v{tmp+4}, v{rr}
        ds_write_b32 v{tmp+4}, v{tmp+3} offset:512
        ''')
        Lns = k.label('ns')
        k(f'''
        s_cmp_lg_u32 s{sNb}, 0
        s_cbranch_scc1 {Lns}
        s_lshl_b32 s34, s{sBlk}, 8
        s_add_u32 s34, s34, {ST1}
        v_lshlrev_b32 v{tmp+3}, 3, v{vT}
        s_mov_b32 exec_hi, 0
        buffer_store_dwordx2 v[{mu}:{mu+1}], v{tmp+3}, s[{OS}:{OS+3}], s34 offen
        s_mov_b64 exec, -1
        {Lns}:
        ''')
    for t in range(5): cross_half_sum(k, aC+4*t, aC+4*t+1)
    k(f'''
    s_mul_i32 s34, s{sC}, 640
    v_lshlrev_b32 v{tmp+4}, 2, v{vT}
    v_add_u32 v{tmp+4}, s34, v{tmp+4}
    v_add_u32 v{tmp+4}, {CSP}, v{tmp+4}
    ''')
    for t in range(5): k(f'ds_write_b32 v{tmp+4}, v{aC+4*t} offset:{t*128}')
    k('s_waitcnt lgkmcnt(0)')
    k('s_barrier')
    st()
    k(f'''
    v_lshlrev_b32 v{tmp+4}, 2, v{vL}
    v_add_u32 v{tmp+5}, {CSP}, v{tmp+4}
    v_add_u32 v{tmp+4}, s34, v{tmp+4}
    v_add_u32 v{tmp+4}, {CSF}, v{tmp+4}
    ''')
    for i in range(3):
        for w in range(4):
            k(f'ds_read_b32 v{aC+4*i+w}, v{tmp+5} offset:{w*640 + i*256}')
    k('s_waitcnt lgkmcnt(0)')
    for i in range(3):
        k(f'v_add_f32 v{aC+4*i}, v{aC+4*i}, v{aC+4*i+1}')
        k(f'v_add_f32 v{aC+4*i+2}, v{aC+4*i+2}, v{aC+4*i+3}')
    for i in range(3): k(f'v_add_f32 v{aC+4*i}, v{aC+4*i}, v{aC+4*i+2}')
    for i in range(2): k(f'ds_write_b32 v{tmp+4}, v{aC+4*i} offset:{i*256}')
    k('s_mov_b32 exec_hi, 0')
    k(f'ds_write_b32 v{tmp+4}, v{aC+8} offset:512')
    k('s_mov_b64 exec, -1')
    k(f's_add_u32 s34, s34, {CSF}')
    k('s_waitcnt lgkmcnt(0)')
    mu, rr, var = tmp, tmp+1, tmp+2
    LK, LVe, LH = k.label('eK'), k.label('eV'), k.label('eH')
    k(f'''
    s_cmp_eq_u32 s{sType}, 2
    s_cbranch_scc1 {LVe}
    v_lshlrev_b32 v{tmp+4}, 4, v{vT}
    s_lshl_b32 s39, s{sC}, 9
    s_add_u32 s39, s39, {STB}
    v_add_u32 v{tmp+4}, s39, v{tmp+4}
    ds_read_b96 v[{mu}:{mu+2}], v{tmp+4}
    ''')
    CS = Xf[0]
    assert Wf[0] == Xf[0] + 12 and aC == Wf[2] + 20
    vCsA = tmp+7
    k(f'''
    v_lshlrev_b32 v{vCsA}, 4, v{vH}
    v_add_u32 v{vCsA}, s34, v{vCsA}
    ''')
    for g in range(20):
        k(f'ds_read_b128 v[{CS+4*g}:{CS+4*g+3}], v{vCsA} offset:{(32*(g//4)+8*(g%4))*4}')
    k(f'''
    s_waitcnt lgkmcnt(15)
    s_cmp_eq_u32 s{sType}, 1
    s_cbranch_scc1 {LK}
    s_cmp_eq_u32 s{sType}, 3
    s_cbranch_scc1 {LH}
    ''')
    nmu2 = cst; r2 = cst+2
    def ln_all():
        k('s_waitcnt lgkmcnt(0)')
        for g in range(20):
            a = acc + 4*g; c = CS + 4*g
            for p in range(2):
                k(f'v_pk_fma_f32 v[{a+2*p}:{a+2*p+1}], v[{c+2*p}:{c+2*p+1}], v[{nmu2}:{nmu2+1}], v[{a+2*p}:{a+2*p+1}]')
        for g in range(20):
            a = acc + 4*g
            for p in range(2):
                k(f'v_pk_mul_f32 v[{a+2*p}:{a+2*p+1}], v[{a+2*p}:{a+2*p+1}], v[{r2}:{r2+1}]')
    def set_mu_r(rscale):
        k(f'''
        v_sub_f32 v{nmu2}, 0, v{mu}
        v_sub_f32 v{nmu2+1}, 0, v{mu}
        v_mul_f32 v{r2}, {hx(f2u(rscale))}, v{rr}
        v_mul_f32 v{r2+1}, {hx(f2u(rscale))}, v{rr}
        ''')
    def qk_epilogue(isK):
        sec = KF if isK else QF
        vA, vB, vC = cst+4, cst+5, cst+6
        set_mu_r(1.0 if isK else QSCALE)
        k(f'''
        v_lshlrev_b32 v{vA}, 4, v{vL}
        s_mov_b32 s35, {QK_HEAD}
        v_mul_lo_u32 v{vB}, v{vH}, s35
        v_lshl_add_u32 v{vB}, v{vT}, 4, v{vB}
        s_mul_i32 s35, s{sNq}, {8*QK_HEAD}
        s_mul_i32 s36, s{sBlk}, 1536
        s_add_u32 s35, s35, s36
        s_add_u32 s35, s35, {sec}
        ''')
        if not isK:
            k(f'''
            v_lshlrev_b32 v{vC}, 14, v{vH}
            v_lshl_add_u32 v{vC}, v{vT}, 4, v{vC}
            s_lshr_b32 s36, s{sBlk}, 1
            s_lshl_b32 s38, s36, 9
            s_and_b32 s36, s{sBlk}, 1
            s_lshl_b32 s36, s36, 3
            s_add_u32 s38, s38, s36
            s_lshl_b32 s36, s{sNq}, 17
            s_add_u32 s38, s38, s36
            s_add_u32 s38, s38, {QF2}
            ''')
        ln_all()
        for hp in range(4):
            G0 = 5*hp
            pkb = CS + 12*hp
            for which, (ga, gb) in enumerate(((G0, G0+1), (G0+3, G0+4))):
                p_ = pkb + 4*which
                for q_, g in enumerate((ga, gb)):
                    a_ = acc + 4*g
                    k(f'v_cvt_pk_bf16_f32 v{p_+2*q_}, v{a_}, v{a_+1}')
                    k(f'v_cvt_pk_bf16_f32 v{p_+2*q_+1}, v{a_+2}, v{a_+3}')
            a_ = acc + 4*(G0+2)
            k(f'v_cvt_pk_bf16_f32 v{pkb+8}, v{a_}, v{a_+1}')
            k(f'v_cvt_pk_bf16_f32 v{pkb+9}, v{a_+2}, v{a_+3}')
            for which in range(2):
                p_ = pkb + 4*which
                k(f'v_permlane32_swap_b32 v{p_}, v{p_+2}')
                k(f'v_permlane32_swap_b32 v{p_+1}, v{p_+3}')
            for which in range(2):
                p_ = pkb + 4*which
                k(f's_add_u32 s36, s35, {(2*hp+which)*QK_HEAD}')
                k(f'buffer_store_dwordx4 v[{p_}:{p_+3}], v{vA}, s[{OS}:{OS+3}], s36 offen')
            if isK:
                k(f's_add_u32 s36, s35, {2*hp*QK_HEAD + 1024}')
                k(f'buffer_store_dwordx2 v[{pkb+8}:{pkb+9}], v{vB}, s[{OS}:{OS+3}], s36 offen')
            else:
                k(f's_add_u32 s36, s38, {2*hp*16384}')
                k(f'buffer_store_dwordx2 v[{pkb+8}:{pkb+9}], v{vC}, s[{OS}:{OS+3}], s36 offen')
        if True:
            M = CS + 48; g2 = CS + 56
            k(f'v_cmp_eq_u32 vcc, 1, v{vH}')
            for hp in range(4):
                pkb = CS + 12*hp
                se, so_, p2 = g2 + 4*(hp & 1), g2 + 4*(hp & 1) + 1, g2 + 4*(hp & 1) + 2
                for r, base_ in ((se, pkb), (so_, pkb + 4)):
                    k(f'v_mov_b32 v{r}, 0')
                    for i in range(4): k(f'v_dot2_f32_bf16 v{r}, v{base_+i}, v{base_+i}, v{r}')
                k(f'v_mov_b32 v{p2}, 0')
                for i in range(2): k(f'v_dot2_f32_bf16 v{p2}, v{pkb+8+i}, v{pkb+8+i}, v{p2}')
                cross_half_sum(k, se, p2 + 1); cross_half_sum(k, so_, p2 + 1)
                k(f'v_cndmask_b32 v{M+hp}, v{se}, v{so_}, vcc')
                k(f'v_add_f32 v{M+hp}, v{M+hp}, v{p2}')
        if not isK:
            k(f'''
            v_lshlrev_b32 v{tmp+3}, 13, v{vH}
            v_lshl_add_u32 v{tmp+3}, v{vT}, 5, v{tmp+3}
            s_lshr_b32 s36, s{sBlk}, 3
            s_lshl_b32 s36, s36, 10
            s_and_b32 s37, s{sBlk}, 7
            s_lshl_b32 s37, s37, 2
            s_add_u32 s36, s36, s37
            s_lshl_b32 s37, s{sNq}, 16
            s_add_u32 s36, s36, s37
            s_add_u32 s36, s36, {QN}
            ''')
            for hp in range(4):
                k(f's_add_u32 s37, s36, {hp*2*8192}')
                k(f'buffer_store_dword v{M+hp}, v{tmp+3}, s[{OS}:{OS+3}], s37 offen')
        if isK:
            for mod in ('quad_perm:[1,0,3,2]', 'quad_perm:[2,3,0,1]', 'row_half_mirror', 'row_mirror'):
                for a_ in range(4):
                    k(f'v_max_f32_dpp v{M+a_}, v{M+a_}, v{M+a_} {mod} row_mask:0xf bank_mask:0xf')
            for a_ in range(4):
                k(f'v_mov_b32 v{g2+a_}, v{M+a_}')
                k(f'v_permlane16_swap_b32 v{M+a_}, v{g2+a_}')
                k(f'v_max_f32 v{M+a_}, v{M+a_}, v{g2+a_}')
            k(f'''
            s_lshl_b32 s36, s{sNq}, 11
            s_lshl_b32 s37, s{sBlk}, 2
            s_add_u32 s36, s36, s37
            s_add_u32 s36, s36, {KMAX}
            v_lshlrev_b32 v{tmp+3}, 8, v{vH}
            s_mov_b32 exec_lo, 1
            s_mov_b32 exec_hi, 1
            ''')
            for a_ in range(4):
                k(f'buffer_store_dword v{M+a_}, v{tmp+3}, s[{OS}:{OS+3}], s36 offen offset:{a_*512}')
        k(f's_branch {Lend}')
    def srd_out(): srd(k, OS, pWS, pWS+1, WS_USED)
    pos = len(k.l)
    qk_epilogue(False)
    k(f'{LK}:')
    qk_epilogue(True)
    k(f'{LH}:')
    cC0, cC1, cOne = cst+4, cst+6, cst+8
    dst = tmp+3
    k(f'''
    v_mul_f32 v{tmp+4}, v{rr}, v{rr}
    v_mul_f32 v{tmp+4}, v{tmp+4}, v{var}
    v_add_f32 v{tmp+4}, {hx(f2u(EPS))}, v{tmp+4}
    v_rsq_f32 v{tmp+4}, v{tmp+4}
    s_lshl_b32 s35, s{sBlk}, 5
    v_add_u32 v{dst}, s35, v{vT}
    s_and_b32 s36, s{sNq}, 1
    s_lshr_b32 s37, s{sNq}, 1
    s_add_u32 s37, s37, 1
    s_sub_u32 s38, 0, s37
    s_cmp_eq_u32 s36, 0
    s_cselect_b32 s37, s37, s38
    v_add_u32 v{dst}, s37, v{dst}
    v_mul_f32 v{rr}, v{rr}, v{tmp+4}
    v_cmp_gt_u32 vcc, 2048, v{dst}
    v_cndmask_b32 v{rr}, 0, v{rr}, vcc
    v_and_b32 v{dst}, 2047, v{dst}
    v_lshrrev_b32 v{tmp+4}, 4, v{dst}
    v_mul_u32_u24 v{tmp+4}, 20480, v{tmp+4}
    v_and_b32 v{dst}, 15, v{dst}
    v_lshlrev_b32 v{dst}, 4, v{dst}
    v_lshlrev_b32 v{tmp+5}, 8, v{vH}
    v_add3_u32 v{dst}, v{dst}, v{tmp+4}, v{tmp+5}
    s_mul_i32 s35, s{sNq}, 5120
    s_add_u32 s35, s35, {HS}
    s_add_u32 s36, s35, 4096
    v_mov_b32 v{cC0}, {hx(f2u(-GELU_C0))}
    v_mov_b32 v{cC0+1}, {hx(f2u(-GELU_C0))}
    v_mov_b32 v{cC1}, {hx(f2u(-GELU_C1))}
    v_mov_b32 v{cC1+1}, {hx(f2u(-GELU_C1))}
    v_mov_b32 v{cOne}, 1.0
    v_mov_b32 v{cOne+1}, 1.0
    ''')
    set_mu_r(1.0)
    ln_all()
    for g in range(20):
        t, j = divmod(g, 4)
        a = acc + 4*g
        g0 = CS + 8*(g & 3)
        gelu_pk(k, a, g0, g0+2, cC0, cC1, cOne)
        gelu_pk(k, a+2, g0+4, g0+6, cC0, cC1, cOne)
        p_ = CS + 40 + 4*((g >> 1) & 3) + 2*(g & 1)
        k(f'v_cvt_pk_bf16_f32 v{p_}, v{a}, v{a+1}')
        k(f'v_cvt_pk_bf16_f32 v{p_+1}, v{a+2}, v{a+3}')
        if g & 1:
            off = t*1024 + (j//2)*512
            so = 35
            if off >= 4096: off -= 4096; so = 36
            k(f'buffer_store_dwordx4 v[{p_-2}:{p_+1}], v{dst}, s[{OS}:{OS+3}], s{so} offen offset:{off}')
    k(f's_branch {Lend}')
    k(f'{LVe}:')
    rt = CS; mrt = CS + 16; csl = CS + 32; voff = CS + 40
    k(f'''
    s_lshl_b32 s35, s{sC}, 7
    s_add_u32 s35, s35, {STR}
    v_lshlrev_b32 v{tmp+5}, 4, v{vH}
    v_add_u32 v{tmp+5}, s35, v{tmp+5}
    v_lshlrev_b32 v{tmp+4}, 2, v{vT}
    v_add_u32 v{tmp+4}, s34, v{tmp+4}
    ''')
    for j in range(4):
        k(f'ds_read_b128 v[{rt+4*j}:{rt+4*j+3}], v{tmp+5} offset:{j*32}')
        k(f'ds_read_b128 v[{mrt+4*j}:{mrt+4*j+3}], v{tmp+5} offset:{512+j*32}')
    for t in range(5): k(f'ds_read_b32 v{csl+t}, v{tmp+4} offset:{t*128}')
    k(f'''
    s_mul_i32 s35, s{sNq}, {8*V_HEAD}
    s_mul_i32 s36, s{sBlk}, 1280
    s_add_u32 s35, s35, s36
    s_add_u32 s35, s35, {VF}
    s_mov_b32 s37, {V_HEAD}
    v_mul_u32_u24 v{voff+7}, 320, v{vH}
    ''')
    for t in range(5):
        k(f'''
        v_add_u32 v{voff+t}, {32*t}, v{vT}
        v_mul_u32_u24 v{voff+5}, 205, v{voff+t}
        v_lshrrev_b32 v{voff+5}, 12, v{voff+5}
        v_mul_u32_u24 v{voff+6}, 20, v{voff+5}
        v_sub_u32 v{voff+t}, v{voff+t}, v{voff+6}
        v_lshlrev_b32 v{voff+t}, 4, v{voff+t}
        v_mul_lo_u32 v{voff+5}, v{voff+5}, s37
        v_add3_u32 v{voff+t}, v{voff+t}, v{voff+5}, v{voff+7}
        ''')
    k('s_waitcnt lgkmcnt(0)')
    for t in range(5):
        for i in range(16):
            a = acc + 16*t + i
            k(f'v_mul_f32 v{a}, v{a}, v{rt+i}')
        for i in range(16):
            a = acc + 16*t + i
            k(f'v_fma_f32 v{a}, -v{mrt+i}, v{csl+t}, v{a}')
        for m in range(2):
            d = CS + 48 + 4*((2*t + m) & 3)
            for p in range(4):
                a = acc + 16*t + 8*m + 2*p
                k(f'v_cvt_pk_bf16_f32 v{d+p}, v{a}, v{a+1}')
            k(f'buffer_store_dwordx4 v[{d}:{d+3}], v{voff+t}, s[{OS}:{OS+3}], s35 offen offset:{m*640}')
    k(f's_branch {Lend}')
    k(f'{Lload}:')
    k('s_setprio 1')
    k(f'''
    s_mul_i32 s{sWl}, s{sC}, 5120
    s_add_u32 s{sWl}, s{sWl}, {LW}
    v_lshrrev_b32 v{t0}, 3, v{vL}
    s_lshl_b32 s34, s{sC}, 5
    v_add_u32 v{t0}, s34, v{t0}
    v_lshrrev_b32 v{t1}, 4, v{vL}
    v_and_b32 v{t2}, 7, v{vL}
    ''')
    for i in range(4):
        k(f'''
        v_add_u32 v{t3}, {8*i}, v{t0}
        v_mul_u32_u24 v{t3}, 1280, v{t3}
        v_add_u32 v{vXoff+i}, {4*(i&1)}, v{t1}
        v_xor_b32 v{vXoff+i}, v{vXoff+i}, v{t2}
        v_lshlrev_b32 v{vXoff+i}, 4, v{vXoff+i}
        v_add_u32 v{vXoff+i}, v{vXoff+i}, v{t3}
        ''')
    k(f's_mul_i32 s34, s{sC}, 320')
    for i in range(5):
        k(f'''
        v_add_u32 v{t0}, s34, v{vL}
        v_add_u32 v{t0}, {64*i}, v{t0}
        v_mul_u32_u24 v{t1}, 3277, v{t0}
        v_lshrrev_b32 v{t1}, 16, v{t1}
        v_mul_u32_u24 v{t2}, 20, v{t1}
        v_sub_u32 v{t2}, v{t0}, v{t2}
        v_lshlrev_b32 v{t2}, 4, v{t2}
        v_mul_lo_u32 v{t1}, v{t1}, s{sLdw}
        v_add_u32 v{vWoff+i}, v{t1}, v{t2}
        ''')
    k('s_waitcnt lgkmcnt(0)')
    srd_xw()
    if 'nopf' not in dbg: prefetch(0)[1](sC)
    def dma_list(s):
        slot = s % 4
        out = []
        pre = [f's_mov_b32 s{sXo}, {s*128}', f's_mul_i32 s{sWo}, s{sLdw64}, {s}']
        for i in range(4):
            out.append([f's_add_u32 m0, s{sXl}, {slot*16384 + i*1024}', f'buffer_load_dwordx4 v{vXoff+i}, s[{XS}:{XS+3}], s{sXo} offen {"nt" if "ntx" in dbg else ""} lds'])
        for i in range(5):
            out.append([f's_add_u32 m0, s{sWl}, {slot*20480 + i*1024}', f'buffer_load_dwordx4 v{vWoff+i}, s[{WS_}:{WS_+3}], s{sWo} offen {"nt" if "ntw" in dbg else ""} lds'])
        out[0] = pre + out[0]
        return out
    def dma_stage(s):
        for grp in dma_list(s):
            for l in grp: k(l)
    dma_stage(0); dma_stage(1)
    srd(k, OS, pWS, pWS+1, WS_USED)
    k(f'''
    v_lshrrev_b32 v{t0}, 1, v{vT}
    v_and_b32 v{t0}, 7, v{t0}
    v_lshlrev_b32 v{t1}, 7, v{vT}
    v_add_u32 v{t1}, s{sXl}, v{t1}
    ''')
    for i in range(4):
        k(f'''
        v_lshlrev_b32 v{t2}, 2, v{vH}
        v_add_u32 v{t2}, {i}, v{t2}
        v_xor_b32 v{t2}, v{t2}, v{t0}
        v_lshlrev_b32 v{t2}, 4, v{t2}
        v_add_u32 v{vSa+i}, v{t1}, v{t2}
        ''')
    for r in list(range(aS, aS+4)) + list(range(aQ, aQ+4)): k(f'v_mov_b32 v{r}, 0')
    Lnf = k.label('nf')
    k(f'''
    s_or_b32 s34, s{sNb}, s{sC}
    s_cmp_lg_u32 s34, 0
    s_cbranch_scc1 {Lnf}
    s_lshl_b32 s34, s{sMb}, 7
    s_add_u32 s34, s34, {FLAGA}
    s_add_u32 s35, s34, {FLAGB-FLAGA}
    v_lshlrev_b32 v{t0}, 2, v{vL}
    v_mov_b32 v{t1}, 0
    s_mov_b32 exec_hi, 0
    '''.replace('XX',''))
    k(f'''
    buffer_store_dword v{t1}, v{t0}, s[{OS}:{OS+3}], s34 offen
    buffer_store_dword v{t1}, v{t0}, s[{OS}:{OS+3}], s35 offen
    s_add_u32 s35, s34, {FLAGC-FLAGA}
    buffer_store_dword v{t1}, v{t0}, s[{OS}:{OS+3}], s35 offen
    s_mov_b64 exec, -1
    s_waitcnt vmcnt(0)
    {Lnf}:
    ''')
    RP3 = 32768; RP16 = LW + 2*20480
    def repack_setup():
        for i in range(5): k(f'v_mov_b32 v{RPo+i}, 0')
        L3 = k.label('rp3'); L16 = k.label('rp16'); La = k.label('rpa'); Lb = k.label('rpb'); Lc = k.label('rpc')
        u0, u1, u2 = tmp+20, tmp+21, tmp+22
        k(f'''
        s_cmp_lg_u32 s{sC}, 0
        s_cbranch_scc1 {L3}
        ''')
        srd(k, 76, pW3, pW3+1, 640*3072)
        for i in range(3):
            k(f'''
            v_add_u32 v{u0}, {64*i}, v{vL}
            v_mul_u32_u24 v{u1}, 5462, v{u0}
            v_lshrrev_b32 v{u1}, 16, v{u1}
            v_mul_u32_u24 v{u2}, 12, v{u1}
            v_sub_u32 v{u2}, v{u0}, v{u2}
            v_lshlrev_b32 v{u2}, 4, v{u2}
            v_mul_u32_u24 v{u1}, 3072, v{u1}
            v_add_u32 v{RPo+i}, v{u1}, v{u2}
            ''')
        k(f'''
        s_mul_i32 s69, s{sMb}, {16*3072}
        s_mul_i32 s70, s{sNb}, 192
        s_add_u32 s69, s69, s70
        s_branch {L16}
        {L3}:
        s_sub_u32 s68, s{sC}, 1
        s_lshl_b32 s68, s68, 8
        s_add_u32 s68, s68, s2
        s_cmp_lt_u32 s68, 704
        s_cselect_b32 s65, 1, 0
        s_mov_b32 s66, s68
        s_mul_i32 s67, s68, 5120
        s_add_u32 s67, s67, {PW}
        s_cmp_lt_u32 s68, 320
        s_cbranch_scc0 {La}
        s_cmp_lt_u32 s68, 160
        s_cbranch_scc0 {Lb}
        s_mov_b32 s72, s{pW2}
        s_mov_b32 s73, s{pW2+1}
        s_branch {Lc}b
        {Lb}:
        s_sub_u32 s68, s68, 160
        s_mov_b32 s72, s{pWO}
        s_mov_b32 s73, s{pWO+1}
        {Lc}b:
        s_mul_i32 s69, s68, 3277
        s_lshr_b32 s69, s69, 16
        s_mul_i32 s70, s69, 20
        s_sub_u32 s70, s68, s70
        s_mov_b32 s74, {640*1280}
        s_branch {Lc}
        {La}:
        s_sub_u32 s68, s68, 320
        s_mov_b32 s72, s{pW4}
        s_mov_b32 s73, s{pW4+1}
        s_mul_i32 s69, s68, 1366
        s_lshr_b32 s69, s69, 16
        s_mul_i32 s70, s69, 48
        s_sub_u32 s70, s68, s70
        s_mov_b32 s74, {1536*1280}
        {Lc}:
        s_mul_i32 s70, s70, {32*1280}
        s_mul_i32 s69, s69, 160
        s_add_u32 s69, s69, s70
        s_mov_b32 s76, s72
        s_and_b32 s77, s73, 0xffff
        s_mov_b32 s78, s74
        s_mov_b32 s79, 0x20000
        s_sub_u32 s70, s{sC}, 1
        s_mul_i32 s70, s70, 5120
        s_add_u32 s70, s70, {RP16}
        ''')
        for i in range(5):
            k(f'''
            v_add_u32 v{u0}, {64*i}, v{vL}
            v_mul_u32_u24 v{u1}, 6554, v{u0}
            v_lshrrev_b32 v{u1}, 16, v{u1}
            v_mul_u32_u24 v{u2}, 10, v{u1}
            v_sub_u32 v{u2}, v{u0}, v{u2}
            v_lshlrev_b32 v{u2}, 4, v{u2}
            v_mul_u32_u24 v{u1}, 1280, v{u1}
            v_add_u32 v{RPo+i}, v{u1}, v{u2}
            ''')
        k(f'''
        s_sub_u32 s34, s66, 160
        s_cmp_lt_u32 s34, 160
        s_cbranch_scc0 {L16}
        s_mul_i32 s35, s34, 3277
        s_lshr_b32 s35, s35, 16
        s_mul_i32 s36, s35, 20
        s_sub_u32 s36, s34, s36
        s_mul_i32 s69, s35, 160
        s_lshl_b32 s36, s36, 2
        ''')
        a0, a1, a2, a3 = tmp+23, tmp+24, tmp+25, tmp+26
        for i in range(5):
            k(f'''
            v_add_u32 v{u0}, {64*i}, v{vL}
            v_mul_u32_u24 v{u1}, 6554, v{u0}
            v_lshrrev_b32 v{u1}, 16, v{u1}
            v_mul_u32_u24 v{u2}, 10, v{u1}
            v_sub_u32 v{u2}, v{u0}, v{u2}
            v_lshrrev_b32 v{a0}, 4, v{u1}
            v_bfe_u32 v{a1}, v{u1}, 2, 1
            v_lshl_add_u32 v{a0}, v{a0}, 1, v{a1}
            v_add_u32 v{a0}, s36, v{a0}
            v_mul_u32_u24 v{a1}, 205, v{a0}
            v_lshrrev_b32 v{a1}, 10, v{a1}
            v_mul_u32_u24 v{a2}, 5, v{a1}
            v_sub_u32 v{a0}, v{a0}, v{a2}
            v_mul_u32_u24 v{a1}, 40, v{a1}
            v_bfe_u32 v{a2}, v{u1}, 3, 1
            v_and_b32 v{u1}, 3, v{u1}
            v_lshl_add_u32 v{a3}, v{a2}, 2, v{u1}
            v_cmp_eq_u32 vcc, 1, v{a0}
            v_cndmask_b32 v{u0}, 0, 8, vcc
            v_cmp_eq_u32 vcc, 4, v{a0}
            v_cndmask_b32 v{u0}, v{u0}, 8, vcc
            v_add_u32 v{a3}, v{a3}, v{u0}
            v_add_u32 v{u1}, 16, v{u1}
            v_cmp_eq_u32 vcc, 2, v{a0}
            v_cndmask_b32 v{a3}, v{a3}, v{u1}, vcc
            v_cndmask_b32 v{u0}, 0, v{a2}, vcc
            v_cmp_lt_u32 vcc, 2, v{a0}
            v_cndmask_b32 v{u0}, v{u0}, 1, vcc
            v_mul_u32_u24 v{u0}, 20, v{u0}
            v_add3_u32 v{a1}, v{a1}, v{u0}, v{a3}
            v_mul_u32_u24 v{a1}, 1280, v{a1}
            v_lshl_add_u32 v{RPo+i}, v{u2}, 4, v{a1}
            ''')
        k(f'{L16}:')
    def repack_issue():
        L3 = k.label('ri3'); Lx_ = k.label('rix')
        k(f'''
        s_cmp_lg_u32 s{sC}, 0
        s_cbranch_scc1 {L3}
        ''')
        for j in range(3):
            if j == 2:
                k(f's_cmp_ge_u32 s{sMb}, 8')
                k(f's_cbranch_scc1 {Lx_}')
            for i in range(3):
                k(f's_mov_b32 m0, {RP3 + j*3072 + i*1024}')
                k(f'buffer_load_dwordx4 v{RPo+i}, s[76:79], s69 offen lds')
            k(f's_add_u32 s69, s69, {16*16*3072}')
        k(f'''
        s_branch {Lx_}
        {L3}:
        s_cmp_eq_u32 s65, 0
        s_cbranch_scc1 {Lx_}
        ''')
        for i in range(5):
            k(f's_add_u32 m0, s70, {i*1024}')
            k(f'buffer_load_dwordx4 v{RPo+i}, s[76:79], s69 offen lds')
        k(f'{Lx_}:')
    def stats(s, dmas=None):
        slot = s % 4; b = SX[s & 1]
        dmas = list(dmas or [])
        if 'cstats' in dbg:
            for grp in dmas:
                for l in grp: k(l)
            return
        for i in range(4):
            k(f'ds_read_b128 v[{b+4*i}:{b+4*i+3}], v{vSa+i} offset:{slot*16384}')
        if dmas:
            for l in dmas.pop(0): k(l)
        k('s_waitcnt lgkmcnt(0)')
        if 'nostats' in dbg:
            for grp in dmas:
                for l in grp: k(l)
            return
        for i in range(16):
            if dmas and i % 2 == 1:
                for l in dmas.pop(0): k(l)
            lo, hi = un + 2*(i & 3), un + 2*(i & 3) + 1
            k(f'v_lshlrev_b32 v{lo}, 16, v{b+i}')
            k(f'v_and_b32 v{hi}, 0xffff0000, v{b+i}')
            k(f'v_add_f32 v{aS+(i&1)}, v{aS+(i&1)}, v{lo}')
            k(f'v_fmac_f32 v{aQ+(i&1)}, v{lo}, v{lo}')
            k(f'v_add_f32 v{aS+2+(i&1)}, v{aS+2+(i&1)}, v{hi}')
            k(f'v_fmac_f32 v{aQ+2+(i&1)}, v{hi}, v{hi}')
    repack_setup()
    k('s_waitcnt vmcnt(9) lgkmcnt(0)')
    k('s_barrier')
    dma_stage(2)
    k('s_waitcnt vmcnt(9)')
    k('s_barrier')
    stats(0, dma_list(3))
    for s in range(1, 10):
        if s + 1 <= 9:
            later = [g for g in range(s + 2, min(s + 3, 10))]
            k(f's_waitcnt vmcnt({9*len(later)})')
        k('s_barrier')
        if 'lst' in dbg and s in (7, 8, 9): k(f's_memtime s[{80+2*(s-6)}:{81+2*(s-6)}]')
        stats(s, dma_list(s + 3) if (s + 3 <= 9 and 'nodma' not in dbg) else None)
        if s == 8: repack_issue()
    if 'lst' in dbg: k('s_memtime s[88:89]')
    if 'cstats' in dbg:
        k('s_barrier')
    else:
        mu, rr, var = tmp, tmp+1, tmp+2
        k(f'''
        v_add_f32 v{aS}, v{aS}, v{aS+1}
        v_add_f32 v{aS+2}, v{aS+2}, v{aS+3}
        v_add_f32 v{aQ}, v{aQ}, v{aQ+1}
        v_add_f32 v{aQ+2}, v{aQ+2}, v{aQ+3}
        v_add_f32 v{aS}, v{aS}, v{aS+2}
        v_add_f32 v{aQ}, v{aQ}, v{aQ+2}
        ''')
        cross_half_sum(k, aS, tmp+5); cross_half_sum(k, aQ, tmp+6)
        k(f'''
        v_mul_f32 v{mu}, {hx(f2u(1.0/640))}, v{aS}
        v_mul_f32 v{var}, {hx(f2u(1.0/640))}, v{aQ}
        v_fma_f32 v{var}, -v{mu}, v{mu}, v{var}
        v_max_f32 v{var}, 0, v{var}
        v_add_f32 v{rr}, {hx(f2u(EPS))}, v{var}
        v_rsq_f32 v{rr}, v{rr}
        v_lshlrev_b32 v{tmp+4}, 4, v{vT}
        s_lshl_b32 s34, s{sC}, 9
        s_add_u32 s34, s34, {STB}
        v_add_u32 v{tmp+4}, s34, v{tmp+4}
        v_mul_f32 v{tmp+3}, v{mu}, v{rr}
        ds_write_b96 v{tmp+4}, v[{mu}:{mu+2}]
        v_lshlrev_b32 v{tmp+4}, 2, v{vT}
        s_lshl_b32 s34, s{sC}, 7
        s_add_u32 s34, s34, {STR}
        v_add_u32 v{tmp+4}, s34, v{tmp+4}
        ds_write_b32 v{tmp+4}, v{rr}
        ds_write_b32 v{tmp+4}, v{tmp+3} offset:512
        s_waitcnt lgkmcnt(0)
        s_barrier
        ''')
        if 'lst' in dbg: k('s_memtime s[90:91]')
        Lns = k.label('ns')
        k(f'''
        s_cmp_lg_u32 s{sNb}, 0
        s_cbranch_scc1 {Lns}
        s_lshl_b32 s34, s{sBlk}, 8
        s_add_u32 s34, s34, {ST1}
        v_lshlrev_b32 v{tmp+3}, 3, v{vT}
        s_mov_b32 exec_hi, 0
        buffer_store_dwordx2 v[{mu}:{mu+1}], v{tmp+3}, s[{OS}:{OS+3}], s34 offen
        s_mov_b64 exec, -1
        {Lns}:
        ''')
    L16f = k.label('rf16'); Lx = k.label('rfx')
    t0, t1, t2, t3 = tmp+20, tmp+21, tmp+22, tmp+23
    k(f'''
    s_waitcnt vmcnt(0)
    s_cmp_lg_u32 s{sC}, 0
    s_cbranch_scc1 {L16f}
    v_lshrrev_b32 v{t0}, 4, v{vL}
    v_and_b32 v{t1}, 15, v{vL}
    v_lshrrev_b32 v{t2}, 2, v{t1}
    v_and_b32 v{t1}, 3, v{t1}
    v_lshrrev_b32 v{t3}, 1, v{t0}
    v_lshlrev_b32 v{t3}, 3, v{t3}
    v_add_u32 v{t2}, v{t2}, v{t3}
    v_mul_u32_u24 v{t2}, 192, v{t2}
    v_and_b32 v{t0}, 1, v{t0}
    v_lshlrev_b32 v{t0}, 5, v{t0}
    v_lshlrev_b32 v{t1}, 3, v{t1}
    v_add3_u32 v{t0}, v{t2}, v{t0}, v{t1}
    v_lshlrev_b32 v{t1}, 4, v{vL}
    ''')
    for ft in range(3): k(f'v_mov_b32 v{Fc+ft}, 0')
    for j in range(3):
        Lsk = k.label('rf3s')
        if j == 2:
            k(f's_cmp_ge_u32 s{sMb}, 8')
            k(f's_cbranch_scc1 {Lsk}')
        for ft in range(3):
            for jj in range(2):
                k(f'ds_read_b64_tr_b16 v[{F+4*ft+2*jj}:{F+4*ft+2*jj+1}], v{t0} offset:{RP3 + j*3072 + 4*jj*192 + ft*64}')
        k(f'''
        s_add_u32 s34, s{sMb}, {16*j}
        s_mul_i32 s35, s{sNb}, 40
        s_add_u32 s34, s34, s35
        s_mul_i32 s34, s34, 3072
        s_add_u32 s34, s34, {PW3}
        s_waitcnt lgkmcnt(0)
        ''')
        for ft in range(3):
            k(f'buffer_store_dwordx4 v[{F+4*ft}:{F+4*ft+3}], v{t1}, s[{OS}:{OS+3}], s34 offen offset:{ft*1024}')
        for ft in range(3):
            for i in range(4): k(f'v_dot2_f32_bf16 v{Fc+ft}, v{F+4*ft+i}, v{ones}, v{Fc+ft}')
        k('s_nop 1')
        k(f'{Lsk}:')
    for ft in range(3): cross_half_sum(k, Fc+ft, tmp+24+ft)
    k(f'''
    s_mul_i32 s34, s{sNb}, {16*384}
    s_mul_i32 s35, s{sMb}, 384
    s_add_u32 s34, s34, s35
    s_add_u32 s34, s34, {CS3P}
    v_lshlrev_b32 v{t0}, 2, v{vT}
    s_mov_b32 exec_hi, 0
    ''')
    for ft in range(3):
        k(f'buffer_store_dword v{Fc+ft}, v{t0}, s[{OS}:{OS+3}], s34 offen offset:{ft*128}')
    k(f'''
    s_branch {Lend}
    {L16f}:
    s_cmp_eq_u32 s65, 0
    s_cbranch_scc1 {Lend}
    v_lshrrev_b32 v{t3}, 4, v{vL}
    v_and_b32 v{t2}, 15, v{vL}
    v_lshrrev_b32 v{t0}, 1, v{t3}
    v_lshlrev_b32 v{t0}, 4, v{t0}
    v_and_b32 v{t1}, 1, v{t3}
    v_lshl_add_u32 v{t0}, v{t1}, 2, v{t0}
    v_lshrrev_b32 v{t1}, 2, v{t2}
    v_add_u32 v{t0}, v{t0}, v{t1}
    v_mul_u32_u24 v{t0}, 160, v{t0}
    v_and_b32 v{t1}, 3, v{t2}
    v_lshl_add_u32 v{t0}, v{t1}, 3, v{t0}
    s_sub_u32 s70, s{sC}, 1
    s_mul_i32 s70, s70, 5120
    s_add_u32 s70, s70, {RP16}
    v_add_u32 v{t0}, s70, v{t0}
    ''')
    for ft in range(5):
        for j in range(2):
            k(f'ds_read_b64_tr_b16 v[{F+4*ft+2*j}:{F+4*ft+2*j+1}], v{t0} offset:{j*1280 + ft*32}')
    k(f'''
    v_lshlrev_b32 v{t1}, 4, v{vL}
    s_add_u32 s70, s67, 4096
    s_waitcnt lgkmcnt(0)
    ''')
    for ft in range(5):
        so, off = (67, ft*1024) if ft < 4 else (70, 0)
        k(f'buffer_store_dwordx4 v[{F+4*ft}:{F+4*ft+3}], v{t1}, s[{OS}:{OS+3}], s{so} offen offset:{off}')
    k(f'{Lend}:')
    if stamps:
        Lx2 = k.label('x')
        k(f's_cmp_ge_u32 s2, 256')
        k(f's_cbranch_scc1 {Lx2}')
        k(f's_cmp_ge_u32 s{sWave}, 4')
        k(f's_cbranch_scc{0 if "lst" in dbg else 1} {Lx2}')
        if 'lst' in dbg:
            k(f's_and_b32 s{sWave}, s{sWave}, 3')
            st.n = 6
            k('s_waitcnt vmcnt(0)')
            k('s_memtime s[92:93]')
            st.n = 7
            st.dump(OS, sWave, tmp)
            k('s_endpgm')
            st.n = 5
        k('s_mov_b64 exec, -1')
        st()
        k('s_waitcnt vmcnt(0)')
        st()
        st.dump(OS, sWave, tmp)
        k(f'{Lx2}:')
    k('s_endpgm')
    idx = next(i for i, l in enumerate(k.l) if l.startswith(f'v_lshrrev_b32 v{t0-20}, 1, v{vT}'))
    ins = ['s_waitcnt lgkmcnt(0)', f's_mov_b32 s{OS}, s{pWS}', f's_and_b32 s{OS+1}, s{pWS+1}, 0xffff', f's_mov_b32 s{OS+2}, {WS_USED}', f's_mov_b32 s{OS+3}, 0x20000']
    k.l[idx:idx] = ins
    return k.finish(), kdesc(name, nv), nv, LDS_TOTAL

if __name__ == '__main__':
    t, d, nv, lds = gen_g1()
    print(nv, lds)
```

```python
from common import *

def body_g3(k, st=None, merged=False, rot=True):
    st = st or (lambda: None)
    SC = ' sc1' if merged else ''
    va = VA(1, 256)
    vL = va.alloc(); vT = va.alloc(); vH = va.alloc()
    vWoff = va.alloc(3, align=1); vXo = va.alloc(); vWr = va.alloc()
    acc = va.alloc(48, align=4)
    X = [va.alloc(16, align=4) for _ in range(4)]
    Wf = [va.alloc(12, align=4) for _ in range(3)]
    csp = va.alloc(16, align=4)
    ps = va.alloc(8, align=4)
    tmp = va.alloc(28, align=4)
    cst = va.alloc(12, align=2)
    nv = va.n
    WS, W3 = 8, 12
    sWave, sMb, sNb, sWl, sWo, sXo, sRot = 20, 21, 22, 23, 24, 25, 26
    CSB = 49152
    st()
    k(f'''
    s_load_dwordx2 s[4:5], s[0:1], {KA_WS}
    s_and_b32 s36, s2, 7
    s_lshr_b32 s37, s2, 3
    s_and_b32 s38, s36, 3
    s_lshl_b32 s38, s38, 2
    s_and_b32 s39, s37, 3
    s_add_u32 s{sMb}, s38, s39
    s_lshr_b32 s38, s36, 2
    s_lshl_b32 s38, s38, 3
    s_lshr_b32 s40, s37, 2
    s_add_u32 s{sNb}, s38, s40
    v_and_b32 v{vL}, 63, v0
    v_lshrrev_b32 v{tmp}, 6, v0
    v_and_b32 v{vT}, 31, v{vL}
    v_readfirstlane_b32 s{sWave}, v{tmp}
    v_lshrrev_b32 v{vH}, 5, v{vL}
    s_mul_i32 s41, s39, 5
    s_lshr_b32 s41, s41, 1
    s_add_u32 s41, s41, s40
    s_cmp_ge_u32 s41, 10
    s_cselect_b32 s42, 10, 0
    s_sub_u32 s{sRot}, s41, s42
    s_mul_i32 s{sRot}, s{sRot}, {1 if rot else 0}
    s_waitcnt lgkmcnt(0)
    ''')
    srd(k, WS, 4, 5, WS_USED)
    t0, t1, t2, t3 = tmp, tmp+1, tmp+2, tmp+3
    k(f'''
    s_mul_i32 s{sWl}, s{sWave}, 3072
    s_mul_i32 s41, s{sNb}, {40*3072}
    s_add_u32 s41, s41, s{sWl}
    s_add_u32 s57, s41, {PW3}
    ''')
    k(f'''
    v_lshlrev_b32 v{vXo}, 4, v{vL}
    s_lshl_b32 s43, s{sMb}, 2
    s_add_u32 s43, s43, s{sWave}
    s_mul_i32 s44, s43, {40*1024}
    s_add_u32 s44, s44, {X1F}
    ''')
    def stage_loads(s, dow=True, dox=True):
        slot = s % 4
        k(f'''
        s_add_u32 s45, s{sRot}, {s}
        s_cmp_ge_u32 s45, 10
        s_cselect_b32 s46, 10, 0
        s_sub_u32 s45, s45, s46
        s_mul_i32 s{sWo}, s45, 12288
        s_add_u32 s{sWo}, s{sWo}, s57
        s_lshl_b32 s45, s45, 12
        s_add_u32 s{sXo}, s44, s45
        ''')
        for i in range(3):
            if not dow: break
            k(f's_add_u32 m0, s{sWl}, {slot*12288 + i*1024}')
            k(f'buffer_load_dwordx4 v{vXo}, s[{WS}:{WS+3}], s{sWo} offen offset:{0} lds') if i == 0 else (k(f's_add_u32 s{sWo}, s{sWo}, 1024'), k(f'buffer_load_dwordx4 v{vXo}, s[{WS}:{WS+3}], s{sWo} offen lds'))
        for ks in range(4):
            if not dox: break
            r = X[slot] + 4*ks
            k(f'buffer_load_dwordx4 v[{r}:{r+3}], v{vXo}, s[{WS}:{WS+3}], s{sXo} offen offset:{ks*1024}{SC}')
    def csp_loads():
        k(f'''
        s_mul_i32 s45, s{sNb}, {16*384}
        s_mul_i32 s46, s{sWave}, 96
        s_add_u32 s45, s45, s46
        s_add_u32 s45, s45, {CS3P}
        v_lshlrev_b32 v{t0}, 2, v{vL}
        s_mov_b64 exec, 0xffffff
        ''')
        for i in range(16):
            if i*384 < 4096: k(f'buffer_load_dword v{csp+i}, v{t0}, s[{WS}:{WS+3}], s45 offen offset:{i*384}')
            else:
                if i == 11: k(f's_add_u32 s45, s45, 4096')
                k(f'buffer_load_dword v{csp+i}, v{t0}, s[{WS}:{WS+3}], s45 offen offset:{i*384-4096}')
        k('s_mov_b64 exec, -1')
    def ps_loads():
        k(f'''
        s_lshl_b32 s45, s43, 11
        s_add_u32 s45, s45, {PS}
        v_lshlrev_b32 v{t0}, 6, v{vT}
        v_lshl_add_u32 v{t0}, v{vH}, 5, v{t0}
        buffer_load_dwordx4 v[{ps}:{ps+3}], v{t0}, s[{WS}:{WS+3}], s45 offen{SC}
        buffer_load_dwordx4 v[{ps+4}:{ps+7}], v{t0}, s[{WS}:{WS+3}], s45 offen offset:16{SC}
        ''')
    log = []
    for s in range(4):
        stage_loads(s, dox=False); log += [('w', s)]*3
    csp_loads(); log += [('e', -1)]*16
    if merged:
        k(f's_lshl_b32 s53, s{sMb}, 7')
        k(f's_add_u32 s53, s53, {FLAGA}')
        wait_flags(k, WS, 53, sWave, tmp+8, 'wa')
    for s in range(2):
        stage_loads(s, dow=False); log += [('x', s)]*4
    st()
    def reads(n):
        s, ks = divmod(n, 4)
        out = []
        for t in range(3):
            r = Wf[n % 3] + 4*t
            out.append(f'ds_read_b128 v[{r}:{r+3}], v{vXo} offset:{(s%4)*12288 + (ks*3 + t)*1024}')
        return out
    def wait_stage(sg):
        last = max(i for i, (t_, q) in enumerate(log) if q == sg)
        k(f's_waitcnt vmcnt({min(63, len(log) - 1 - last)})')
    wait_stage(0)
    k('s_barrier')
    st()
    stage_loads(2, dow=False); log += [('x', 2)]*4
    stage_loads(3, dow=False); log += [('x', 3)]*4
    ps_loads(); log += [('e', -1)]*2
    for r in reads(0) + reads(1): k(r)
    for n in range(40):
        s, ks = divmod(n, 4)
        if ks == 2 and s < 9:
            wait_stage(s + 1)
            k('s_barrier')
            if s >= 1 and s + 3 <= 9:
                stage_loads(s + 3); log += [('a', s + 3)]*7
        nxt = reads(n+2) if n + 2 < 40 else []
        k(f's_waitcnt lgkmcnt({3 if n + 1 < 40 else 0})')
        x = X[s%4] + 4*ks
        for t in range(3):
            w = Wf[n % 3] + 4*t; a = acc + 16*t
            c = '0' if n == 0 else f'v[{a}:{a+15}]'
            k(f'v_mfma_f32_32x32x16_bf16 v[{a}:{a+15}], v[{w}:{w+3}], v[{x}:{x+3}], {c}')
            if nxt: k(nxt.pop(0))
    st()
    k('s_waitcnt vmcnt(0)')
    for step_ in (8, 4, 2, 1):
        for i in range(step_): k(f'v_add_f32 v{csp+i}, v{csp+i}, v{csp+i+step_}')
    k(f'''
    s_mul_i32 s45, s{sWave}, 96
    s_add_u32 s45, s45, {CSB}
    v_lshlrev_b32 v{t0}, 2, v{vL}
    v_add_u32 v{t0}, s45, v{t0}
    s_mov_b64 exec, 0xffffff
    ds_write_b32 v{t0}, v{csp}
    s_mov_b64 exec, -1
    ''')
    sS, sQ = ps, ps+1
    k(f'''
    v_add_f32 v{ps}, v{ps}, v{ps+2}
    v_add_f32 v{ps+1}, v{ps+1}, v{ps+3}
    v_add_f32 v{ps+4}, v{ps+4}, v{ps+6}
    v_add_f32 v{ps+5}, v{ps+5}, v{ps+7}
    v_add_f32 v{ps}, v{ps}, v{ps+4}
    v_add_f32 v{ps+1}, v{ps+1}, v{ps+5}
    ''')
    cross_half_sum(k, sS, tmp+5); cross_half_sum(k, sQ, tmp+6)
    mu, rr, var = tmp, tmp+1, tmp+2
    nmu2, r2, cC0, cC1, cOne = cst, cst+2, cst+4, cst+6, cst+8
    k(f'''
    v_mul_f32 v{mu}, {hx(f2u(1.0/640))}, v{sS}
    v_mul_f32 v{var}, {hx(f2u(1.0/640))}, v{sQ}
    v_fma_f32 v{var}, -v{mu}, v{mu}, v{var}
    v_max_f32 v{var}, 0, v{var}
    v_add_f32 v{rr}, {hx(f2u(EPS))}, v{var}
    v_rsq_f32 v{rr}, v{rr}
    v_sub_f32 v{nmu2}, 0, v{mu}
    v_sub_f32 v{nmu2+1}, 0, v{mu}
    v_mov_b32 v{r2}, v{rr}
    v_mov_b32 v{r2+1}, v{rr}
    v_mov_b32 v{cC0}, {hx(f2u(-GELU_C0))}
    v_mov_b32 v{cC0+1}, {hx(f2u(-GELU_C0))}
    v_mov_b32 v{cC1}, {hx(f2u(-GELU_C1))}
    v_mov_b32 v{cC1+1}, {hx(f2u(-GELU_C1))}
    v_mov_b32 v{cOne}, 1.0
    v_mov_b32 v{cOne+1}, 1.0
    ''')
    dst = tmp+3
    k(f'''
    s_lshl_b32 s45, s43, 5
    v_add_u32 v{dst}, s45, v{vT}
    v_lshrrev_b32 v{tmp+4}, 4, v{dst}
    s_mov_b32 s46, {NK4*1024}
    v_mul_lo_u32 v{tmp+4}, v{tmp+4}, s46
    v_and_b32 v{dst}, 15, v{dst}
    v_lshlrev_b32 v{dst}, 4, v{dst}
    v_lshlrev_b32 v{tmp+5}, 8, v{vH}
    v_add3_u32 v{dst}, v{dst}, v{tmp+4}, v{tmp+5}
    s_mul_i32 s45, s{sNb}, 3072
    s_add_u32 s45, s45, {A4 + NKO*1024}
    v_lshlrev_b32 v{tmp+7}, 4, v{vH}
    v_add_u32 v{tmp+7}, {CSB}, v{tmp+7}
    s_waitcnt lgkmcnt(0)
    s_barrier
    ''')
    csr = X[0]
    for t in range(3):
        for j in range(4):
            r = csr + 4*(4*t + j)
            k(f'ds_read_b128 v[{r}:{r+3}], v{tmp+7} offset:{(32*t+8*j)*4}')
    k('s_waitcnt lgkmcnt(0)')
    pk = tmp+16
    k(f's_mov_b32 s46, {hx(f2u(-GELU_C1))}')
    for t in range(3):
        for j in range(4):
            a = acc + 16*t + 4*j; c = csr + 4*(4*t + j)
            for i in range(4): k(f'v_fma_f32 v{a+i}, v{c+i}, v{nmu2}, v{a+i}')
            for i in range(4): k(f'v_mul_f32 v{a+i}, v{a+i}, v{r2}')
            gelu_plain4(k, a, tmp+8+4*(j&1), cC0, 46)
            p_ = pk + 4*((2*t + j//2) & 1) + 2*(j & 1)
            k(f'v_cvt_pk_bf16_f32 v{p_}, v{a}, v{a+1}')
            k(f'v_cvt_pk_bf16_f32 v{p_+1}, v{a+2}, v{a+3}')
            if j & 1:
                k(f'buffer_store_dwordx4 v[{p_-2}:{p_+1}], v{dst}, s[{WS}:{WS+3}], s45 offen offset:{t*1024 + (j//2)*512}{SC}')
    if merged:
        k(f'''
        s_lshl_b32 s53, s{sMb}, 7
        s_lshl_b32 s47, s{sNb}, 2
        s_add_u32 s53, s53, s47
        s_add_u32 s53, s53, {FLAGB}
        ''')
        publish(k, WS, 53, sWave, tmp, 'pb')
    return nv, WS, sWave, tmp

def gen_g3(name='g3_kernel', stamps=False):
    k = K(name)
    st = Stamps(k, stamps)
    Lend = k.label('end')
    k('s_cmp_ge_u32 s2, 256')
    k(f's_cbranch_scc1 {Lend}')
    nv, WS, sWave, tmp = body_g3(k, st)
    if stamps:
        k('s_waitcnt vmcnt(0)')
        st()
        st.dump(WS, sWave, tmp)
    k(f'{Lend}:')
    k('s_endpgm')
    return k.finish(), kdesc(name, nv), nv

if __name__ == '__main__':
    t, d, nv = gen_g3()
    print(nv)
```

```python
from common import *

def body_gs(k, mode, st=None, merged=False, rot=True):
    st = st or (lambda: None)
    va = VA(1, 256)
    vL = va.alloc(); vT16 = va.alloc(); vG = va.alloc()
    vXo = va.alloc(4); vWo = va.alloc()
    acc = va.alloc(80, align=4)
    NB = 3
    X = [va.alloc(16, align=4) for _ in range(NB)]
    W = [va.alloc(20, align=4) for _ in range(NB)]
    ex = va.alloc(20, align=4)
    e1 = va.alloc(10, align=2)
    stt = va.alloc(2, align=2)
    tmp = va.alloc(12, align=4)
    nv = va.n
    WS, XS, OUT = 8, 24, 28
    sWave, sMt, sNt, sAo, sWo, sLw, sRot, sW2 = 20, 21, 22, 23, 32, 33, 34, 35
    SC = ' sc1' if merged else ''
    if mode == 'g2':   abase, nk, ks0, n, ubase, upern, asc = HS, 20, 0, 5, PW_W2, 20, ''
    elif mode == 'g4a': abase, nk, ks0, n, ubase, upern, asc = A4, NK4, 0, 5, PW_WO, 20, ''
    else:              abase, nk, ks0, n, ubase, upern, asc = A4, NK4, 20, 12, PW_W4, 48, SC
    two = (mode == 'g4m')
    n2 = 5 if two else 0
    st()
    k(f's_load_dwordx2 s[4:5], s[0:1], {KA_WS}')
    if mode != 'g4a': k(f's_load_dwordx2 s[40:41], s[0:1], {KA_X}')
    if mode in ('g4a', 'g4m'): k(f's_load_dwordx2 s[44:45], s[0:1], {KA_OUT}')
    k(f'''
    s_and_b32 s36, s2, 7
    s_lshr_b32 s37, s2, 3
    s_and_b32 s38, s36, 3
    s_lshl_b32 s38, s38, 3
    s_and_b32 s39, s37, 7
    s_add_u32 s{sMt}, s38, s39
    s_lshr_b32 s38, s36, 2
    s_lshl_b32 s38, s38, 2
    s_lshr_b32 s46, s37, 3
    s_add_u32 s{sNt}, s38, s46
    v_and_b32 v{vL}, 63, v0
    v_lshrrev_b32 v{tmp}, 6, v0
    v_and_b32 v{vT16}, 15, v{vL}
    v_readfirstlane_b32 s{sWave}, v{tmp}
    v_lshrrev_b32 v{vG}, 4, v{vL}
    v_lshlrev_b32 v{vWo}, 4, v{vL}
    ''')
    if rot:
        if n == 5:
            k(f'''
            s_add_u32 s47, s39, s46
            s_mul_i32 s48, s47, 52
            s_lshr_b32 s48, s48, 8
            s_mul_i32 s48, s48, 5
            s_sub_u32 s{sRot}, s47, s48
            ''')
        else:
            k(f'''
            s_mul_i32 s47, s46, 3
            s_add_u32 s47, s47, s39
            s_cmp_ge_u32 s47, 12
            s_cselect_b32 s48, 12, 0
            s_sub_u32 s{sRot}, s47, s48
            ''')
    else:
        k(f's_mov_b32 s{sRot}, 0')
    t0, t1, t2 = tmp, tmp+1, tmp+2
    for a in range(4):
        k(f'''
        s_add_u32 s47, s{sWave}, {a}
        s_and_b32 s47, s47, 3
        s_mul_i32 s47, s47, {nk*1024}
        v_add_u32 v{vXo+a}, s47, v{vWo}
        ''')
    k(f'''
    s_mul_i32 s{sLw}, s{sWave}, 15360
    s_mul_i32 s56, s{sMt}, {4*nk}
    s_add_u32 s56, s56, {ks0}
    s_lshl_b32 s56, s56, 10
    s_add_u32 s56, s56, {abase}
    s_mul_i32 s57, s{sNt}, {upern}
    s_add_u32 s57, s57, {ubase}
    s_mul_i32 s57, s57, 5120
    s_add_u32 s57, s57, {PW}
    s_waitcnt lgkmcnt(0)
    ''')
    srd(k, WS, 4, 5, WS_USED)
    if mode != 'g4a': srd(k, XS, 40, 41, 2048*1280)
    if mode in ('g4a', 'g4m'): srd(k, OUT, 44, 45, 2048*1280)
    if two:
        k(f'''
        s_mul_i32 s58, s{sMt}, {4*nk}
        s_lshl_b32 s58, s58, 10
        s_add_u32 s58, s58, {abase}
        s_mul_i32 s59, s{sNt}, 20
        s_add_u32 s59, s59, {PW_WO}
        s_mul_i32 s59, s59, 5120
        s_add_u32 s59, s59, {PW}
        s_add_u32 s47, s39, s46
        s_mul_i32 s48, s47, 52
        s_lshr_b32 s48, s48, 8
        s_mul_i32 s48, s48, 5
        s_sub_u32 s33, s47, s48
        ''')
    def offsets(s):
        if s >= n:
            k(f'''
            s_add_u32 s47, s33, {s - n}
            s_cmp_ge_u32 s47, 5
            s_cselect_b32 s48, 5, 0
            s_sub_u32 s47, s47, s48
            s_lshl_b32 s47, s47, 2
            s_add_u32 s47, s47, s{sWave}
            s_mul_i32 s{sWo}, s47, 5120
            s_add_u32 s{sWo}, s{sWo}, s59
            s_add_u32 s{sW2}, s{sWo}, 4096
            s_lshl_b32 s47, s47, 10
            s_add_u32 s{sAo}, s47, s58
            ''')
            return
        k(f'''
        s_add_u32 s47, s{sRot}, {s}
        s_cmp_ge_u32 s47, {n}
        s_cselect_b32 s48, {n}, 0
        s_sub_u32 s47, s47, s48
        s_lshl_b32 s47, s47, 2
        s_add_u32 s47, s47, s{sWave}
        s_mul_i32 s{sWo}, s47, 5120
        s_add_u32 s{sWo}, s{sWo}, s57
        s_add_u32 s{sW2}, s{sWo}, 4096
        s_lshl_b32 s47, s47, 10
        s_add_u32 s{sAo}, s47, s56
        ''')
    def wload1(s, ft):
        r = W[s % NB] + 4*ft
        so, off = (sWo, ft*1024) if ft < 4 else (sW2, 0)
        k(f'buffer_load_dwordx4 v[{r}:{r+3}], v{vWo}, s[{WS}:{WS+3}], s{so} offen offset:{off}')
    def xload1(s, a):
        r = X[s % NB] + 4*a
        k(f'buffer_load_dwordx4 v[{r}:{r+3}], v{vXo+a}, s[{WS}:{WS+3}], s{sAo} offen{asc}')
    need_wait = merged and mode in ('g4b', 'g4m')
    if need_wait:
        for s in range(2):
            offsets(s)
            for i in range(5): wload1(s, i)
        k(f'''
        s_lshr_b32 s53, s{sMt}, 1
        s_lshl_b32 s53, s53, 7
        s_add_u32 s53, s53, {FLAGB}
        ''')
        wait_flags(k, WS, 53, sWave, tmp+8, 'wb')
        for s in range(2):
            offsets(s)
            for a in range(4): xload1(s, a)
    else:
        for s in range(2):
            offsets(s)
            for i in range(5): wload1(s, i)
            for a in range(4): xload1(s, a)
    st()
    vtok, vx1, vxo, vpre = tmp+4, tmp+5, tmp+6, tmp+7
    k(f'''
    s_lshl_b32 s47, s{sMt}, 6
    s_lshl_b32 s48, s{sWave}, 4
    s_add_u32 s47, s47, s48
    v_add_u32 v{vtok}, s47, v{vT16}
    v_mul_u32_u24 v{vxo}, 1280, v{vtok}
    v_lshl_add_u32 v{vxo}, v{vG}, 3, v{vxo}
    s_mul_i32 s49, s{sNt}, 160
    s_lshl_b32 s54, s2, 2
    s_add_u32 s54, s54, s{sWave}
    s_mul_i32 s54, s54, 5120
    s_add_u32 s54, s54, {PRE}
    s_add_u32 s55, s54, 4096
    v_lshrrev_b32 v{t0}, 5, v{vtok}
    v_mul_u32_u24 v{t0}, {40*1024}, v{t0}
    v_and_b32 v{t1}, 31, v{vtok}
    v_lshrrev_b32 v{t2}, 1, v{vG}
    v_lshl_add_u32 v{t1}, v{t2}, 5, v{t1}
    v_lshl_add_u32 v{t0}, v{t1}, 4, v{t0}
    v_and_b32 v{t1}, 1, v{vG}
    v_lshl_add_u32 v{vx1}, v{t1}, 3, v{t0}
    s_mul_i32 s50, s{sNt}, 5120
    s_add_u32 s50, s50, {X1F}
    s_add_u32 s51, s50, 4096
    ''')
    def extra_loads():
        ne = 0
        if mode != 'g4a':
            for ft in range(5):
                k(f'buffer_load_dwordx2 v[{ex+2*ft}:{ex+2*ft+1}], v{vxo}, s[{XS}:{XS+3}], s49 offen offset:{ft*32}')
            ne += 5
        else:
            for ft in range(5):
                so, off = (54, ft*1024) if ft < 4 else (55, 0)
                k(f'buffer_load_dwordx4 v[{ex+4*ft}:{ex+4*ft+3}], v{vWo}, s[{WS}:{WS+3}], s{so} offen offset:{off}')
            ne += 5
        if mode == 'g2':
            k(f'''
            v_lshlrev_b32 v{t0}, 3, v{vtok}
            s_mov_b32 s52, {ST1}
            buffer_load_dwordx2 v[{stt}:{stt+1}], v{t0}, s[{WS}:{WS+3}], s52 offen
            ''')
            ne += 1
        elif mode in ('g4b', 'g4m'):
            for ft in range(5):
                so, off = (50, ft*1024) if ft < 4 else (51, 0)
                k(f'buffer_load_dwordx2 v[{e1+2*ft}:{e1+2*ft+1}], v{vx1}, s[{WS}:{WS+3}], s{so} offen offset:{off}{SC}')
            ne += 5
        return ne
    log = []
    if need_wait: log += [('w',0)]*5 + [('w',1)]*5 + [('x',0)]*4 + [('x',1)]*4
    else: log += [('a',0)]*9 + [('a',1)]*9
    NT = n + n2
    for s in range(NT):
        if two and s == n:
            k(f'''
            s_lshr_b32 s53, s{sMt}, 2
            s_lshl_b32 s53, s53, 7
            s_add_u32 s53, s53, {FLAGC}
            ''')
            st()
            wait_flags(k, WS, 53, sWave, tmp+8, 'wc', n=32)
            st()
            for q in (n, n + 1):
                offsets(q)
                for a in range(4): xload1(q, a); log.append(('x', q))
        last = max(i for i, (t, q) in enumerate(log) if q == s and t != 'e')
        k(f's_waitcnt vmcnt({min(63, len(log) - 1 - last)})')
        more = s + 2 < NT
        ld = []
        if more:
            offsets(s + 2)
            ld = [('w', i) for i in range(5)]
            if not (two and s + 2 >= n and s < n): ld += [('x', a) for a in range(4)]
        cnt = 0
        for a in range(4):
            for ft in range(5):
                d = acc + 4*(5*a + ft); x = X[s % NB] + 4*a; w = W[s % NB] + 4*ft
                c = '0' if s == 0 else f'v[{d}:{d+3}]'
                k(f'v_mfma_f32_16x16x32_bf16 v[{d}:{d+3}], v[{w}:{w+3}], v[{x}:{x+3}], {c}')
                cnt += 1
                if ld and cnt % 2 == 0:
                    t, i = ld.pop(0)
                    (wload1 if t == 'w' else xload1)(s + 2, i)
                    log.append(('a', s + 2))
        if s == max(0, n - 3):
            ne = extra_loads(); log += [('e', -1)] * ne
    st()
    wa = tmp+8
    if two: k(f's_mul_i32 s{sLw}, s{sWave}, 15360')
    for a in range(1, 4):
        k(f'''
        s_add_u32 s47, s{sWave}, {a}
        s_and_b32 s47, s47, 3
        s_mul_i32 s47, s47, 15360
        s_add_u32 s47, s47, {(a-1)*5120}
        v_add_u32 v{wa}, s47, v{vWo}
        ''')
        for ft in range(5):
            d = acc + 4*(5*a + ft)
            k(f'ds_write_b128 v{wa}, v[{d}:{d+3}] offset:{ft*1024}')
    k(f'''
    v_add_u32 v{wa}, s{sLw}, v{vWo}
    s_waitcnt lgkmcnt(0)
    s_barrier
    ''')
    R = acc + 20
    for sl in range(3):
        for ft in range(5):
            d = R + 20*sl + 4*ft
            k(f'ds_read_b128 v[{d}:{d+3}], v{wa} offset:{sl*5120 + ft*1024}')
    k('s_waitcnt vmcnt(0) lgkmcnt(0)')
    for i in range(20):
        k(f'v_add_f32 v{R+i}, v{R+i}, v{R+20+i}')
        k(f'v_add_f32 v{acc+i}, v{acc+i}, v{R+40+i}')
    for i in range(20): k(f'v_add_f32 v{acc+i}, v{acc+i}, v{R+i}')
    u = X[0]
    def unpack(src, dst):
        k(f'v_lshlrev_b32 v{dst}, 16, v{src}')
        k(f'v_and_b32 v{dst+1}, 0xffff0000, v{src}')
        k(f'v_lshlrev_b32 v{dst+2}, 16, v{src+1}')
        k(f'v_and_b32 v{dst+3}, 0xffff0000, v{src+1}')
    if mode == 'g2':
        sS, sQ = X[1], X[1]+1
        nmr = X[1]+2
        k(f'v_mul_f32 v{nmr}, v{stt}, v{stt+1}')
        k(f'v_mov_b32 v{sS}, 0'); k(f'v_mov_b32 v{sQ}, 0')
        for ft in range(5):
            unpack(ex+2*ft, u)
            for i in range(4):
                a_ = acc + 4*ft + i
                k(f'v_fma_f32 v{u+i}, v{u+i}, v{stt+1}, -v{nmr}')
                k(f'v_add_f32 v{a_}, v{a_}, v{u+i}')
            pk = X[2] + 2*ft
            k(f'v_cvt_pk_bf16_f32 v{pk}, v{acc+4*ft}, v{acc+4*ft+1}')
            k(f'v_cvt_pk_bf16_f32 v{pk+1}, v{acc+4*ft+2}, v{acc+4*ft+3}')
            so, off = (50, ft*1024) if ft < 4 else (51, 0)
            k(f'buffer_store_dwordx2 v[{pk}:{pk+1}], v{vx1}, s[{WS}:{WS+3}], s{so} offen offset:{off}{SC}')
            unpack(pk, u)
            for i in range(4):
                k(f'v_add_f32 v{sS}, v{sS}, v{u+i}')
                k(f'v_fmac_f32 v{sQ}, v{u+i}, v{u+i}')
        for r in (sS, sQ):
            k(f'v_mov_b32 v{u}, v{r}')
            k(f'v_permlane16_swap_b32 v{r}, v{u}')
            k(f'v_add_f32 v{r}, v{r}, v{u}')
            k(f'v_mov_b32 v{u}, v{r}')
            k(f'v_permlane32_swap_b32 v{r}, v{u}')
            k(f'v_add_f32 v{r}, v{r}, v{u}')
        k(f'''
        v_lshlrev_b32 v{u}, 6, v{vtok}
        s_lshl_b32 s47, s{sNt}, 3
        s_add_u32 s47, s47, {PS}
        s_mov_b64 exec, 0xffff
        buffer_store_dwordx2 v[{sS}:{sS+1}], v{u}, s[{WS}:{WS+3}], s47 offen{SC}
        s_mov_b64 exec, -1
        ''')
        if merged:
            k(f'''
            s_lshr_b32 s53, s{sMt}, 1
            s_lshl_b32 s53, s53, 7
            s_and_b32 s47, s{sMt}, 1
            s_lshl_b32 s47, s47, 3
            s_add_u32 s47, s47, s{sNt}
            s_lshl_b32 s47, s47, 2
            s_add_u32 s53, s53, s47
            s_add_u32 s53, s53, {FLAGA}
            ''')
            publish(k, WS, 53, sWave, u, 'pa')
    elif mode == 'g4b':
        u2 = X[0] + 4
        for ft in range(5):
            unpack(ex+2*ft, u); unpack(e1+2*ft, u2)
            for i in range(4):
                a_ = acc + 4*ft + i
                k(f'v_add_f32 v{u+i}, v{u+i}, v{u2+i}')
                k(f'v_add_f32 v{a_}, v{a_}, v{u+i}')
            so, off = (54, ft*1024) if ft < 4 else (55, 0)
            k(f'buffer_store_dwordx4 v[{acc+4*ft}:{acc+4*ft+3}], v{vWo}, s[{WS}:{WS+3}], s{so} offen offset:{off}')
    else:
        u2 = X[0] + 4
        for ft in range(5):
            if mode == 'g4m':
                unpack(ex+2*ft, u); unpack(e1+2*ft, u2)
                for i in range(4):
                    a_ = acc + 4*ft + i
                    k(f'v_add_f32 v{u+i}, v{u+i}, v{u2+i}')
                    k(f'v_add_f32 v{a_}, v{a_}, v{u+i}')
            else:
                for i in range(4):
                    a_ = acc + 4*ft + i
                    k(f'v_add_f32 v{a_}, v{a_}, v{ex+4*ft+i}')
            pk = X[2] + 2*ft
            k(f'v_cvt_pk_bf16_f32 v{pk}, v{acc+4*ft}, v{acc+4*ft+1}')
            k(f'v_cvt_pk_bf16_f32 v{pk+1}, v{acc+4*ft+2}, v{acc+4*ft+3}')
            k(f'buffer_store_dwordx2 v[{pk}:{pk+1}], v{vxo}, s[{OUT}:{OUT+3}], s49 offen offset:{ft*32}')
    return nv, WS, sWave, tmp

def gen_gs(name, mode, stamps=False):
    k = K(name)
    st = Stamps(k, stamps)
    Lend = k.label('end')
    k('s_cmp_ge_u32 s2, 256')
    k(f's_cbranch_scc1 {Lend}')
    nv, WS, sWave, tmp = body_gs(k, mode, st)
    if stamps:
        k('s_waitcnt vmcnt(0)')
        st()
        st.dump(WS, sWave, tmp)
    k(f'{Lend}:')
    k('s_endpgm')
    return k.finish(), kdesc(name, nv), nv

if __name__ == '__main__':
    for m in ('g2', 'g4a', 'g4b'):
        t, d, nv = gen_gs(m + '_kernel', m)
        print(m, nv)
```

```python
from common import *
import att, gs, g3
def gen_l2(name='l2_kernel', stamps=None, force_slow=False, prio=2, dbg=()):
    k = K(name)
    Lend = k.label('end'); Latt = k.label('att')
    k('s_cmp_ge_u32 s2, 512')
    k(f's_cbranch_scc1 {Lend}')
    k('s_cmp_ge_u32 s2, 256')
    k(f's_cbranch_scc1 {Latt}')
    if 'prio0' in dbg: prio = 0
    if 'nomix' in dbg: k('s_endpgm')
    if prio: k(f's_setprio {prio}')
    stm = Stamps(k, stamps == 'mix', base=62, maxn=15)
    dummy = lambda: None
    n1, WS, sWave, tmp = gs.body_gs(k, 'g2', stm, merged=True)
    n2, _, _, _ = g3.body_g3(k, stm, merged=True)
    n3, WS, sWave, tmp = gs.body_gs(k, 'g4b' if 'l3' in dbg else 'g4m', stm, merged=True)
    if stamps == 'mix':
        k('s_waitcnt vmcnt(0)')
        stm()
        stm.dump(WS, sWave, tmp)
    k('s_endpgm')
    k(f'{Latt}:')
    k('s_sub_u32 s2, s2, 256')
    sta = Stamps(k, stamps == 'att', base=62, maxn=15)
    n4, WS, sWave, tmp = att.body_att(k, sta, force_slow, dbg, pub=('l3' not in dbg))
    if stamps == 'att':
        k('s_waitcnt vmcnt(0)')
        sta()
        sta.dump(WS, sWave, tmp)
    k(f'{Lend}:')
    k('s_endpgm')
    nv = max(n1, n2, n3, n4)
    return k.finish(), kdesc(name, nv), nv
if __name__ == '__main__':
    print(gen_l2()[2])
```

```python
import sys, importlib
sys.path.insert(0, 'gen')
from common import *
HEADER = open('parallel_sum__mha_block__mixer_s_mlp__prompt.s.ref').read().split('; Override launch geometry')[0]
def build(launches, path):
    s = HEADER
    for (name, txt, desc, grid, block, lds) in launches:
        s += f'; @launch kernel={name} grid=({grid},1,1) block=({block},1,1) lds={lds}\n'
    s += '.amdgcn_target "amdgcn-amd-amdhsa--gfx950"\n.text\n'
    seen = set()
    for (name, txt, desc, grid, block, lds) in launches:
        if name in seen: continue
        seen.add(name)
        s += txt + desc
    s += 'TEXT_END:\n  s_endpgm\n'
    open(path, 'w').write(s)
    return s
if __name__ == '__main__':
    import g1, att, gs, g3, l2
    A = sys.argv
    L = []
    if 'oldg1' in A:
        t, d, nv = g1.gen_g1(stamps=('stamps' in A), dbg=[a[4:] for a in A if a.startswith('dbg_')]); L.append(('g1_kernel', t, d, 256, 256, 149504))
    else:
        import g1v3
        t, d, nv, lds = g1v3.gen_g1(stamps=('stamps' in A), dbg=[a[4:] for a in A if a.startswith('dbg_')]); L.append(('g1_kernel', t, d, 256, 512, lds))
    if 'sep' in A:
        t, d, nv = att.gen_att(stamps=('stamps_att' in A), force_slow=('slow' in A)); L.append(('att_kernel', t, d, 256, 256, att.ATT_LDS))
        t, d, nv = gs.gen_gs('g2_kernel', 'g2', stamps=('stamps_g2' in A)); L.append(('g2_kernel', t, d, 256, 256, 61440))
        t, d, nv = g3.gen_g3(stamps=('stamps_g3' in A)); L.append(('g3_kernel', t, d, 256, 256, 49152+512))
        t, d, nv = gs.gen_gs('g4b_kernel', 'g4b', stamps=('stamps_g4b' in A)); L.append(('g4b_kernel', t, d, 256, 256, 61440))
        t, d, nv = gs.gen_gs('g4a_kernel', 'g4a', stamps=('stamps_g4a' in A)); L.append(('g4a_kernel', t, d, 256, 256, 61440))
    else:
        stp = 'mix' if 'stamps_mix' in A else ('att' if 'stamps_att' in A else None)
        t, d, nv = l2.gen_l2(stamps=stp, force_slow=('slow' in A), dbg=[a[4:] for a in A if a.startswith('dbg_')]); L.append(('l2_kernel', t, d, 512, 256, att.ATT_LDS))
        if 'dbg_l3' in A:
            t, d, nv = gs.gen_gs('g4a_kernel', 'g4a', stamps=('stamps_g4a' in A)); L.append(('g4a_kernel', t, d, 256, 256, 61440))
    out = A[1] if len(A) > 1 else 'cur.s'
    build(L, out)
    print('written', out)
```

```python
from common import *

THR = 48.0
ATT_LDS = 73728
def body_att(k, st=None, force_slow=False, dbg=(), pub=False):
    st = st or (lambda: None)
    va = VA(1, 256)
    vL = va.alloc(); vT = va.alloc(); vH = va.alloc()
    vK1 = va.alloc(); vK2 = va.alloc(); vV = va.alloc()
    tmp = va.alloc(4, align=2)
    Q1 = va.alloc(32, align=4)
    Q2 = va.alloc(16, align=4)
    O = va.alloc(100, align=4)
    Sb = [va.alloc(16, align=4) for _ in range(2)]
    P = [va.alloc(8, align=4) for _ in range(2)]
    NB = 3
    K1 = [va.alloc(4, align=4) for _ in range(NB)]
    V = [va.alloc(8, align=4) for _ in range(NB)]
    K2 = [va.alloc(2, align=2) for _ in range(NB)]
    nv = va.n
    WS = 8
    sWave, sHead, sQc, sKo, sVo, sQo = 20, 21, 22, 23, 24, 25
    sLo, sVm, sHi = 26, 28, 30
    sCnt = 32
    st()
    k('s_setprio 3')
    k(f'''
    s_load_dwordx2 s[4:5], s[0:1], {KA_WS}
    v_lshrrev_b32 v{tmp}, 6, v0
    s_and_b32 s36, s2, 7
    s_lshr_b32 s37, s2, 3
    v_readfirstlane_b32 s{sWave}, v{tmp}
    s_lshl_b32 s{sHead}, s36, 2
    s_lshr_b32 s38, s37, 3
    s_add_u32 s{sHead}, s{sHead}, s38
    s_and_b32 s{sQc}, s37, 7
    v_and_b32 v{vL}, 63, v0
    v_and_b32 v{vT}, 31, v{vL}
    v_lshrrev_b32 v{vH}, 5, v{vL}
    s_mov_b32 s{sLo}, -1
    s_mov_b32 s{sLo+1}, 0
    s_mov_b32 s{sHi}, 0
    s_mov_b32 s{sHi+1}, -1
    s_mov_b32 s{sVm}, 0xfffff
    s_mov_b32 s{sVm+1}, 0xfffff
    v_lshlrev_b32 v{vK1}, 4, v{vL}
    v_lshlrev_b32 v{vK2}, 4, v{vT}
    v_mul_u32_u24 v{vV}, 320, v{vH}
    v_lshl_add_u32 v{vV}, v{vT}, 4, v{vV}
    s_mul_i32 s40, s{sHead}, {QK_HEAD}
    s_mul_i32 s41, s{sQc}, {8*1536}
    s_add_u32 s{sQo}, s40, s41
    s_add_u32 s{sQo}, s{sQo}, {QF}
    s_mul_i32 s41, s{sWave}, {16*1536}
    s_add_u32 s{sKo}, s40, s41
    s_add_u32 s{sKo}, s{sKo}, {KF}
    s_mul_i32 s40, s{sHead}, {V_HEAD}
    s_mul_i32 s41, s{sWave}, {16*1280}
    s_add_u32 s{sVo}, s40, s41
    s_add_u32 s{sVo}, s{sVo}, {VF}
    ''')
    k(f'''
    v_cmp_eq_u32 vcc, 20, v{vT}
    v_mov_b32 v{tmp}, 0x3f803f80
    ''')
    k(f'v_cndmask_b32 v{tmp+1}, 0, v{tmp}, vcc')
    for b in range(NB):
        for i in range(8): k(f'v_mov_b32 v{V[b]+i}, v{tmp+1}')
    k(f'v_cmp_eq_u32 vcc, 1, v{vH}')
    k(f'v_cndmask_b32 v{tmp+1}, 0, v{tmp}, vcc')
    for b in range(NB):
        k(f'v_mov_b32 v{K2[b]}, v{tmp+1}')
        k(f'v_mov_b32 v{K2[b]+1}, 0')
    for i in range(16): k(f'v_mov_b32 v{Q2+i}, 0')
    k('s_waitcnt lgkmcnt(0)')
    srd(k, WS, 4, 5, WS_USED)
    def kv_load(b, first=False):
        if 'lprio' in dbg and not first: k('s_setprio 3')
        k(f'buffer_load_dwordx4 v[{K1[b]}:{K1[b]+3}], v{vK1}, s[{WS}:{WS+3}], s{sKo} offen')
        k(f's_mov_b64 exec, s[{sLo}:{sLo+1}]')
        k(f'buffer_load_dwordx2 v[{K2[b]}:{K2[b]+1}], v{vK2}, s[{WS}:{WS+3}], s{sKo} offen offset:1024')
        k(f's_mov_b64 exec, s[{sVm}:{sVm+1}]')
        k(f'buffer_load_dwordx4 v[{V[b]}:{V[b]+3}], v{vV}, s[{WS}:{WS+3}], s{sVo} offen')
        k(f'buffer_load_dwordx4 v[{V[b]+4}:{V[b]+7}], v{vV}, s[{WS}:{WS+3}], s{sVo} offen offset:640')
        k(f's_mov_b64 exec, -1')
        if 'lprio' in dbg and not first: k('s_setprio 0')
        k(f's_add_u32 s{sKo}, s{sKo}, 1536')
        k(f's_add_u32 s{sVo}, s{sVo}, 1280')
    U = Sb[1]
    km = Sb[0]
    QNr = Sb[0] + 4
    k(f'''
    s_lshl_b32 s42, s{sHead}, 8
    s_add_u32 s42, s42, {KMAX}
    v_lshlrev_b32 v{tmp}, 2, v{vL}
    buffer_load_dword v{km}, v{tmp}, s[{WS}:{WS+3}], s42 offen
    s_lshl_b32 s42, s{sHead}, 13
    s_lshl_b32 s43, s{sQc}, 10
    s_add_u32 s42, s42, s43
    s_add_u32 s42, s42, {QN}
    v_lshlrev_b32 v{tmp}, 5, v{vT}
    ''')
    for i in range(4):
        k(f'''
        s_add_u32 s43, s{sWave}, {i}
        s_and_b32 s43, s43, 3
        s_lshl_b32 s43, s43, 3
        s_add_u32 s43, s43, s42
        buffer_load_dwordx2 v[{U+2*i}:{U+2*i+1}], v{tmp}, s[{WS}:{WS+3}], s43 offen
        ''')
    kv_load(0, True)
    for a in range(8):
        k(f'''
        s_lshl_b32 s43, s{sWave}, 1
        s_add_u32 s43, s43, {a}
        s_and_b32 s43, s43, 7
        s_mul_i32 s43, s43, 1536
        s_add_u32 s43, s43, s{sQo}
        buffer_load_dwordx4 v[{Q1+4*a}:{Q1+4*a+3}], v{vK1}, s[{WS}:{WS+3}], s43 offen
        ''')
    k(f'''
    s_lshl_b32 s42, s{sHead}, 14
    s_lshl_b32 s43, s{sQc}, 11
    s_add_u32 s42, s42, s43
    s_add_u32 s42, s42, {QF2}
    s_mov_b64 exec, s[{sLo}:{sLo+1}]
    ''')
    for i in range(4):
        k(f'''
        s_add_u32 s43, s{sWave}, {i}
        s_and_b32 s43, s43, 3
        s_lshl_b32 s43, s43, 9
        s_add_u32 s43, s43, s42
        buffer_load_dwordx4 v[{Q2+4*i}:{Q2+4*i+3}], v{vK2}, s[{WS}:{WS+3}], s43 offen
        ''')
    k('s_mov_b64 exec, -1')
    kv_load(1, True)
    st()
    k('s_waitcnt vmcnt(20)')
    for mod in ('quad_perm:[1,0,3,2]', 'quad_perm:[2,3,0,1]', 'row_half_mirror', 'row_mirror'):
        k(f'v_max_f32_dpp v{km}, v{km}, v{km} {mod} row_mask:0xf bank_mask:0xf')
    k(f'''
    v_mov_b32 v{km+1}, v{km}
    v_permlane16_swap_b32 v{km}, v{km+1}
    v_max_f32 v{km}, v{km}, v{km+1}
    v_mov_b32 v{km+1}, v{km}
    v_permlane32_swap_b32 v{km}, v{km+1}
    v_max_f32 v{km}, v{km}, v{km+1}
    v_mul_f32 v{km}, {hx(f2u(1.03125))}, v{km}
    ''')
    for j in range(8): k(f'v_mul_f32 v{U+j}, v{U+j}, v{km}')
    for j in range(8): k(f'v_sqrt_f32 v{U+j}, v{U+j}')
    mx = Sb[0]+2
    k(f'v_max3_f32 v{mx}, v{U}, v{U+1}, v{U+2}')
    k(f'v_max3_f32 v{mx}, v{mx}, v{U+3}, v{U+4}')
    k(f'v_max3_f32 v{mx}, v{mx}, v{U+5}, v{U+6}')
    k(f'v_max_f32 v{mx}, v{mx}, v{U+7}')
    Lfast = k.label('fast')
    k(f'v_mov_b32 v{Sb[0]+3}, {hx(f2u(THR))}')
    k(f'v_cmp_nle_f32 vcc, v{mx}, v{Sb[0]+3}')
    if force_slow: k('s_mov_b64 vcc, -1')
    k(f's_cbranch_vccz {Lfast}')
    M = U
    k('s_waitcnt vmcnt(0)')
    for j in range(8): k(f'v_mov_b32 v{M+j}, {hx(0xff800000)}')
    sK2o = 33
    k(f's_sub_u32 s{sK2o}, s{sKo}, {2*1536}')
    k(f's_mov_b32 s{sCnt}, 16')
    Lsl = k.label('slow')
    T1, T2 = P[0], P[1]
    Sx = Sb[0]
    k(f'''
    v_mov_b32 v{T2}, 0
    v_mov_b32 v{T2+1}, 0
    {Lsl}:
    buffer_load_dwordx4 v[{T1}:{T1+3}], v{vK1}, s[{WS}:{WS+3}], s{sK2o} offen
    s_mov_b64 exec, s[{sLo}:{sLo+1}]
    buffer_load_dwordx2 v[{T2}:{T2+1}], v{vK2}, s[{WS}:{WS+3}], s{sK2o} offen offset:1024
    s_mov_b64 exec, -1
    s_add_u32 s{sK2o}, s{sK2o}, 1536
    s_waitcnt vmcnt(0)
    ''')
    for j in range(8):
        k(f'v_mfma_f32_32x32x16_bf16 v[{Sx}:{Sx+15}], v[{T1}:{T1+3}], v[{Q1+4*j}:{Q1+4*j+3}], 0')
        k(f'v_mfma_f32_32x32x8_bf16 v[{Sx}:{Sx+15}], v[{T2}:{T2+1}], v[{Q2+2*j}:{Q2+2*j+1}], v[{Sx}:{Sx+15}]')
        for i in range(8):
            k(f'v_max3_f32 v{M+j}, v{M+j}, v{Sx+2*i}, v{Sx+2*i+1}')
    k(f'''
    s_sub_u32 s{sCnt}, s{sCnt}, 1
    s_cmp_lg_u32 s{sCnt}, 0
    s_cbranch_scc1 {Lsl}
    ''')
    for j in range(8):
        k(f'v_mov_b32 v{Sx+j}, v{M+j}')
        k(f'v_permlane32_swap_b32 v{M+j}, v{Sx+j}')
        k(f'v_max_f32 v{M+j}, v{M+j}, v{Sx+j}')
    k(f'''
    v_lshlrev_b32 v{tmp}, 2, v{vT}
    s_lshl_b32 s40, s{sWave}, 10
    v_add_u32 v{tmp+1}, s40, v{tmp}
    ''')
    for a in range(8):
        k(f'''
        s_lshl_b32 s43, s{sWave}, 1
        s_add_u32 s43, s43, {a}
        s_and_b32 s43, s43, 7
        s_lshl_b32 s43, s43, 7
        v_add_u32 v{tmp+2}, s43, v{tmp+1}
        ds_write_b32 v{tmp+2}, v{M+a}
        ''')
    k('s_waitcnt lgkmcnt(0)')
    k('s_barrier')
    for w in range(4):
        for a in range(8):
            k(f'''
            s_lshl_b32 s43, s{sWave}, 1
            s_add_u32 s43, s43, {a}
            s_and_b32 s43, s43, 7
            s_lshl_b32 s43, s43, 7
            v_add_u32 v{tmp+2}, s43, v{tmp}
            ds_read_b32 v{Sx+a}, v{tmp+2} offset:{w*1024}
            ''')
        k('s_waitcnt lgkmcnt(0)')
        for a in range(8): k(f'v_max_f32 v{M+a}, v{M+a}, v{Sx+a}')
    k('s_barrier')
    k(f'{Lfast}:')
    k('s_waitcnt vmcnt(4)')
    k(f's_mov_b64 exec, s[{sHi}:{sHi+1}]')
    for j in range(8):
        a, b_ = Sb[0] + 2*(j & 1), Sb[0] + 2*(j & 1) + 1
        k(f'v_sub_f32 v{a}, 0, v{U+j}')
        k(f'v_and_b32 v{b_}, 0xffff0000, v{a}')
        k(f'v_sub_f32 v{a}, v{a}, v{b_}')
        k(f'v_cvt_pk_bf16_f32 v{Q2+2*j}, v{b_}, v{a}')
    k('s_mov_b64 exec, -1')
    st()
    def qk(n_j, kb, sb, part):
        if part == 0:
            return f'v_mfma_f32_32x32x16_bf16 v[{Sb[sb]}:{Sb[sb]+15}], v[{K1[kb]}:{K1[kb]+3}], v[{Q1+4*n_j}:{Q1+4*n_j+3}], 0'
        return f'v_mfma_f32_32x32x8_bf16 v[{Sb[sb]}:{Sb[sb]+15}], v[{K2[kb]}:{K2[kb]+1}], v[{Q2+2*n_j}:{Q2+2*n_j+1}], v[{Sb[sb]}:{Sb[sb]+15}]'
    def pv(j, vb, pb, part, zero=False):
        o = O + 12*j
        c = '0' if zero else f'v[{o}:{o+15}]'
        return f'v_mfma_f32_32x32x16_bf16 v[{o}:{o+15}], v[{V[vb]+4*part}:{V[vb]+4*part+3}], v[{P[pb]+4*part}:{P[pb]+4*part+3}], {c}'
    def step(j, kb, first=False, pre=None, firstkt=False):
        sb = j & 1
        e = lambda i: k(f'v_exp_f32 v{Sb[sb]+i}, v{Sb[sb]+i}')
        c = lambda i: k(f'v_cvt_pk_bf16_f32 v{P[sb]+i}, v{Sb[sb]+2*i}, v{Sb[sb]+2*i+1}')
        nj = (j + 1) % 8; nkb = kb if j < 7 else (kb + 1) % NB
        e(0); e(1)
        if not first:
            pj = (j - 1) % 8; pkb = kb if j > 0 else (kb - 1) % NB
            k(pv(pj, pkb, sb ^ 1, 1))
        if pre: pre()
        e(2); e(3); e(4); e(5)
        k(qk(nj, nkb, sb ^ 1, 0))
        e(6); e(7); c(0); c(1)
        k(qk(nj, nkb, sb ^ 1, 1))
        c(2); c(3); e(8); e(9); e(10); e(11)
        k(pv(j, kb, sb, 0, zero=firstkt))
        e(12); e(13); e(14); e(15)
        c(4); c(5); c(6); c(7)
    k('s_setprio 0')
    k(qk(0, 0, 0, 0)); k(qk(0, 0, 0, 1))
    k('s_nop 7'); k('s_nop 3')
    def keytile(kb, first):
        for j in range(8):
            pre = None
            if j == 1: pre = lambda: kv_load((kb + 2) % NB)
            if j == 7: k('s_waitcnt vmcnt(6)')
            if j == 0 and not first: k('s_waitcnt vmcnt(4)')
            step(j, kb, first=(first and j == 0), pre=pre, firstkt=first)
    keytile(0, True)
    Lloop = k.label('loop')
    k(f's_mov_b32 s{sCnt}, 5')
    k(f'{Lloop}:')
    keytile(1, False); keytile(2, False); keytile(0, False)
    k(f's_sub_u32 s{sCnt}, s{sCnt}, 1')
    k(f's_cmp_lg_u32 s{sCnt}, 0')
    k(f's_cbranch_scc1 {Lloop}')
    k(pv(7, 0, 1, 1))
    st()
    k('s_setprio 3')
    wa = tmp
    k(f'''
    s_mul_i32 s46, s{sHead}, 3
    s_lshr_b32 s47, s46, 2
    s_lshl_b32 s47, s47, 10
    s_and_b32 s48, s46, 3
    s_lshl_b32 s48, s48, 8
    s_add_u32 s50, s47, s48
    s_add_u32 s50, s50, {A4}
    s_add_u32 s46, s46, 2
    s_lshr_b32 s47, s46, 2
    s_lshl_b32 s47, s47, 10
    s_and_b32 s48, s46, 3
    s_lshl_b32 s48, s48, 8
    s_add_u32 s52, s47, s48
    s_add_u32 s52, s52, {A4}
    ''')
    for a in range(2, 8):
        k(f'''
        s_add_u32 s40, s{sWave}, {a//2}
        s_and_b32 s40, s40, 3
        s_mul_i32 s40, s40, {18*1024}
        s_add_u32 s40, s40, {((a//2 - 1)*2 + (a & 1))*3072}
        v_add_u32 v{wa + (a & 1)}, s40, v{vK1}
        ''')
        o = O + 12*a
        for g in range(3):
            k(f'ds_write_b128 v{wa + (a & 1)}, v[{o+4*g}:{o+4*g+3}] offset:{g*1024}')
    k(f'''
    s_mul_i32 s40, s{sWave}, {18*1024}
    v_add_u32 v{wa}, s40, v{vK1}
    s_waitcnt lgkmcnt(0)
    s_barrier
    ''')
    R = O + 24
    for sl in range(3):
        for b_ in range(2):
            for g in range(3):
                d = R + 24*sl + 12*b_ + 4*g
                k(f'ds_read_b128 v[{d}:{d+3}], v{wa} offset:{(sl*2 + b_)*3072 + g*1024}')
    vo = K1[0]
    k(f'''
    s_lshl_b32 s40, s{sQc}, 8
    s_lshl_b32 s41, s{sWave}, 6
    s_add_u32 s40, s40, s41
    v_add_u32 v{vo}, s40, v{vT}
    v_lshrrev_b32 v{vo+1}, 4, v{vo}
    s_mov_b32 s41, {NK4*1024}
    v_mul_lo_u32 v{vo+1}, v{vo+1}, s41
    v_and_b32 v{vo}, 15, v{vo}
    v_lshl_add_u32 v{vo}, v{vo}, 4, v{vo+1}
    v_add_u32 v{vo+1}, {2*NK4*1024}, v{vo}
    s_waitcnt lgkmcnt(0)
    ''')
    for i in range(24):
        k(f'v_add_f32 v{R+i}, v{R+i}, v{R+24+i}')
        k(f'v_add_f32 v{O+i}, v{O+i}, v{R+48+i}')
    for i in range(24): k(f'v_add_f32 v{O+i}, v{O+i}, v{R+i}')
    for b_ in range(2):
        T = O + 12*b_
        rl, rl2 = Sb[1] + 2*b_, Sb[1] + 2*b_ + 1
        k(f'v_rcp_f32 v{rl}, v{T+8}')
        k(f'v_mov_b32 v{rl2}, v{rl}')
        k(f'v_permlane32_swap_b32 v{rl}, v{rl2}')
        for i in range(12): k(f'v_mul_f32 v{T+i}, v{T+i}, v{rl2}')
        pkd = Sb[0] + 8*b_
        for g in range(3):
            k(f'v_cvt_pk_bf16_f32 v{pkd+2*g}, v{T+4*g}, v{T+4*g+1}')
            k(f'v_cvt_pk_bf16_f32 v{pkd+2*g+1}, v{T+4*g+2}, v{T+4*g+3}')
        k(f'v_permlane32_swap_b32 v{pkd}, v{pkd+2}')
        k(f'v_permlane32_swap_b32 v{pkd+1}, v{pkd+3}')
    SCX = ' sc1' if pub else ''
    c0, c1 = Sb[0] + 4, Sb[0] + 12
    k(f'v_permlane32_swap_b32 v{c0}, v{c1}')
    k(f'v_permlane32_swap_b32 v{c0+1}, v{c1+1}')
    k(f'v_mov_b32 v{c0+2}, 0')
    k(f'v_mov_b32 v{c0+3}, 0')
    k(f'v_lshlrev_b32 v{vo+2}, 8, v{vH}')
    for b_ in range(2):
        pkd = Sb[0] + 8*b_
        k(f'v_add_u32 v{vo+3}, v{vo+2}, v{vo+b_}')
        k(f'buffer_store_dwordx4 v[{pkd}:{pkd+3}], v{vo+3}, s[{WS}:{WS+3}], s50 offen{SCX}')
    k(f'v_cmp_eq_u32 vcc, 1, v{vH}')
    k(f'v_cndmask_b32 v{vo+3}, v{vo}, v{vo+1}, vcc')
    k(f'buffer_store_dwordx4 v[{c0}:{c0+3}], v{vo+3}, s[{WS}:{WS+3}], s52 offen{SCX}')
    if pub:
        k(f'''
        s_lshl_b32 s43, s{sQc}, 2
        s_add_u32 s43, s43, s{sWave}
        s_lshl_b32 s43, s43, 7
        s_lshl_b32 s44, s{sHead}, 2
        s_add_u32 s43, s43, s44
        s_add_u32 s43, s43, {FLAGC}
        v_mov_b32 v{tmp}, 0
        v_mov_b32 v{tmp+1}, 1
        ''')
        st()
        k('s_waitcnt vmcnt(0)')
        k('s_mov_b64 exec, 1')
        k(f'buffer_store_dword v{tmp+1}, v{tmp}, s[{WS}:{WS+3}], s43 offen sc1')
        k('s_mov_b64 exec, -1')
    return nv, WS, sWave, tmp

def gen_att(name='att_kernel', stamps=False, force_slow=False):
    k = K(name)
    st = Stamps(k, stamps)
    Lend = k.label('end')
    k('s_cmp_ge_u32 s2, 256')
    k(f's_cbranch_scc1 {Lend}')
    nv, WS, sWave, tmp = body_att(k, st, force_slow, ('lprio',))
    if stamps:
        k('s_waitcnt vmcnt(0)')
        st()
        st.dump(WS, sWave, tmp)
    k(f'{Lend}:')
    k('s_endpgm')
    return k.finish(), kdesc(name, nv), nv

if __name__ == '__main__':
    t, d, nv = gen_att()
    print(nv)
```

```python
from asmlib import *
S, D, H, DH, F = 2048, 640, 32, 20, 1536
QF   = 0x000000
KF   = 0x300000
VF   = 0x600000
HS   = 0x880000
X1F  = 0xB00000
S0   = 0xD80000
KMAX = S0
ST1  = S0 + 0x2000
CS3P = S0 + 0x8000
PS   = S0 + 0x40000
FLAGA = S0 + 0x60000
FLAGB = S0 + 0x61000
FLAGC = S0 + 0x62000
A4   = 0xE80000
NKO = 24
PW   = 0x1780000
PW_W2, PW_WO, PW_W4 = 0, 160, 352
NUNITS = 736
PW3  = 0x1B20000
QF2  = 0x1D00000
QN   = 0x1D80000
PRE  = 0x1E00000
WS_USED = 0x2300000
QK_HEAD = 64*1536
V_HEAD  = 64*1280
NK4 = 72
KA_X, KA_WQKV, KA_WO, KA_BX, KA_W1, KA_W2, KA_W3, KA_W4, KA_OUT, KA_DBG, KA_WS = [8*i for i in range(11)]
import struct, math
def f2u(x): return struct.unpack('<I', struct.pack('<f', x))[0]
def hx(x): return '0x%08x' % x
LOG2E = 1.4426950408889634
QSCALE = (DH ** -0.5) * LOG2E
GELU_C0 = 2.0 * math.sqrt(2.0/math.pi) * LOG2E
GELU_C1 = GELU_C0 * 0.044715
EPS = 1e-5

def srd(k, s, base_lo, base_hi, size):
    k(f's_mov_b32 s{s}, s{base_lo}')
    k(f's_and_b32 s{s+1}, s{base_hi}, 0xffff')
    k(f's_mov_b32 s{s+2}, {size}')
    k(f's_mov_b32 s{s+3}, 0x20000')

def cross_half_sum(k, a, tmp):
    k(f'v_mov_b32 v{tmp}, v{a}')
    k(f'v_permlane32_swap_b32 v{a}, v{tmp}')
    k(f'v_add_f32 v{a}, v{a}, v{tmp}')

def gelu_pk(k, x, t0, t1, cC0, cC1, cOne):
    k(f'v_pk_mul_f32 v[{t0}:{t0+1}], v[{x}:{x+1}], v[{x}:{x+1}]')
    k(f'v_pk_fma_f32 v[{t0}:{t0+1}], v[{t0}:{t0+1}], v[{cC1}:{cC1+1}], v[{cC0}:{cC0+1}]')
    k(f'v_pk_mul_f32 v[{t0}:{t0+1}], v[{t0}:{t0+1}], v[{x}:{x+1}]')
    k(f'v_exp_f32 v{t1}, v{t0}')
    k(f'v_exp_f32 v{t1+1}, v{t0+1}')
    k(f'v_pk_add_f32 v[{t1}:{t1+1}], v[{t1}:{t1+1}], v[{cOne}:{cOne+1}]')
    k(f'v_rcp_f32 v{t1}, v{t1}')
    k(f'v_rcp_f32 v{t1+1}, v{t1+1}')
    k(f'v_pk_mul_f32 v[{x}:{x+1}], v[{x}:{x+1}], v[{t1}:{t1+1}]')

STAMP = S0 + 0x80000
class Stamps:
    def __init__(self, k, on, base=80, maxn=7):
        self.k = k; self.on = on; self.n = 0; self.base = base; self.maxn = maxn
    def __call__(self):
        if not self.on: return
        r = self.base + 2*self.n; self.n += 1
        assert self.n <= self.maxn
        self.k(f's_memtime s[{r}:{r+1}]')
        if self.n == 1: self.k('s_memrealtime s[98:99]')
    def dump(self, srd, sWave, vtmp):
        if not self.on: return
        k = self.k
        k('s_memrealtime s[100:101]')
        k('s_waitcnt lgkmcnt(0)')
        k('s_sub_u32 s97, s100, s98')
        k('s_mov_b64 exec, 1')
        k(f's_lshl_b32 s96, s2, 2')
        k(f's_add_u32 s96, s96, s{sWave}')
        k(f's_lshl_b32 s96, s96, 6')
        k(f's_add_u32 s96, s96, {STAMP}')
        k(f'v_mov_b32 v{vtmp}, 0')
        k(f'v_mov_b32 v{vtmp+1}, s97')
        k(f'buffer_store_dword v{vtmp+1}, v{vtmp}, s[{srd}:{srd+3}], s96 offen offset:60')
        for i in range(self.n):
            k(f'v_mov_b32 v{vtmp+1}, s{self.base+2*i}')
            k(f'buffer_store_dword v{vtmp+1}, v{vtmp}, s[{srd}:{srd+3}], s96 offen offset:{4*i}')

def publish(k, srdn, sflagoff, sWave, vtmp, lab):
    L = k.label(lab)
    k('s_waitcnt vmcnt(0)')
    k('s_barrier')
    k(f's_cmp_lg_u32 s{sWave}, 0')
    k(f's_cbranch_scc1 {L}')
    k(f'v_mov_b32 v{vtmp}, 0')
    k(f'v_mov_b32 v{vtmp+1}, 1')
    k('s_mov_b64 exec, 1')
    k(f'buffer_store_dword v{vtmp+1}, v{vtmp}, s[{srdn}:{srdn+3}], s{sflagoff} offen sc1')
    k('s_mov_b64 exec, -1')
    k(f'{L}:')

def wait_flags(k, srdn, sflagoff, sWave, vtmp, lab, n=16):
    L = k.label(lab); Lp = k.label(lab + 'p')
    k(f's_cmp_lg_u32 s{sWave}, 0')
    k(f's_cbranch_scc1 {L}')
    k(f'v_and_b32 v{vtmp}, {n-1}, v0')
    k(f'v_lshlrev_b32 v{vtmp}, 2, v{vtmp}')
    k(f'{Lp}:')
    k(f'buffer_load_dword v{vtmp+1}, v{vtmp}, s[{srdn}:{srdn+3}], s{sflagoff} offen sc1')
    k('s_waitcnt vmcnt(0)')
    k(f'v_cmp_ne_u32 vcc, 1, v{vtmp+1}')
    k(f's_cbranch_vccz {L}')
    k('s_sleep 2')
    k(f's_branch {Lp}')
    k(f'{L}:')
    k('s_barrier')

def gelu_plain4(k, x, t, sC0, sC1):
    for i in range(4): k(f'v_mul_f32 v{t+i}, v{x+i}, v{x+i}')
    for i in range(4): k(f'v_fma_f32 v{t+i}, v{t+i}, s{sC1}, v{sC0}')
    for i in range(4): k(f'v_mul_f32 v{t+i}, v{t+i}, v{x+i}')
    for i in range(4): k(f'v_exp_f32 v{t+i}, v{t+i}')
    for i in range(4): k(f'v_add_f32 v{t+i}, 1.0, v{t+i}')
    for i in range(4): k(f'v_rcp_f32 v{t+i}, v{t+i}')
    for i in range(4): k(f'v_mul_f32 v{x+i}, v{x+i}, v{t+i}')
```

```python
from common import *

def gen_g1(name='g1_kernel', stamps=False, dbg=()):
    k = K(name)
    st = Stamps(k, stamps and 'lst2' not in dbg)
    va = VA(1, 256)
    vL = va.alloc(); vT = va.alloc(); vH = va.alloc()
    ones = va.alloc(2, align=2)
    tmp = va.alloc(32, align=4)
    cst = va.alloc(12, align=2)
    dmy = va.alloc(4, align=4)
    pfa = va.alloc(2, align=2)
    base = va.n
    vXa = va.alloc(4); vW0 = va.alloc(); vW1 = va.alloc()
    acc = va.alloc(80, align=4)
    Xf = [va.alloc(4, align=4) for _ in range(3)]
    Wf = [va.alloc(20, align=4) for _ in range(3)]
    aC = va.alloc(20, align=4)
    vXn = va.alloc(); vWn = va.alloc()
    cS = va.alloc(4, align=4); cQ = va.alloc(4, align=4); cU = va.alloc(4, align=4)
    nvc = va.n
    vb = VA(base, 256)
    vXoff = vb.alloc(4); vWoff = vb.alloc(5, align=1)
    vSa = vb.alloc(4)
    SX = [vb.alloc(16, align=4) for _ in range(2)]
    aS = vb.alloc(4, align=4); aQ = vb.alloc(4, align=4); un = vb.alloc(8, align=4)
    F = vb.alloc(20, align=4); Fc = vb.alloc(4, align=4); RPo = vb.alloc(5, align=1)
    nv = max(nvc, vb.n)
    sWave, sMb, sType, sNq, sLdw, sLdw64, sXl, sWl, sC, sXo, sWo, sNb, sBlk = 20,21,23,24,25,26,27,28,29,30,31,32,33
    XS, WS_, OS = 8, 12, 16
    pX, pQKV, pWO, pBX, pW1, pW2, pW3, pW4, pWS = 40, 42, 44, 46, 48, 50, 52, 54, 56
    LW = 65536
    CSP = 147456
    CSF = CSP + 2560
    STB = CSF + 2560
    STR = STB + 2048
    LDS_TOTAL = STR + 1024
    Lend = k.label('end'); Lload = k.label('loader')
    k(f'''
    s_cmp_ge_u32 s2, 256
    s_cbranch_scc1 {Lend}
    s_load_dwordx16 s[40:55], s[0:1], 0
    s_load_dwordx2 s[56:57], s[0:1], {KA_WS}
    ''')
    st()
    t0, t1, t2, t3 = tmp, tmp+1, tmp+2, tmp+3
    k(f'''
    v_lshrrev_b32 v{tmp}, 6, v0
    s_and_b32 s36, s2, 7
    s_lshr_b32 s37, s2, 3
    v_readfirstlane_b32 s{sWave}, v{tmp}
    s_and_b32 s38, s36, 1
    s_lshl_b32 s38, s38, 3
    s_and_b32 s39, s37, 7
    s_add_u32 s{sMb}, s38, s39
    s_lshr_b32 s{sType}, s36, 1
    s_lshr_b32 s{sNq}, s37, 3
    v_and_b32 v{vL}, 63, v0
    v_and_b32 v{vT}, 31, v{vL}
    v_lshrrev_b32 v{vH}, 5, v{vL}
    s_and_b32 s{sC}, s{sWave}, 3
    s_lshl_b32 s{sNb}, s{sType}, 2
    s_add_u32 s{sNb}, s{sNb}, s{sNq}
    s_lshl_b32 s{sBlk}, s{sMb}, 2
    s_add_u32 s{sBlk}, s{sBlk}, s{sC}
    s_lshl_b32 s{sXl}, s{sC}, 12
    s_movk_i32 s34, 1280
    s_cmp_eq_u32 s{sType}, 3
    s_cselect_b32 s{sLdw}, s34, 3840
    s_lshl_b32 s{sLdw64}, s{sLdw}, 6
    v_mov_b32 v{ones}, 0x3f803f80
    v_mov_b32 v{ones+1}, 0x3f803f80
    s_cmp_ge_u32 s{sWave}, 4
    s_cbranch_scc1 {Lload}
    ''')
    def srd_xw():
        k(f'''
        s_mul_i32 s34, s{sMb}, 163840
        s_add_u32 s4, s{pX}, s34
        s_addc_u32 s5, s{pX+1}, 0
        ''')
        srd(k, XS, 4, 5, 163840)
        Lw1 = k.label('w1'); Lwd = k.label('wd')
        k(f'''
        s_mul_i32 s35, s{sNq}, 320
        s_cmp_eq_u32 s{sType}, 3
        s_cbranch_scc1 {Lw1}
        s_mul_i32 s36, s{sType}, 1280
        s_add_u32 s35, s35, s36
        s_add_u32 s6, s{pQKV}, s35
        s_addc_u32 s7, s{pQKV+1}, 0
        s_sub_u32 s36, {640*3840}, s35
        s_branch {Lwd}
        {Lw1}:
        s_add_u32 s6, s{pW1}, s35
        s_addc_u32 s7, s{pW1+1}, 0
        s_sub_u32 s36, {640*1280}, s35
        {Lwd}:
        s_mov_b32 s{WS_}, s6
        s_and_b32 s{WS_+1}, s7, 0xffff
        s_mov_b32 s{WS_+2}, s36
        s_mov_b32 s{WS_+3}, 0x20000
        ''')
    def prefetch(half):
        if 'nopf' in dbg: return
        u0, u1, u2 = tmp+24, tmp+25, tmp+26
        def xpf(cidx):
            k(f'''
            v_mul_u32_u24 v{u0}, 52, v{vL}
            v_lshrrev_b32 v{u0}, 8, v{u0}
            v_mul_u32_u24 v{u1}, 5, v{u0}
            v_sub_u32 v{u1}, v{vL}, v{u1}
            s_lshl_b32 s34, s{sNq}, 5
            s_lshl_b32 s35, s{cidx}, 3
            s_add_u32 s34, s34, s35
            v_add_u32 v{u0}, s34, v{u0}
            v_mul_u32_u24 v{u0}, 1280, v{u0}
            v_lshl_add_u32 v{pfa}, v{u1}, 7, v{u0}
            s_mov_b32 exec_hi, 0xff
            s_mov_b32 s34, {640*half}
            buffer_load_dword v{dmy}, v{pfa}, s[{XS}:{XS+3}], s34 offen
            {f'buffer_load_dword v{dmy}, v{pfa}, s[{XS}:{XS+3}], s34 offen offset:64' if 'pf2' in dbg or 'pf4' in dbg else ''}
            {f'buffer_load_dword v{dmy}, v{pfa}, s[{XS}:{XS+3}], s34 offen offset:32' if 'pf4' in dbg else ''}
            {f'buffer_load_dword v{dmy}, v{pfa}, s[{XS}:{XS+3}], s34 offen offset:96' if 'pf4' in dbg else ''}
            s_mov_b64 exec, -1
            ''')
        def wpf(cidx):
            k(f'''
            s_mul_i32 s34, s{cidx}, 30
            v_add_u32 v{u0}, s34, v{vL}
            v_mul_u32_u24 v{u1}, 43, v{u0}
            v_lshrrev_b32 v{u1}, 7, v{u1}
            v_mul_u32_u24 v{u2}, 3, v{u1}
            v_sub_u32 v{u2}, v{u0}, v{u2}
            v_lshrrev_b32 v{u0}, 3, v{u1}
            v_and_b32 v{u1}, 7, v{u1}
            v_lshl_add_u32 v{u0}, v{u0}, 6, v{u1}
            s_and_b32 s34, s{sMb}, 7
            s_lshl_b32 s34, s34, 3
            v_add_u32 v{u0}, s34, v{u0}
            v_mul_lo_u32 v{u0}, v{u0}, s{sLdw}
            v_lshl_add_u32 v{pfa+1}, v{u2}, 7, v{u0}
            s_mov_b32 exec_lo, 0x3fffffff
            s_mov_b32 exec_hi, 0
            s_mul_i32 s34, s{sLdw}, {320*half}
            buffer_load_dword v{dmy+1}, v{pfa+1}, s[{WS_}:{WS_+3}], s34 offen
            {f'buffer_load_dword v{dmy+1}, v{pfa+1}, s[{WS_}:{WS_+3}], s34 offen offset:64' if 'pf2' in dbg or 'pf4' in dbg else ''}
            {f'buffer_load_dword v{dmy+1}, v{pfa+1}, s[{WS_}:{WS_+3}], s34 offen offset:32' if 'pf4' in dbg else ''}
            {f'buffer_load_dword v{dmy+1}, v{pfa+1}, s[{WS_}:{WS_+3}], s34 offen offset:96' if 'pf4' in dbg else ''}
            s_mov_b64 exec, -1
            ''')
        return xpf, wpf
    k(f'''
    v_lshrrev_b32 v{t0}, 1, v{vT}
    v_and_b32 v{t0}, 7, v{t0}
    v_lshlrev_b32 v{t1}, 7, v{vT}
    v_add_u32 v{t1}, s{sXl}, v{t1}
    ''')
    for ks in range(4):
        k(f'''
        v_add_u32 v{t2}, {2*ks}, v{vH}
        v_xor_b32 v{t2}, v{t2}, v{t0}
        v_lshlrev_b32 v{t2}, 4, v{t2}
        v_add_u32 v{vXa+ks}, v{t1}, v{t2}
        ''')
    k(f'''
    v_lshrrev_b32 v{t0}, 4, v{vL}
    v_and_b32 v{t1}, 15, v{vL}
    v_lshrrev_b32 v{t2}, 2, v{t1}
    v_and_b32 v{t1}, 3, v{t1}
    v_lshrrev_b32 v{t3}, 1, v{t0}
    v_lshlrev_b32 v{t3}, 3, v{t3}
    v_add_u32 v{t2}, v{t2}, v{t3}
    v_mul_u32_u24 v{t2}, 320, v{t2}
    v_and_b32 v{t0}, 1, v{t0}
    v_lshlrev_b32 v{t0}, 5, v{t0}
    v_lshlrev_b32 v{t1}, 3, v{t1}
    v_add3_u32 v{vW0}, v{t2}, v{t0}, v{t1}
    v_add_u32 v{vW0}, {LW}, v{vW0}
    v_mov_b32 v{vW1}, v{vW0}
    s_mov_b32 s39, 0
    ''')
    for i in range(80): k(f'v_mov_b32 v{acc+i}, 0')
    if 'pfc' in dbg:
        Lpc = k.label('pc')
        k(f'''
        s_getpc_b64 s[72:73]
        {Lpc}:
        s_sub_u32 s72, s72, {Lpc}-{name}
        s_subb_u32 s73, s73, 0
        s_and_b32 s73, s73, 0xffff
        s_mov_b32 s74, TEXT_END-{name}
        s_mov_b32 s75, 0x20000
        s_lshr_b32 s34, s2, 3
        s_lshl_b32 s34, s34, 2
        s_add_u32 s34, s34, s{sC}
        s_lshl_b32 s34, s34, 10
        v_lshlrev_b32 v{pfa}, 4, v{vL}
        buffer_load_dwordx4 v[{dmy}:{dmy+3}], v{pfa}, s[72:75], s34 offen
        ''')
    k('s_waitcnt lgkmcnt(0)')
    if 'pfg' in dbg:
        k('s_barrier')
        srd(k, 60, pX, pX+1, 2048*1280); srd(k, 64, pQKV, pQKV+1, 640*3840); srd(k, 68, pW1, pW1+1, 640*1280)
        k(f'''
        v_lshlrev_b32 v{pfa}, 4, v{vL}
        s_lshl_b32 s34, s{sC}, 10
        v_add_u32 v{pfa}, s34, v{pfa}
        s_mul_i32 s34, s2, 10240
        s_mul_i32 s35, s2, 9600
        s_mul_i32 s36, s2, 3200
        ''')
        D4 = dmy
        for i in range(3):
            if i == 2: k(f's_cmp_ge_u32 s{sC}, 2'); Lq = k.label('pq'); k(f's_cbranch_scc1 {Lq}')
            k(f'buffer_load_dwordx4 v[{D4}:{D4+3}], v{pfa}, s[60:63], s34 offen')
            k(f'buffer_load_dwordx4 v[{D4}:{D4+3}], v{pfa}, s[64:67], s35 offen')
            if i == 0: k(f'buffer_load_dwordx4 v[{D4}:{D4+3}], v{pfa}, s[68:71], s36 offen')
            if i < 2:
                k('s_add_u32 s34, s34, 4096'); k('s_add_u32 s35, s35, 4096')
            if i == 2: k(f'{Lq}:')
    else:
        srd_xw()
        if 'nopf' not in dbg: prefetch(0)[0](sC)
    for r in list(range(aC, aC+20)) + list(range(cS, cS+4)) + list(range(cQ, cQ+4)): k(f'v_mov_b32 v{r}, 0')
    def reads(ks, buf, nxt=False):
        xa = vXn if nxt else vXa + ks
        wb = vWn if nxt else vW0
        out = [f'ds_read_b128 v[{Xf[buf]}:{Xf[buf]+3}], v{xa}']
        for t in range(5):
            for j in range(2):
                r = Wf[buf] + 4*t + 2*j
                out.append(f'ds_read_b64_tr_b16 v[{r}:{r+1}], v{wb} offset:{(16*ks + 4*j)*320 + t*64}')
        return out
    m4 = lambda d, a, b: f'v_mfma_f32_4x4x4_16b_bf16 v[{d}:{d+3}], v[{a}:{a+1}], v[{b}:{b+1}], v[{d}:{d+3}]'
    sSlot = 39
    def stage_body(orient, first, last):
        if not last:
            k(f'''
            v_add_u32 v{vXn}, 16384, v{vXa}
            v_and_b32 v{vXn}, 0xffff, v{vXn}
            s_add_u32 s{sSlot}, s{sSlot}, 20480
            s_cmp_eq_u32 s{sSlot}, 81920
            s_cselect_b32 s{sSlot}, 0, s{sSlot}
            v_add_u32 v{vWn}, s{sSlot}, v{vW1}
            ''')
        for ks in range(4):
            buf = ks & 1
            if first and ks == 3: k('s_barrier')
            if ks < 3: nxt = reads(ks + 1, buf ^ 1)
            else: nxt = [] if last else reads(0, 0, nxt=True)
            nr = len(nxt)
            early = nxt[:6]; nxt = nxt[6:]
            for r in early: k(r)
            k(f's_waitcnt lgkmcnt({len(early)})')
            x = Xf[buf]
            sv = []
            if 'cstats' in dbg:
                for i in range(4):
                    lo, hi = cU + 2*(i & 1), cU + 2*(i & 1) + 1
                    sv += [f'v_lshlrev_b32 v{lo}, 16, v{x+i}', f'v_and_b32 v{hi}, 0xffff0000, v{x+i}',
                           f'v_add_f32 v{cS+(i&1)}, v{cS+(i&1)}, v{lo}', f'v_fmac_f32 v{cQ+(i&1)}, v{lo}, v{lo}',
                           f'v_add_f32 v{cS+2+(i&1)}, v{cS+2+(i&1)}, v{hi}', f'v_fmac_f32 v{cQ+2+(i&1)}, v{hi}, v{hi}']
            for t in range(5):
                w = Wf[buf] + 4*t; a = acc + 16*t
                if orient == 'T':
                    k(f'v_mfma_f32_32x32x16_bf16 v[{a}:{a+15}], v[{w}:{w+3}], v[{x}:{x+3}], v[{a}:{a+15}]')
                else:
                    k(f'v_mfma_f32_32x32x16_bf16 v[{a}:{a+15}], v[{x}:{x+3}], v[{w}:{w+3}], v[{a}:{a+15}]')
                for _ in range(3 if t == 0 else 2):
                    if nxt: k(nxt.pop(0))
                for _ in range(5 if t < 4 else 4):
                    if sv: k(sv.pop(0))
            if 'nocs' not in dbg:
                Ls = k.label('cs')
                k(f's_cmp_lg_u32 s{sC}, {ks}')
                k(f's_cbranch_scc1 {Ls}')
                for j in range(2):
                    for t in range(5):
                        k(m4(aC + 4*t, ones, Wf[buf] + 4*t + 2*j))
                k(f'{Ls}:')
        if not last:
            k(f'v_mov_b32 v{vXa}, v{vXn}')
            for i in range(1, 4):
                k(f'v_add_u32 v{vXa+i}, 16384, v{vXa+i}')
                k(f'v_and_b32 v{vXa+i}, 0xffff, v{vXa+i}')
            k(f'v_mov_b32 v{vW0}, v{vWn}')
    def main_loop(orient):
        k('s_barrier')
        if 'nopf' not in dbg and 'pfg' not in dbg:
            xp, wp = prefetch(1); xp(sC); wp(sC)
        if stamps: k(f's_memtime s[{80+2*st.n}:{81+2*st.n}]')
        for r in reads(0, 0): k(r)
        stage_body(orient, True, False)
        Ll = k.label('cl')
        k(f's_mov_b32 s38, 8')
        k(f'{Ll}:')
        k('s_barrier')
        stage_body(orient, False, False)
        k('s_sub_u32 s38, s38, 1')
        k('s_cmp_lg_u32 s38, 0')
        k(f's_cbranch_scc1 {Ll}')
        k('s_barrier')
        stage_body(orient, False, True)
    LV = k.label('V'); Lep = k.label('ep')
    k(f's_cmp_eq_u32 s{sType}, 2')
    k(f's_cbranch_scc1 {LV}')
    main_loop('T')
    k(f's_branch {Lep}')
    k(f'{LV}:')
    main_loop('N')
    st.n += 1 if stamps else 0
    k(f'{Lep}:')
    st()
    if 'cstats' in dbg:
        mu, rr, var = tmp, tmp+1, tmp+2
        k(f'''
        v_add_f32 v{cS}, v{cS}, v{cS+1}
        v_add_f32 v{cS+2}, v{cS+2}, v{cS+3}
        v_add_f32 v{cQ}, v{cQ}, v{cQ+1}
        v_add_f32 v{cQ+2}, v{cQ+2}, v{cQ+3}
        v_add_f32 v{cS}, v{cS}, v{cS+2}
        v_add_f32 v{cQ}, v{cQ}, v{cQ+2}
        ''')
        cross_half_sum(k, cS, tmp+5); cross_half_sum(k, cQ, tmp+6)
        k(f'''
        v_mul_f32 v{mu}, {hx(f2u(1.0/640))}, v{cS}
        v_mul_f32 v{var}, {hx(f2u(1.0/640))}, v{cQ}
        v_fma_f32 v{var}, -v{mu}, v{mu}, v{var}
        v_max_f32 v{var}, 0, v{var}
        v_add_f32 v{rr}, {hx(f2u(EPS))}, v{var}
        v_rsq_f32 v{rr}, v{rr}
        v_lshlrev_b32 v{tmp+4}, 4, v{vT}
        s_lshl_b32 s34, s{sC}, 9
        s_add_u32 s34, s34, {STB}
        v_add_u32 v{tmp+4}, s34, v{tmp+4}
        v_mul_f32 v{tmp+3}, v{mu}, v{rr}
        ds_write_b96 v{tmp+4}, v[{mu}:{mu+2}]
        v_lshlrev_b32 v{tmp+4}, 2, v{vT}
        s_lshl_b32 s34, s{sC}, 7
        s_add_u32 s34, s34, {STR}
        v_add_u32 v{tmp+4}, s34, v{tmp+4}
        ds_write_b32 v{tmp+4}, v{rr}
        ds_write_b32 v{tmp+4}, v{tmp+3} offset:512
        ''')
        Lns = k.label('ns')
        k(f'''
        s_cmp_lg_u32 s{sNb}, 0
        s_cbranch_scc1 {Lns}
        s_lshl_b32 s34, s{sBlk}, 8
        s_add_u32 s34, s34, {ST1}
        v_lshlrev_b32 v{tmp+3}, 3, v{vT}
        s_mov_b32 exec_hi, 0
        buffer_store_dwordx2 v[{mu}:{mu+1}], v{tmp+3}, s[{OS}:{OS+3}], s34 offen
        s_mov_b64 exec, -1
        {Lns}:
        ''')
    for t in range(5): cross_half_sum(k, aC+4*t, aC+4*t+1)
    k(f'''
    s_mul_i32 s34, s{sC}, 640
    v_lshlrev_b32 v{tmp+4}, 2, v{vT}
    v_add_u32 v{tmp+4}, s34, v{tmp+4}
    v_add_u32 v{tmp+4}, {CSP}, v{tmp+4}
    ''')
    for t in range(5): k(f'ds_write_b32 v{tmp+4}, v{aC+4*t} offset:{t*128}')
    k('s_waitcnt lgkmcnt(0)')
    k('s_barrier')
    st()
    k(f'''
    v_lshlrev_b32 v{tmp+4}, 2, v{vL}
    v_add_u32 v{tmp+5}, {CSP}, v{tmp+4}
    v_add_u32 v{tmp+4}, s34, v{tmp+4}
    v_add_u32 v{tmp+4}, {CSF}, v{tmp+4}
    ''')
    for i in range(3):
        for w in range(4):
            k(f'ds_read_b32 v{aC+4*i+w}, v{tmp+5} offset:{w*640 + i*256}')
    k('s_waitcnt lgkmcnt(0)')
    for i in range(3):
        k(f'v_add_f32 v{aC+4*i}, v{aC+4*i}, v{aC+4*i+1}')
        k(f'v_add_f32 v{aC+4*i+2}, v{aC+4*i+2}, v{aC+4*i+3}')
    for i in range(3): k(f'v_add_f32 v{aC+4*i}, v{aC+4*i}, v{aC+4*i+2}')
    for i in range(2): k(f'ds_write_b32 v{tmp+4}, v{aC+4*i} offset:{i*256}')
    k('s_mov_b32 exec_hi, 0')
    k(f'ds_write_b32 v{tmp+4}, v{aC+8} offset:512')
    k('s_mov_b64 exec, -1')
    k(f's_add_u32 s34, s34, {CSF}')
    k('s_waitcnt lgkmcnt(0)')
    mu, rr, var = tmp, tmp+1, tmp+2
    LK, LVe, LH = k.label('eK'), k.label('eV'), k.label('eH')
    k(f'''
    s_cmp_eq_u32 s{sType}, 2
    s_cbranch_scc1 {LVe}
    v_lshlrev_b32 v{tmp+4}, 4, v{vT}
    s_lshl_b32 s39, s{sC}, 9
    s_add_u32 s39, s39, {STB}
    v_add_u32 v{tmp+4}, s39, v{tmp+4}
    ds_read_b96 v[{mu}:{mu+2}], v{tmp+4}
    ''')
    CS = Xf[0]
    assert Wf[0] == Xf[0] + 12 and aC == Wf[2] + 20
    vCsA = tmp+7
    k(f'''
    v_lshlrev_b32 v{vCsA}, 4, v{vH}
    v_add_u32 v{vCsA}, s34, v{vCsA}
    ''')
    for g in range(20):
        k(f'ds_read_b128 v[{CS+4*g}:{CS+4*g+3}], v{vCsA} offset:{(32*(g//4)+8*(g%4))*4}')
    k(f'''
    s_waitcnt lgkmcnt(15)
    s_cmp_eq_u32 s{sType}, 1
    s_cbranch_scc1 {LK}
    s_cmp_eq_u32 s{sType}, 3
    s_cbranch_scc1 {LH}
    ''')
    nmu2 = cst; r2 = cst+2
    def ln_all():
        k('s_waitcnt lgkmcnt(0)')
        for g in range(20):
            a = acc + 4*g; c = CS + 4*g
            for p in range(2):
                k(f'v_pk_fma_f32 v[{a+2*p}:{a+2*p+1}], v[{c+2*p}:{c+2*p+1}], v[{nmu2}:{nmu2+1}], v[{a+2*p}:{a+2*p+1}]')
        for g in range(20):
            a = acc + 4*g
            for p in range(2):
                k(f'v_pk_mul_f32 v[{a+2*p}:{a+2*p+1}], v[{a+2*p}:{a+2*p+1}], v[{r2}:{r2+1}]')
    def set_mu_r(rscale):
        k(f'''
        v_sub_f32 v{nmu2}, 0, v{mu}
        v_sub_f32 v{nmu2+1}, 0, v{mu}
        v_mul_f32 v{r2}, {hx(f2u(rscale))}, v{rr}
        v_mul_f32 v{r2+1}, {hx(f2u(rscale))}, v{rr}
        ''')
    def qk_epilogue(isK):
        sec = KF if isK else QF
        vA, vB, vC = cst+4, cst+5, cst+6
        set_mu_r(1.0 if isK else QSCALE)
        k(f'''
        v_lshlrev_b32 v{vA}, 4, v{vL}
        s_mov_b32 s35, {QK_HEAD}
        v_mul_lo_u32 v{vB}, v{vH}, s35
        v_lshl_add_u32 v{vB}, v{vT}, 4, v{vB}
        s_mul_i32 s35, s{sNq}, {8*QK_HEAD}
        s_mul_i32 s36, s{sBlk}, 1536
        s_add_u32 s35, s35, s36
        s_add_u32 s35, s35, {sec}
        ''')
        if not isK:
            k(f'''
            v_lshlrev_b32 v{vC}, 14, v{vH}
            v_lshl_add_u32 v{vC}, v{vT}, 4, v{vC}
            s_lshr_b32 s36, s{sBlk}, 1
            s_lshl_b32 s38, s36, 9
            s_and_b32 s36, s{sBlk}, 1
            s_lshl_b32 s36, s36, 3
            s_add_u32 s38, s38, s36
            s_lshl_b32 s36, s{sNq}, 17
            s_add_u32 s38, s38, s36
            s_add_u32 s38, s38, {QF2}
            ''')
        ln_all()
        for hp in range(4):
            G0 = 5*hp
            pkb = CS + 12*hp
            for which, (ga, gb) in enumerate(((G0, G0+1), (G0+3, G0+4))):
                p_ = pkb + 4*which
                for q_, g in enumerate((ga, gb)):
                    a_ = acc + 4*g
                    k(f'v_cvt_pk_bf16_f32 v{p_+2*q_}, v{a_}, v{a_+1}')
                    k(f'v_cvt_pk_bf16_f32 v{p_+2*q_+1}, v{a_+2}, v{a_+3}')
            a_ = acc + 4*(G0+2)
            k(f'v_cvt_pk_bf16_f32 v{pkb+8}, v{a_}, v{a_+1}')
            k(f'v_cvt_pk_bf16_f32 v{pkb+9}, v{a_+2}, v{a_+3}')
            for which in range(2):
                p_ = pkb + 4*which
                k(f'v_permlane32_swap_b32 v{p_}, v{p_+2}')
                k(f'v_permlane32_swap_b32 v{p_+1}, v{p_+3}')
            for which in range(2):
                p_ = pkb + 4*which
                k(f's_add_u32 s36, s35, {(2*hp+which)*QK_HEAD}')
                k(f'buffer_store_dwordx4 v[{p_}:{p_+3}], v{vA}, s[{OS}:{OS+3}], s36 offen')
            if isK:
                k(f's_add_u32 s36, s35, {2*hp*QK_HEAD + 1024}')
                k(f'buffer_store_dwordx2 v[{pkb+8}:{pkb+9}], v{vB}, s[{OS}:{OS+3}], s36 offen')
            else:
                k(f's_add_u32 s36, s38, {2*hp*16384}')
                k(f'buffer_store_dwordx2 v[{pkb+8}:{pkb+9}], v{vC}, s[{OS}:{OS+3}], s36 offen')
        if True:
            M = CS + 48; g2 = CS + 56
            k(f'v_cmp_eq_u32 vcc, 1, v{vH}')
            for hp in range(4):
                pkb = CS + 12*hp
                se, so_, p2 = g2 + 4*(hp & 1), g2 + 4*(hp & 1) + 1, g2 + 4*(hp & 1) + 2
                for r, base_ in ((se, pkb), (so_, pkb + 4)):
                    k(f'v_mov_b32 v{r}, 0')
                    for i in range(4): k(f'v_dot2_f32_bf16 v{r}, v{base_+i}, v{base_+i}, v{r}')
                k(f'v_mov_b32 v{p2}, 0')
                for i in range(2): k(f'v_dot2_f32_bf16 v{p2}, v{pkb+8+i}, v{pkb+8+i}, v{p2}')
                cross_half_sum(k, se, p2 + 1); cross_half_sum(k, so_, p2 + 1)
                k(f'v_cndmask_b32 v{M+hp}, v{se}, v{so_}, vcc')
                k(f'v_add_f32 v{M+hp}, v{M+hp}, v{p2}')
        if not isK:
            k(f'''
            v_lshlrev_b32 v{tmp+3}, 13, v{vH}
            v_lshl_add_u32 v{tmp+3}, v{vT}, 5, v{tmp+3}
            s_lshr_b32 s36, s{sBlk}, 3
            s_lshl_b32 s36, s36, 10
            s_and_b32 s37, s{sBlk}, 7
            s_lshl_b32 s37, s37, 2
            s_add_u32 s36, s36, s37
            s_lshl_b32 s37, s{sNq}, 16
            s_add_u32 s36, s36, s37
            s_add_u32 s36, s36, {QN}
            ''')
            for hp in range(4):
                k(f's_add_u32 s37, s36, {hp*2*8192}')
                k(f'buffer_store_dword v{M+hp}, v{tmp+3}, s[{OS}:{OS+3}], s37 offen')
        if isK:
            for mod in ('quad_perm:[1,0,3,2]', 'quad_perm:[2,3,0,1]', 'row_half_mirror', 'row_mirror'):
                for a_ in range(4):
                    k(f'v_max_f32_dpp v{M+a_}, v{M+a_}, v{M+a_} {mod} row_mask:0xf bank_mask:0xf')
            for a_ in range(4):
                k(f'v_mov_b32 v{g2+a_}, v{M+a_}')
                k(f'v_permlane16_swap_b32 v{M+a_}, v{g2+a_}')
                k(f'v_max_f32 v{M+a_}, v{M+a_}, v{g2+a_}')
            k(f'''
            s_lshl_b32 s36, s{sNq}, 11
            s_lshl_b32 s37, s{sBlk}, 2
            s_add_u32 s36, s36, s37
            s_add_u32 s36, s36, {KMAX}
            v_lshlrev_b32 v{tmp+3}, 8, v{vH}
            s_mov_b32 exec_lo, 1
            s_mov_b32 exec_hi, 1
            ''')
            for a_ in range(4):
                k(f'buffer_store_dword v{M+a_}, v{tmp+3}, s[{OS}:{OS+3}], s36 offen offset:{a_*512}')
        k(f's_branch {Lend}')
    def srd_out(): srd(k, OS, pWS, pWS+1, WS_USED)
    pos = len(k.l)
    qk_epilogue(False)
    k(f'{LK}:')
    qk_epilogue(True)
    k(f'{LH}:')
    cC0, cC1, cOne = cst+4, cst+6, cst+8
    dst = tmp+3
    k(f'''
    v_mul_f32 v{tmp+4}, v{rr}, v{rr}
    v_mul_f32 v{tmp+4}, v{tmp+4}, v{var}
    v_add_f32 v{tmp+4}, {hx(f2u(EPS))}, v{tmp+4}
    v_rsq_f32 v{tmp+4}, v{tmp+4}
    s_lshl_b32 s35, s{sBlk}, 5
    v_add_u32 v{dst}, s35, v{vT}
    s_and_b32 s36, s{sNq}, 1
    s_lshr_b32 s37, s{sNq}, 1
    s_add_u32 s37, s37, 1
    s_sub_u32 s38, 0, s37
    s_cmp_eq_u32 s36, 0
    s_cselect_b32 s37, s37, s38
    v_add_u32 v{dst}, s37, v{dst}
    v_mul_f32 v{rr}, v{rr}, v{tmp+4}
    v_cmp_gt_u32 vcc, 2048, v{dst}
    v_cndmask_b32 v{rr}, 0, v{rr}, vcc
    v_and_b32 v{dst}, 2047, v{dst}
    v_lshrrev_b32 v{tmp+4}, 4, v{dst}
    v_mul_u32_u24 v{tmp+4}, 20480, v{tmp+4}
    v_and_b32 v{dst}, 15, v{dst}
    v_lshlrev_b32 v{dst}, 4, v{dst}
    v_lshlrev_b32 v{tmp+5}, 8, v{vH}
    v_add3_u32 v{dst}, v{dst}, v{tmp+4}, v{tmp+5}
    s_mul_i32 s35, s{sNq}, 5120
    s_add_u32 s35, s35, {HS}
    s_add_u32 s36, s35, 4096
    v_mov_b32 v{cC0}, {hx(f2u(-GELU_C0))}
    v_mov_b32 v{cC0+1}, {hx(f2u(-GELU_C0))}
    v_mov_b32 v{cC1}, {hx(f2u(-GELU_C1))}
    v_mov_b32 v{cC1+1}, {hx(f2u(-GELU_C1))}
    v_mov_b32 v{cOne}, 1.0
    v_mov_b32 v{cOne+1}, 1.0
    ''')
    set_mu_r(1.0)
    ln_all()
    for g in range(20):
        t, j = divmod(g, 4)
        a = acc + 4*g
        g0 = CS + 8*(g & 3)
        gelu_pk(k, a, g0, g0+2, cC0, cC1, cOne)
        gelu_pk(k, a+2, g0+4, g0+6, cC0, cC1, cOne)
        p_ = CS + 40 + 4*((g >> 1) & 3) + 2*(g & 1)
        k(f'v_cvt_pk_bf16_f32 v{p_}, v{a}, v{a+1}')
        k(f'v_cvt_pk_bf16_f32 v{p_+1}, v{a+2}, v{a+3}')
        if g & 1:
            off = t*1024 + (j//2)*512
            so = 35
            if off >= 4096: off -= 4096; so = 36
            k(f'buffer_store_dwordx4 v[{p_-2}:{p_+1}], v{dst}, s[{OS}:{OS+3}], s{so} offen offset:{off}')
    k(f's_branch {Lend}')
    k(f'{LVe}:')
    rt = CS; mrt = CS + 16; csl = CS + 32; voff = CS + 40
    k(f'''
    s_lshl_b32 s35, s{sC}, 7
    s_add_u32 s35, s35, {STR}
    v_lshlrev_b32 v{tmp+5}, 4, v{vH}
    v_add_u32 v{tmp+5}, s35, v{tmp+5}
    v_lshlrev_b32 v{tmp+4}, 2, v{vT}
    v_add_u32 v{tmp+4}, s34, v{tmp+4}
    ''')
    for j in range(4):
        k(f'ds_read_b128 v[{rt+4*j}:{rt+4*j+3}], v{tmp+5} offset:{j*32}')
        k(f'ds_read_b128 v[{mrt+4*j}:{mrt+4*j+3}], v{tmp+5} offset:{512+j*32}')
    for t in range(5): k(f'ds_read_b32 v{csl+t}, v{tmp+4} offset:{t*128}')
    k(f'''
    s_mul_i32 s35, s{sNq}, {8*V_HEAD}
    s_mul_i32 s36, s{sBlk}, 1280
    s_add_u32 s35, s35, s36
    s_add_u32 s35, s35, {VF}
    s_mov_b32 s37, {V_HEAD}
    v_mul_u32_u24 v{voff+7}, 320, v{vH}
    ''')
    for t in range(5):
        k(f'''
        v_add_u32 v{voff+t}, {32*t}, v{vT}
        v_mul_u32_u24 v{voff+5}, 205, v{voff+t}
        v_lshrrev_b32 v{voff+5}, 12, v{voff+5}
        v_mul_u32_u24 v{voff+6}, 20, v{voff+5}
        v_sub_u32 v{voff+t}, v{voff+t}, v{voff+6}
        v_lshlrev_b32 v{voff+t}, 4, v{voff+t}
        v_mul_lo_u32 v{voff+5}, v{voff+5}, s37
        v_add3_u32 v{voff+t}, v{voff+t}, v{voff+5}, v{voff+7}
        ''')
    k('s_waitcnt lgkmcnt(0)')
    for t in range(5):
        for i in range(16):
            a = acc + 16*t + i
            k(f'v_mul_f32 v{a}, v{a}, v{rt+i}')
        for i in range(16):
            a = acc + 16*t + i
            k(f'v_fma_f32 v{a}, -v{mrt+i}, v{csl+t}, v{a}')
        for m in range(2):
            d = CS + 48 + 4*((2*t + m) & 3)
            for p in range(4):
                a = acc + 16*t + 8*m + 2*p
                k(f'v_cvt_pk_bf16_f32 v{d+p}, v{a}, v{a+1}')
            k(f'buffer_store_dwordx4 v[{d}:{d+3}], v{voff+t}, s[{OS}:{OS+3}], s35 offen offset:{m*640}')
    k(f's_branch {Lend}')
    k(f'{Lload}:')
    if 'lst2' in dbg: k('s_memtime s[80:81]'); k('s_memrealtime s[98:99]')
    k('s_setprio 1')
    k(f'''
    s_mul_i32 s{sWl}, s{sC}, 5120
    s_add_u32 s{sWl}, s{sWl}, {LW}
    v_lshrrev_b32 v{t0}, 3, v{vL}
    s_lshl_b32 s34, s{sC}, 5
    v_add_u32 v{t0}, s34, v{t0}
    v_lshrrev_b32 v{t1}, 4, v{vL}
    v_and_b32 v{t2}, 7, v{vL}
    ''')
    for i in range(4):
        k(f'''
        v_add_u32 v{t3}, {8*i}, v{t0}
        v_mul_u32_u24 v{t3}, 1280, v{t3}
        v_add_u32 v{vXoff+i}, {4*(i&1)}, v{t1}
        v_xor_b32 v{vXoff+i}, v{vXoff+i}, v{t2}
        v_lshlrev_b32 v{vXoff+i}, 4, v{vXoff+i}
        v_add_u32 v{vXoff+i}, v{vXoff+i}, v{t3}
        ''')
    k(f's_mul_i32 s34, s{sC}, 320')
    for i in range(5):
        k(f'''
        v_add_u32 v{t0}, s34, v{vL}
        v_add_u32 v{t0}, {64*i}, v{t0}
        v_mul_u32_u24 v{t1}, 3277, v{t0}
        v_lshrrev_b32 v{t1}, 16, v{t1}
        v_mul_u32_u24 v{t2}, 20, v{t1}
        v_sub_u32 v{t2}, v{t0}, v{t2}
        v_lshlrev_b32 v{t2}, 4, v{t2}
        v_mul_lo_u32 v{t1}, v{t1}, s{sLdw}
        v_add_u32 v{vWoff+i}, v{t1}, v{t2}
        ''')
    k('s_waitcnt lgkmcnt(0)')
    srd_xw()
    if 'nopf' not in dbg and 'pfg' not in dbg: prefetch(0)[1](sC)
    def dma_list(s):
        slot = s % 4
        out = []
        pre = [f's_mov_b32 s{sXo}, {s*128}', f's_mul_i32 s{sWo}, s{sLdw64}, {s}']
        for i in range(4):
            out.append([f's_add_u32 m0, s{sXl}, {slot*16384 + i*1024}', f'buffer_load_dwordx4 v{vXoff+i}, s[{XS}:{XS+3}], s{sXo} offen {"nt" if "ntx" in dbg else ""} lds'])
        for i in range(5):
            out.append([f's_add_u32 m0, s{sWl}, {slot*20480 + i*1024}', f'buffer_load_dwordx4 v{vWoff+i}, s[{WS_}:{WS_+3}], s{sWo} offen {"nt" if "ntw" in dbg else ""} lds'])
        out[0] = pre + out[0]
        return out
    def dma_stage(s):
        for grp in dma_list(s):
            for l in grp: k(l)
    dma_stage(0)
    if 'pfg' in dbg: k('s_barrier')
    dma_stage(1)
    srd(k, OS, pWS, pWS+1, WS_USED)
    k(f'''
    v_lshrrev_b32 v{t0}, 1, v{vT}
    v_and_b32 v{t0}, 7, v{t0}
    v_lshlrev_b32 v{t1}, 7, v{vT}
    v_add_u32 v{t1}, s{sXl}, v{t1}
    ''')
    for i in range(4):
        k(f'''
        v_lshlrev_b32 v{t2}, 2, v{vH}
        v_add_u32 v{t2}, {i}, v{t2}
        v_xor_b32 v{t2}, v{t2}, v{t0}
        v_lshlrev_b32 v{t2}, 4, v{t2}
        v_add_u32 v{vSa+i}, v{t1}, v{t2}
        ''')
    for r in list(range(aS, aS+4)) + list(range(aQ, aQ+4)): k(f'v_mov_b32 v{r}, 0')
    Lnf = k.label('nf')
    k(f'''
    s_or_b32 s34, s{sNb}, s{sC}
    s_cmp_lg_u32 s34, 0
    s_cbranch_scc1 {Lnf}
    s_lshl_b32 s34, s{sMb}, 7
    s_add_u32 s34, s34, {FLAGA}
    s_add_u32 s35, s34, {FLAGB-FLAGA}
    v_lshlrev_b32 v{t0}, 2, v{vL}
    v_mov_b32 v{t1}, 0
    s_mov_b32 exec_hi, 0
    '''.replace('XX',''))
    k(f'''
    buffer_store_dword v{t1}, v{t0}, s[{OS}:{OS+3}], s34 offen
    buffer_store_dword v{t1}, v{t0}, s[{OS}:{OS+3}], s35 offen
    s_lshl_b32 s35, s{sMb}, 8
    s_add_u32 s35, s35, {FLAGC}
    buffer_store_dword v{t1}, v{t0}, s[{OS}:{OS+3}], s35 offen
    buffer_store_dword v{t1}, v{t0}, s[{OS}:{OS+3}], s35 offen offset:128
    s_mov_b64 exec, -1
    s_waitcnt vmcnt(0)
    {Lnf}:
    ''')
    RP3 = 32768; RP16 = LW + 2*20480
    def repack_setup():
        for i in range(5): k(f'v_mov_b32 v{RPo+i}, 0')
        L3 = k.label('rp3'); L16 = k.label('rp16'); La = k.label('rpa'); Lb = k.label('rpb'); Lc = k.label('rpc')
        u0, u1, u2 = tmp+20, tmp+21, tmp+22
        k(f'''
        s_cmp_lg_u32 s{sC}, 0
        s_cbranch_scc1 {L3}
        ''')
        srd(k, 76, pW3, pW3+1, 640*3072)
        for i in range(3):
            k(f'''
            v_add_u32 v{u0}, {64*i}, v{vL}
            v_mul_u32_u24 v{u1}, 5462, v{u0}
            v_lshrrev_b32 v{u1}, 16, v{u1}
            v_mul_u32_u24 v{u2}, 12, v{u1}
            v_sub_u32 v{u2}, v{u0}, v{u2}
            v_lshlrev_b32 v{u2}, 4, v{u2}
            v_mul_u32_u24 v{u1}, 3072, v{u1}
            v_add_u32 v{RPo+i}, v{u1}, v{u2}
            ''')
        k(f'''
        s_mul_i32 s69, s{sMb}, {16*3072}
        s_mul_i32 s70, s{sNb}, 192
        s_add_u32 s69, s69, s70
        s_branch {L16}
        {L3}:
        s_sub_u32 s68, s{sC}, 1
        s_lshl_b32 s68, s68, 8
        s_add_u32 s68, s68, s2
        s_cmp_lt_u32 s68, {NUNITS}
        s_cselect_b32 s65, 1, 0
        s_mov_b32 s66, s68
        s_mul_i32 s67, s68, 5120
        s_add_u32 s67, s67, {PW}
        s_cmp_lt_u32 s68, {PW_W4}
        s_cbranch_scc0 {La}
        s_cmp_lt_u32 s68, 160
        s_cbranch_scc0 {Lb}
        s_mov_b32 s72, s{pW2}
        s_mov_b32 s73, s{pW2+1}
        s_branch {Lc}b
        {Lb}:
        s_sub_u32 s68, s68, 160
        s_mov_b32 s72, s{pWO}
        s_mov_b32 s73, s{pWO+1}
        {Lc}b:
        s_mul_i32 s69, s68, 3277
        s_lshr_b32 s69, s69, 16
        s_mul_i32 s70, s69, 20
        s_sub_u32 s70, s68, s70
        s_mov_b32 s74, {640*1280}
        s_branch {Lc}
        {La}:
        s_sub_u32 s68, s68, {PW_W4}
        s_mov_b32 s72, s{pW4}
        s_mov_b32 s73, s{pW4+1}
        s_mul_i32 s69, s68, 1366
        s_lshr_b32 s69, s69, 16
        s_mul_i32 s70, s69, 48
        s_sub_u32 s70, s68, s70
        s_mov_b32 s74, {1536*1280}
        {Lc}:
        s_mul_i32 s70, s70, {32*1280}
        s_mul_i32 s69, s69, 160
        s_add_u32 s69, s69, s70
        s_mov_b32 s76, s72
        s_and_b32 s77, s73, 0xffff
        s_mov_b32 s78, s74
        s_mov_b32 s79, 0x20000
        s_sub_u32 s70, s{sC}, 1
        s_mul_i32 s70, s70, 5120
        s_add_u32 s70, s70, {RP16}
        ''')
        for i in range(5):
            k(f'''
            v_add_u32 v{u0}, {64*i}, v{vL}
            v_mul_u32_u24 v{u1}, 6554, v{u0}
            v_lshrrev_b32 v{u1}, 16, v{u1}
            v_mul_u32_u24 v{u2}, 10, v{u1}
            v_sub_u32 v{u2}, v{u0}, v{u2}
            v_lshlrev_b32 v{u2}, 4, v{u2}
            v_mul_u32_u24 v{u1}, 1280, v{u1}
            v_add_u32 v{RPo+i}, v{u1}, v{u2}
            ''')
        k(f'''
        s_sub_u32 s34, s66, {PW_WO}
        s_cmp_lt_u32 s34, {8*NKO}
        s_cbranch_scc0 {L16}
        s_mul_i32 s35, s34, 2731
        s_lshr_b32 s35, s35, 16
        s_mul_i32 s36, s35, {NKO}
        s_sub_u32 s36, s34, s36
        s_mul_i32 s69, s35, 160
        s_lshl_b32 s36, s36, 2
        ''')
        a0, a1, a2, a3 = tmp+23, tmp+24, tmp+25, tmp+26
        for i in range(5):
            k(f'''
            v_add_u32 v{u0}, {64*i}, v{vL}
            v_mul_u32_u24 v{u1}, 6554, v{u0}
            v_lshrrev_b32 v{u1}, 16, v{u1}
            v_mul_u32_u24 v{u2}, 10, v{u1}
            v_sub_u32 v{u2}, v{u0}, v{u2}
            v_lshrrev_b32 v{a0}, 4, v{u1}
            v_bfe_u32 v{a1}, v{u1}, 2, 1
            v_lshl_add_u32 v{a0}, v{a0}, 1, v{a1}
            v_add_u32 v{a0}, s36, v{a0}
            v_mul_u32_u24 v{a1}, 171, v{a0}
            v_lshrrev_b32 v{a1}, 9, v{a1}
            v_mul_u32_u24 v{a2}, 3, v{a1}
            v_sub_u32 v{a0}, v{a0}, v{a2}
            v_mul_u32_u24 v{a1}, 20, v{a1}
            v_bfe_u32 v{a2}, v{u1}, 3, 1
            v_and_b32 v{u1}, 3, v{u1}
            v_lshl_add_u32 v{a3}, v{a2}, 2, v{u1}
            v_lshl_add_u32 v{a3}, v{a0}, 3, v{a3}
            v_add_u32 v{a1}, v{a1}, v{a3}
            v_mul_u32_u24 v{a1}, 1280, v{a1}
            v_lshl_add_u32 v{RPo+i}, v{u2}, 4, v{a1}
            v_cmp_le_u32 vcc, 20, v{a3}
            v_mov_b32 v{u0}, 0x7fff0000
            v_cndmask_b32 v{RPo+i}, v{RPo+i}, v{u0}, vcc
            ''')
        k(f'{L16}:')
    def repack_issue():
        L3 = k.label('ri3'); Lx_ = k.label('rix')
        k(f'''
        s_cmp_lg_u32 s{sC}, 0
        s_cbranch_scc1 {L3}
        ''')
        for j in range(3):
            if j == 2:
                k(f's_cmp_ge_u32 s{sMb}, 8')
                k(f's_cbranch_scc1 {Lx_}')
            for i in range(3):
                k(f's_mov_b32 m0, {RP3 + j*3072 + i*1024}')
                k(f'buffer_load_dwordx4 v{RPo+i}, s[76:79], s69 offen lds')
            k(f's_add_u32 s69, s69, {16*16*3072}')
        k(f'''
        s_branch {Lx_}
        {L3}:
        s_cmp_eq_u32 s65, 0
        s_cbranch_scc1 {Lx_}
        ''')
        for i in range(5):
            k(f's_add_u32 m0, s70, {i*1024}')
            k(f'buffer_load_dwordx4 v{RPo+i}, s[76:79], s69 offen lds')
        k(f'{Lx_}:')
    def stats(s, dmas=None):
        slot = s % 4; b = SX[s & 1]
        dmas = list(dmas or [])
        if 'cstats' in dbg:
            for grp in dmas:
                for l in grp: k(l)
            return
        for i in range(4):
            k(f'ds_read_b128 v[{b+4*i}:{b+4*i+3}], v{vSa+i} offset:{slot*16384}')
        if dmas:
            for l in dmas.pop(0): k(l)
        k('s_waitcnt lgkmcnt(0)')
        if 'nostats' in dbg:
            for grp in dmas:
                for l in grp: k(l)
            return
        for i in range(16):
            if dmas and i % 2 == 1:
                for l in dmas.pop(0): k(l)
            lo, hi = un + 2*(i & 3), un + 2*(i & 3) + 1
            k(f'v_lshlrev_b32 v{lo}, 16, v{b+i}')
            k(f'v_and_b32 v{hi}, 0xffff0000, v{b+i}')
            k(f'v_add_f32 v{aS+(i&1)}, v{aS+(i&1)}, v{lo}')
            k(f'v_fmac_f32 v{aQ+(i&1)}, v{lo}, v{lo}')
            k(f'v_add_f32 v{aS+2+(i&1)}, v{aS+2+(i&1)}, v{hi}')
            k(f'v_fmac_f32 v{aQ+2+(i&1)}, v{hi}, v{hi}')
    repack_setup()
    k('s_waitcnt vmcnt(9) lgkmcnt(0)')
    k('s_barrier')
    if 'lst2' in dbg: k('s_memtime s[82:83]')
    dma_stage(2)
    k('s_waitcnt vmcnt(9)')
    k('s_barrier')
    stats(0, dma_list(3))
    for s in range(1, 10):
        if s + 1 <= 9:
            later = [g for g in range(s + 2, min(s + 3, 10))]
            k(f's_waitcnt vmcnt({9*len(later)})')
        k('s_barrier')
        if 'lst' in dbg and s in (7, 8, 9): k(f's_memtime s[{80+2*(s-6)}:{81+2*(s-6)}]')
        if 'lst2' in dbg: k(f's_memtime s[{80+2*(s+1)}:{81+2*(s+1)}]') if s < 8 else None
        stats(s, dma_list(s + 3) if (s + 3 <= 9 and 'nodma' not in dbg) else None)
        if s == 8: repack_issue()
    if 'lst' in dbg: k('s_memtime s[88:89]')
    if 'cstats' in dbg:
        k('s_barrier')
    else:
        mu, rr, var = tmp, tmp+1, tmp+2
        k(f'''
        v_add_f32 v{aS}, v{aS}, v{aS+1}
        v_add_f32 v{aS+2}, v{aS+2}, v{aS+3}
        v_add_f32 v{aQ}, v{aQ}, v{aQ+1}
        v_add_f32 v{aQ+2}, v{aQ+2}, v{aQ+3}
        v_add_f32 v{aS}, v{aS}, v{aS+2}
        v_add_f32 v{aQ}, v{aQ}, v{aQ+2}
        ''')
        cross_half_sum(k, aS, tmp+5); cross_half_sum(k, aQ, tmp+6)
        k(f'''
        v_mul_f32 v{mu}, {hx(f2u(1.0/640))}, v{aS}
        v_mul_f32 v{var}, {hx(f2u(1.0/640))}, v{aQ}
        v_fma_f32 v{var}, -v{mu}, v{mu}, v{var}
        v_max_f32 v{var}, 0, v{var}
        v_add_f32 v{rr}, {hx(f2u(EPS))}, v{var}
        v_rsq_f32 v{rr}, v{rr}
        v_lshlrev_b32 v{tmp+4}, 4, v{vT}
        s_lshl_b32 s34, s{sC}, 9
        s_add_u32 s34, s34, {STB}
        v_add_u32 v{tmp+4}, s34, v{tmp+4}
        v_mul_f32 v{tmp+3}, v{mu}, v{rr}
        ds_write_b96 v{tmp+4}, v[{mu}:{mu+2}]
        v_lshlrev_b32 v{tmp+4}, 2, v{vT}
        s_lshl_b32 s34, s{sC}, 7
        s_add_u32 s34, s34, {STR}
        v_add_u32 v{tmp+4}, s34, v{tmp+4}
        ds_write_b32 v{tmp+4}, v{rr}
        ds_write_b32 v{tmp+4}, v{tmp+3} offset:512
        s_waitcnt lgkmcnt(0)
        s_barrier
        ''')
        if 'lst' in dbg: k('s_memtime s[90:91]')
        Lns = k.label('ns')
        k(f'''
        s_cmp_lg_u32 s{sNb}, 0
        s_cbranch_scc1 {Lns}
        s_lshl_b32 s34, s{sBlk}, 8
        s_add_u32 s34, s34, {ST1}
        v_lshlrev_b32 v{tmp+3}, 3, v{vT}
        s_mov_b32 exec_hi, 0
        buffer_store_dwordx2 v[{mu}:{mu+1}], v{tmp+3}, s[{OS}:{OS+3}], s34 offen
        s_mov_b64 exec, -1
        {Lns}:
        ''')
    L16f = k.label('rf16'); Lx = k.label('rfx')
    t0, t1, t2, t3 = tmp+20, tmp+21, tmp+22, tmp+23
    k(f'''
    s_waitcnt vmcnt(0)
    s_cmp_lg_u32 s{sC}, 0
    s_cbranch_scc1 {L16f}
    v_lshrrev_b32 v{t0}, 4, v{vL}
    v_and_b32 v{t1}, 15, v{vL}
    v_lshrrev_b32 v{t2}, 2, v{t1}
    v_and_b32 v{t1}, 3, v{t1}
    v_lshrrev_b32 v{t3}, 1, v{t0}
    v_lshlrev_b32 v{t3}, 3, v{t3}
    v_add_u32 v{t2}, v{t2}, v{t3}
    v_mul_u32_u24 v{t2}, 192, v{t2}
    v_and_b32 v{t0}, 1, v{t0}
    v_lshlrev_b32 v{t0}, 5, v{t0}
    v_lshlrev_b32 v{t1}, 3, v{t1}
    v_add3_u32 v{t0}, v{t2}, v{t0}, v{t1}
    v_lshlrev_b32 v{t1}, 4, v{vL}
    ''')
    for ft in range(3): k(f'v_mov_b32 v{Fc+ft}, 0')
    for j in range(3):
        Lsk = k.label('rf3s')
        if j == 2:
            k(f's_cmp_ge_u32 s{sMb}, 8')
            k(f's_cbranch_scc1 {Lsk}')
        for ft in range(3):
            for jj in range(2):
                k(f'ds_read_b64_tr_b16 v[{F+4*ft+2*jj}:{F+4*ft+2*jj+1}], v{t0} offset:{RP3 + j*3072 + 4*jj*192 + ft*64}')
        k(f'''
        s_add_u32 s34, s{sMb}, {16*j}
        s_mul_i32 s35, s{sNb}, 40
        s_add_u32 s34, s34, s35
        s_mul_i32 s34, s34, 3072
        s_add_u32 s34, s34, {PW3}
        s_waitcnt lgkmcnt(0)
        ''')
        for ft in range(3):
            k(f'buffer_store_dwordx4 v[{F+4*ft}:{F+4*ft+3}], v{t1}, s[{OS}:{OS+3}], s34 offen offset:{ft*1024}')
        for ft in range(3):
            for i in range(4): k(f'v_dot2_f32_bf16 v{Fc+ft}, v{F+4*ft+i}, v{ones}, v{Fc+ft}')
        k('s_nop 1')
        k(f'{Lsk}:')
    for ft in range(3): cross_half_sum(k, Fc+ft, tmp+24+ft)
    k(f'''
    s_mul_i32 s34, s{sNb}, {16*384}
    s_mul_i32 s35, s{sMb}, 384
    s_add_u32 s34, s34, s35
    s_add_u32 s34, s34, {CS3P}
    v_lshlrev_b32 v{t0}, 2, v{vT}
    s_mov_b32 exec_hi, 0
    ''')
    for ft in range(3):
        k(f'buffer_store_dword v{Fc+ft}, v{t0}, s[{OS}:{OS+3}], s34 offen offset:{ft*128}')
    k(f'''
    s_branch {Lend}
    {L16f}:
    s_cmp_eq_u32 s65, 0
    s_cbranch_scc1 {Lend}
    v_lshrrev_b32 v{t3}, 4, v{vL}
    v_and_b32 v{t2}, 15, v{vL}
    v_lshrrev_b32 v{t0}, 1, v{t3}
    v_lshlrev_b32 v{t0}, 4, v{t0}
    v_and_b32 v{t1}, 1, v{t3}
    v_lshl_add_u32 v{t0}, v{t1}, 2, v{t0}
    v_lshrrev_b32 v{t1}, 2, v{t2}
    v_add_u32 v{t0}, v{t0}, v{t1}
    v_mul_u32_u24 v{t0}, 160, v{t0}
    v_and_b32 v{t1}, 3, v{t2}
    v_lshl_add_u32 v{t0}, v{t1}, 3, v{t0}
    s_sub_u32 s70, s{sC}, 1
    s_mul_i32 s70, s70, 5120
    s_add_u32 s70, s70, {RP16}
    v_add_u32 v{t0}, s70, v{t0}
    ''')
    for ft in range(5):
        for j in range(2):
            k(f'ds_read_b64_tr_b16 v[{F+4*ft+2*j}:{F+4*ft+2*j+1}], v{t0} offset:{j*1280 + ft*32}')
    k(f'''
    v_lshlrev_b32 v{t1}, 4, v{vL}
    s_add_u32 s70, s67, 4096
    s_waitcnt lgkmcnt(0)
    ''')
    for ft in range(5):
        so, off = (67, ft*1024) if ft < 4 else (70, 0)
        k(f'buffer_store_dwordx4 v[{F+4*ft}:{F+4*ft+3}], v{t1}, s[{OS}:{OS+3}], s{so} offen offset:{off}')
    k(f'{Lend}:')
    if 'lst2' in dbg:
        Lx3 = k.label('x3')
        k(f's_cmp_ge_u32 s2, 256'); k(f's_cbranch_scc1 {Lx3}')
        k(f's_cmp_lt_u32 s{sWave}, 4'); k(f's_cbranch_scc1 {Lx3}')
        k('s_mov_b64 exec, -1'); k('s_waitcnt vmcnt(0)')
        k(f's_and_b32 s{sWave}, s{sWave}, 3')
        st2 = Stamps(k, True, base=80, maxn=15); st2.n = 9
        st2.dump(OS, sWave, tmp)
        k(f'{Lx3}:')
    elif stamps:
        Lx2 = k.label('x')
        k(f's_cmp_ge_u32 s2, 256')
        k(f's_cbranch_scc1 {Lx2}')
        k(f's_cmp_ge_u32 s{sWave}, 4')
        k(f's_cbranch_scc{0 if "lst" in dbg else 1} {Lx2}')
        if 'lst' in dbg:
            k(f's_and_b32 s{sWave}, s{sWave}, 3')
            st.n = 6
            k('s_waitcnt vmcnt(0)')
            k('s_memtime s[92:93]')
            st.n = 7
            st.dump(OS, sWave, tmp)
            k('s_endpgm')
            st.n = 5
        k('s_mov_b64 exec, -1')
        st()
        k('s_waitcnt vmcnt(0)')
        st()
        st.dump(OS, sWave, tmp)
        k(f'{Lx2}:')
    k('s_endpgm')
    idx = next(i for i, l in enumerate(k.l) if l.startswith(f'v_lshrrev_b32 v{t0-20}, 1, v{vT}'))
    ins = ['s_waitcnt lgkmcnt(0)', f's_mov_b32 s{OS}, s{pWS}', f's_and_b32 s{OS+1}, s{pWS+1}, 0xffff', f's_mov_b32 s{OS+2}, {WS_USED}', f's_mov_b32 s{OS+3}, 0x20000']
    k.l[idx:idx] = ins
    return k.finish(), kdesc(name, nv), nv, LDS_TOTAL

if __name__ == '__main__':
    t, d, nv, lds = gen_g1()
    print(nv, lds)
```

```python
from common import *

def body_gs(k, mode, st=None, merged=False, rot=True):
    st = st or (lambda: None)
    va = VA(1, 256)
    vL = va.alloc(); vT16 = va.alloc(); vG = va.alloc()
    vXo = va.alloc(4); vWo = va.alloc()
    acc = va.alloc(80, align=4)
    NB = 3
    X = [va.alloc(16, align=4) for _ in range(NB)]
    W = [va.alloc(20, align=4) for _ in range(NB)]
    ex = va.alloc(20, align=4)
    e1 = va.alloc(10, align=2)
    stt = va.alloc(2, align=2)
    tmp = va.alloc(12, align=4)
    nv = va.n
    WS, XS, OUT = 8, 24, 28
    sWave, sMt, sNt, sAo, sWo, sLw, sRot, sW2 = 20, 21, 22, 23, 32, 33, 34, 35
    SC = ' sc1' if merged else ''
    if mode == 'g2':   abase, nk, ks0, n, ubase, upern, asc = HS, 20, 0, 5, PW_W2, 20, ''
    elif mode == 'g4a': abase, nk, ks0, n, ubase, upern, asc = A4, NK4, 0, 6, PW_WO, NKO, ''
    else:              abase, nk, ks0, n, ubase, upern, asc = A4, NK4, NKO, 12, PW_W4, 48, SC
    two = (mode == 'g4m')
    n2 = 6 if two else 0
    st()
    k(f's_load_dwordx2 s[4:5], s[0:1], {KA_WS}')
    if mode != 'g4a': k(f's_load_dwordx2 s[40:41], s[0:1], {KA_X}')
    if mode in ('g4a', 'g4m'): k(f's_load_dwordx2 s[44:45], s[0:1], {KA_OUT}')
    k(f'''
    s_and_b32 s36, s2, 7
    s_lshr_b32 s37, s2, 3
    s_and_b32 s38, s36, 3
    s_lshl_b32 s38, s38, 3
    s_and_b32 s39, s37, 7
    s_add_u32 s{sMt}, s38, s39
    s_lshr_b32 s38, s36, 2
    s_lshl_b32 s38, s38, 2
    s_lshr_b32 s46, s37, 3
    s_add_u32 s{sNt}, s38, s46
    v_and_b32 v{vL}, 63, v0
    v_lshrrev_b32 v{tmp}, 6, v0
    v_and_b32 v{vT16}, 15, v{vL}
    v_readfirstlane_b32 s{sWave}, v{tmp}
    v_lshrrev_b32 v{vG}, 4, v{vL}
    v_lshlrev_b32 v{vWo}, 4, v{vL}
    ''')
    if rot:
        if n == 6:
            k(f'''
            s_add_u32 s47, s39, s46
            s_cmp_ge_u32 s47, 6
            s_cselect_b32 s48, 6, 0
            s_sub_u32 s{sRot}, s47, s48
            ''')
        elif n == 5:
            k(f'''
            s_add_u32 s47, s39, s46
            s_mul_i32 s48, s47, 52
            s_lshr_b32 s48, s48, 8
            s_mul_i32 s48, s48, 5
            s_sub_u32 s{sRot}, s47, s48
            ''')
        else:
            k(f'''
            s_mul_i32 s47, s46, 3
            s_add_u32 s47, s47, s39
            s_cmp_ge_u32 s47, 12
            s_cselect_b32 s48, 12, 0
            s_sub_u32 s{sRot}, s47, s48
            ''')
    else:
        k(f's_mov_b32 s{sRot}, 0')
    t0, t1, t2 = tmp, tmp+1, tmp+2
    for a in range(4):
        k(f'''
        s_add_u32 s47, s{sWave}, {a}
        s_and_b32 s47, s47, 3
        s_mul_i32 s47, s47, {nk*1024}
        v_add_u32 v{vXo+a}, s47, v{vWo}
        ''')
    k(f'''
    s_mul_i32 s{sLw}, s{sWave}, 15360
    s_mul_i32 s56, s{sMt}, {4*nk}
    s_add_u32 s56, s56, {ks0}
    s_lshl_b32 s56, s56, 10
    s_add_u32 s56, s56, {abase}
    s_mul_i32 s57, s{sNt}, {upern}
    s_add_u32 s57, s57, {ubase}
    s_mul_i32 s57, s57, 5120
    s_add_u32 s57, s57, {PW}
    s_waitcnt lgkmcnt(0)
    ''')
    srd(k, WS, 4, 5, WS_USED)
    if mode != 'g4a': srd(k, XS, 40, 41, 2048*1280)
    if mode in ('g4a', 'g4m'): srd(k, OUT, 44, 45, 2048*1280)
    if two:
        k(f'''
        s_mul_i32 s58, s{sMt}, {4*nk}
        s_lshl_b32 s58, s58, 10
        s_add_u32 s58, s58, {abase}
        s_mul_i32 s59, s{sNt}, {NKO}
        s_add_u32 s59, s59, {PW_WO}
        s_mul_i32 s59, s59, 5120
        s_add_u32 s59, s59, {PW}
        s_add_u32 s47, s39, s46
        s_cmp_ge_u32 s47, 6
        s_cselect_b32 s48, 6, 0
        s_sub_u32 s60, s47, s48
        ''')
    def offsets(s):
        if s >= n:
            k(f'''
            s_add_u32 s47, s33, {s - n}
            s_cmp_ge_u32 s47, 6
            s_cselect_b32 s48, 6, 0
            s_sub_u32 s47, s47, s48
            s_lshl_b32 s47, s47, 2
            s_add_u32 s47, s47, s{sWave}
            s_mul_i32 s{sWo}, s47, 5120
            s_add_u32 s{sWo}, s{sWo}, s59
            s_add_u32 s{sW2}, s{sWo}, 4096
            s_lshl_b32 s47, s47, 10
            s_add_u32 s{sAo}, s47, s58
            ''')
            return
        k(f'''
        s_add_u32 s47, s{sRot}, {s}
        s_cmp_ge_u32 s47, {n}
        s_cselect_b32 s48, {n}, 0
        s_sub_u32 s47, s47, s48
        s_lshl_b32 s47, s47, 2
        s_add_u32 s47, s47, s{sWave}
        s_mul_i32 s{sWo}, s47, 5120
        s_add_u32 s{sWo}, s{sWo}, s57
        s_add_u32 s{sW2}, s{sWo}, 4096
        s_lshl_b32 s47, s47, 10
        s_add_u32 s{sAo}, s47, s56
        ''')
    def wload1(s, ft):
        r = W[s % NB] + 4*ft
        so, off = (sWo, ft*1024) if ft < 4 else (sW2, 0)
        k(f'buffer_load_dwordx4 v[{r}:{r+3}], v{vWo}, s[{WS}:{WS+3}], s{so} offen offset:{off}')
    def xload1(s, a):
        r = X[s % NB] + 4*a
        k(f'buffer_load_dwordx4 v[{r}:{r+3}], v{vXo+a}, s[{WS}:{WS+3}], s{sAo} offen{asc}')
    need_wait = merged and mode in ('g4b', 'g4m')
    if need_wait:
        for s in range(2):
            offsets(s)
            for i in range(5): wload1(s, i)
        k(f'''
        s_lshr_b32 s53, s{sMt}, 1
        s_lshl_b32 s53, s53, 7
        s_add_u32 s53, s53, {FLAGB}
        ''')
        wait_flags(k, WS, 53, sWave, tmp+8, 'wb')
        for s in range(2):
            offsets(s)
            for a in range(4): xload1(s, a)
    else:
        for s in range(2):
            offsets(s)
            for i in range(5): wload1(s, i)
            for a in range(4): xload1(s, a)
    st()
    vtok, vx1, vxo, vpre = tmp+4, tmp+5, tmp+6, tmp+7
    k(f'''
    s_lshl_b32 s47, s{sMt}, 6
    s_lshl_b32 s48, s{sWave}, 4
    s_add_u32 s47, s47, s48
    v_add_u32 v{vtok}, s47, v{vT16}
    v_mul_u32_u24 v{vxo}, 1280, v{vtok}
    v_lshl_add_u32 v{vxo}, v{vG}, 3, v{vxo}
    s_mul_i32 s49, s{sNt}, 160
    s_lshl_b32 s54, s2, 2
    s_add_u32 s54, s54, s{sWave}
    s_mul_i32 s54, s54, 5120
    s_add_u32 s54, s54, {PRE}
    s_add_u32 s55, s54, 4096
    v_lshrrev_b32 v{t0}, 5, v{vtok}
    v_mul_u32_u24 v{t0}, {40*1024}, v{t0}
    v_and_b32 v{t1}, 31, v{vtok}
    v_lshrrev_b32 v{t2}, 1, v{vG}
    v_lshl_add_u32 v{t1}, v{t2}, 5, v{t1}
    v_lshl_add_u32 v{t0}, v{t1}, 4, v{t0}
    v_and_b32 v{t1}, 1, v{vG}
    v_lshl_add_u32 v{vx1}, v{t1}, 3, v{t0}
    s_mul_i32 s50, s{sNt}, 5120
    s_add_u32 s50, s50, {X1F}
    s_add_u32 s51, s50, 4096
    ''')
    def extra_loads():
        ne = 0
        if mode != 'g4a':
            for ft in range(5):
                k(f'buffer_load_dwordx2 v[{ex+2*ft}:{ex+2*ft+1}], v{vxo}, s[{XS}:{XS+3}], s49 offen offset:{ft*32}')
            ne += 5
        else:
            for ft in range(5):
                so, off = (54, ft*1024) if ft < 4 else (55, 0)
                k(f'buffer_load_dwordx4 v[{ex+4*ft}:{ex+4*ft+3}], v{vWo}, s[{WS}:{WS+3}], s{so} offen offset:{off}')
            ne += 5
        if mode == 'g2':
            k(f'''
            v_lshlrev_b32 v{t0}, 3, v{vtok}
            s_mov_b32 s52, {ST1}
            buffer_load_dwordx2 v[{stt}:{stt+1}], v{t0}, s[{WS}:{WS+3}], s52 offen
            ''')
            ne += 1
        elif mode in ('g4b', 'g4m'):
            for ft in range(5):
                so, off = (50, ft*1024) if ft < 4 else (51, 0)
                k(f'buffer_load_dwordx2 v[{e1+2*ft}:{e1+2*ft+1}], v{vx1}, s[{WS}:{WS+3}], s{so} offen offset:{off}{SC}')
            ne += 5
        return ne
    log = []
    if need_wait: log += [('w',0)]*5 + [('w',1)]*5 + [('x',0)]*4 + [('x',1)]*4
    else: log += [('a',0)]*9 + [('a',1)]*9
    u = X[0]
    def unpack(src, dst):
        k(f'v_lshlrev_b32 v{dst}, 16, v{src}')
        k(f'v_and_b32 v{dst+1}, 0xffff0000, v{src}')
        k(f'v_lshlrev_b32 v{dst+2}, 16, v{src+1}')
        k(f'v_and_b32 v{dst+3}, 0xffff0000, v{src+1}')
    def mfmas(s, xb, wb, ld):
        cnt = 0
        for a in range(4):
            for ft in range(5):
                d = acc + 4*(5*a + ft); x = xb + 4*a; w = wb + 4*ft
                c = '0' if s == 0 else f'v[{d}:{d+3}]'
                k(f'v_mfma_f32_16x16x32_bf16 v[{d}:{d+3}], v[{w}:{w+3}], v[{x}:{x+3}], {c}')
                cnt += 1
                if ld and cnt % 2 == 0: ld.pop(0)()
    for s in range(n):
        last = max(i for i, (t, q) in enumerate(log) if q == s and t != 'e')
        k(f's_waitcnt vmcnt({min(63, len(log) - 1 - last)})')
        ld = []
        if s + 2 < n:
            offsets(s + 2)
            ld = [(lambda i=i: (wload1(s + 2, i), log.append(('a', s + 2)))) for i in range(5)] + [(lambda a=a: (xload1(s + 2, a), log.append(('a', s + 2)))) for a in range(4)]
        mfmas(s, X[s % NB], W[s % NB], ld)
        if s == max(0, n - 3):
            ne = extra_loads(); log += [('e', -1)] * ne
    if two:
        k(f's_mul_i32 s{sLw}, s{sWave}, 15360')
        def off2(q):
            k(f'''
            s_add_u32 s47, s60, {q}
            s_cmp_ge_u32 s47, 6
            s_cselect_b32 s48, 6, 0
            s_sub_u32 s47, s47, s48
            s_lshl_b32 s47, s47, 2
            s_add_u32 s47, s47, s{sWave}
            s_mul_i32 s{sWo}, s47, 5120
            s_add_u32 s{sWo}, s{sWo}, s59
            s_add_u32 s{sW2}, s{sWo}, 4096
            s_lshl_b32 s47, s47, 10
            s_add_u32 s{sAo}, s47, s58
            ''')
        for q in range(3):
            off2(q)
            for ft in range(5):
                r = W[q] + 4*ft
                so, off = (sWo, ft*1024) if ft < 4 else (sW2, 0)
                k(f'buffer_load_dwordx4 v[{r}:{r+3}], v{vWo}, s[{WS}:{WS+3}], s{so} offen offset:{off}')
        for q in range(3, 6):
            off2(q)
            k(f's_add_u32 m0, s{sLw}, {(q-3)*5120}')
            for ft in range(4):
                k(f'buffer_load_dwordx4 v{vWo}, s[{WS}:{WS+3}], s{sWo} offen offset:{ft*1024} lds')
            k(f's_add_u32 m0, s{sLw}, {(q-3)*5120 + 4096}')
            k(f'buffer_load_dwordx4 v{vWo}, s[{WS}:{WS+3}], s{sW2} offen lds')
        k('s_waitcnt vmcnt(30)')
        u2 = X[0] + 4
        for ft in range(5):
            unpack(ex+2*ft, u); unpack(e1+2*ft, u2)
            for i in range(4):
                a_ = acc + 4*ft + i
                k(f'v_add_f32 v{u+i}, v{u+i}, v{u2+i}')
                k(f'v_add_f32 v{a_}, v{a_}, v{u+i}')
        k(f'''
        s_lshl_b32 s53, s{sMt}, 7
        s_add_u32 s53, s53, {FLAGC}
        ''')
        st()
        wait_flags(k, WS, 53, sWave, tmp+8, 'wc', n=32)
        st()
        XB = [X[0], X[1], X[2], ex, ex + 16]
        assert e1 == ex + 20 and stt == e1 + 10
        for q in range(5):
            off2(q)
            for a in range(4):
                r = XB[q] + 4*a
                k(f'buffer_load_dwordx4 v[{r}:{r+3}], v{vXo+a}, s[{WS}:{WS+3}], s{sAo} offen{asc}')
        k(f'v_add_u32 v{tmp+9}, s{sLw}, v{vWo}')
        for q in range(6):
            rem = [16, 12 + 4, 8 + 4, 4 + 4, 4, 0][q]
            k(f's_waitcnt vmcnt({rem})' + (' lgkmcnt(0)' if q >= 3 else ''))
            xb = XB[q] if q < 5 else X[0]
            ld = []
            mfmas(1, xb, W[q % 3], ld)
            if q == 0:
                off2(5)
                for a in range(4):
                    r = X[0] + 4*a
                    k(f'buffer_load_dwordx4 v[{r}:{r+3}], v{vXo+a}, s[{WS}:{WS+3}], s{sAo} offen{asc}')
            if q < 3:
                for ft in range(5):
                    r = W[q] + 4*ft
                    k(f'ds_read_b128 v[{r}:{r+3}], v{tmp+9} offset:{q*5120 + ft*1024}')
        k('s_barrier')
    st()
    wa = tmp+8
    for a in range(1, 4):
        k(f'''
        s_add_u32 s47, s{sWave}, {a}
        s_and_b32 s47, s47, 3
        s_mul_i32 s47, s47, 15360
        s_add_u32 s47, s47, {(a-1)*5120}
        v_add_u32 v{wa}, s47, v{vWo}
        ''')
        for ft in range(5):
            d = acc + 4*(5*a + ft)
            k(f'ds_write_b128 v{wa}, v[{d}:{d+3}] offset:{ft*1024}')
    k(f'''
    v_add_u32 v{wa}, s{sLw}, v{vWo}
    s_waitcnt lgkmcnt(0)
    s_barrier
    ''')
    R = acc + 20
    for sl in range(3):
        for ft in range(5):
            d = R + 20*sl + 4*ft
            k(f'ds_read_b128 v[{d}:{d+3}], v{wa} offset:{sl*5120 + ft*1024}')
    k('s_waitcnt vmcnt(0) lgkmcnt(0)')
    for i in range(20):
        k(f'v_add_f32 v{R+i}, v{R+i}, v{R+20+i}')
        k(f'v_add_f32 v{acc+i}, v{acc+i}, v{R+40+i}')
    for i in range(20): k(f'v_add_f32 v{acc+i}, v{acc+i}, v{R+i}')
    if mode == 'g2':
        sS, sQ = X[1], X[1]+1
        nmr = X[1]+2
        k(f'v_mul_f32 v{nmr}, v{stt}, v{stt+1}')
        k(f'v_mov_b32 v{sS}, 0'); k(f'v_mov_b32 v{sQ}, 0')
        for ft in range(5):
            unpack(ex+2*ft, u)
            for i in range(4):
                a_ = acc + 4*ft + i
                k(f'v_fma_f32 v{u+i}, v{u+i}, v{stt+1}, -v{nmr}')
                k(f'v_add_f32 v{a_}, v{a_}, v{u+i}')
            pk = X[2] + 2*ft
            k(f'v_cvt_pk_bf16_f32 v{pk}, v{acc+4*ft}, v{acc+4*ft+1}')
            k(f'v_cvt_pk_bf16_f32 v{pk+1}, v{acc+4*ft+2}, v{acc+4*ft+3}')
            so, off = (50, ft*1024) if ft < 4 else (51, 0)
            k(f'buffer_store_dwordx2 v[{pk}:{pk+1}], v{vx1}, s[{WS}:{WS+3}], s{so} offen offset:{off}{SC}')
            unpack(pk, u)
            for i in range(4):
                k(f'v_add_f32 v{sS}, v{sS}, v{u+i}')
                k(f'v_fmac_f32 v{sQ}, v{u+i}, v{u+i}')
        for r in (sS, sQ):
            k(f'v_mov_b32 v{u}, v{r}')
            k(f'v_permlane16_swap_b32 v{r}, v{u}')
            k(f'v_add_f32 v{r}, v{r}, v{u}')
            k(f'v_mov_b32 v{u}, v{r}')
            k(f'v_permlane32_swap_b32 v{r}, v{u}')
            k(f'v_add_f32 v{r}, v{r}, v{u}')
        k(f'''
        v_lshlrev_b32 v{u}, 6, v{vtok}
        s_lshl_b32 s47, s{sNt}, 3
        s_add_u32 s47, s47, {PS}
        s_mov_b64 exec, 0xffff
        buffer_store_dwordx2 v[{sS}:{sS+1}], v{u}, s[{WS}:{WS+3}], s47 offen{SC}
        s_mov_b64 exec, -1
        ''')
        if merged:
            k(f'''
            s_lshr_b32 s53, s{sMt}, 1
            s_lshl_b32 s53, s53, 7
            s_and_b32 s47, s{sMt}, 1
            s_lshl_b32 s47, s47, 3
            s_add_u32 s47, s47, s{sNt}
            s_lshl_b32 s47, s47, 2
            s_add_u32 s53, s53, s47
            s_add_u32 s53, s53, {FLAGA}
            ''')
            publish(k, WS, 53, sWave, u, 'pa')
    elif mode == 'g4b':
        u2 = X[0] + 4
        for ft in range(5):
            unpack(ex+2*ft, u); unpack(e1+2*ft, u2)
            for i in range(4):
                a_ = acc + 4*ft + i
                k(f'v_add_f32 v{u+i}, v{u+i}, v{u2+i}')
                k(f'v_add_f32 v{a_}, v{a_}, v{u+i}')
            so, off = (54, ft*1024) if ft < 4 else (55, 0)
            k(f'buffer_store_dwordx4 v[{acc+4*ft}:{acc+4*ft+3}], v{vWo}, s[{WS}:{WS+3}], s{so} offen offset:{off}')
    else:
        u2 = X[0] + 4
        for ft in range(5):
            if mode == 'g4m':
                pass
            else:
                for i in range(4):
                    a_ = acc + 4*ft + i
                    k(f'v_add_f32 v{a_}, v{a_}, v{ex+4*ft+i}')
            pk = X[2] + 2*ft
            k(f'v_cvt_pk_bf16_f32 v{pk}, v{acc+4*ft}, v{acc+4*ft+1}')
            k(f'v_cvt_pk_bf16_f32 v{pk+1}, v{acc+4*ft+2}, v{acc+4*ft+3}')
            k(f'buffer_store_dwordx2 v[{pk}:{pk+1}], v{vxo}, s[{OUT}:{OUT+3}], s49 offen offset:{ft*32}')
    return nv, WS, sWave, tmp

def gen_gs(name, mode, stamps=False):
    k = K(name)
    st = Stamps(k, stamps)
    Lend = k.label('end')
    k('s_cmp_ge_u32 s2, 256')
    k(f's_cbranch_scc1 {Lend}')
    nv, WS, sWave, tmp = body_gs(k, mode, st)
    if stamps:
        k('s_waitcnt vmcnt(0)')
        st()
        st.dump(WS, sWave, tmp)
    k(f'{Lend}:')
    k('s_endpgm')
    return k.finish(), kdesc(name, nv), nv

if __name__ == '__main__':
    for m in ('g2', 'g4a', 'g4b'):
        t, d, nv = gen_gs(m + '_kernel', m)
        print(m, nv)
```
